```python
import torch

def _softmax(x, axis=-1):
    return torch.softmax(x, dim=axis)
def _gelu(x):
    return torch.nn.functional.gelu(x, approximate="tanh")
def _silu(x):
    return torch.nn.functional.silu(x)
def _sigmoid(x):
    return torch.sigmoid(x)
def _layernorm(x, axis=-1, eps=1e-5):
    m = x.mean(dim=axis, keepdim=True)
    v = x.var(dim=axis, keepdim=True, unbiased=False)
    return (x - m) / torch.sqrt(v + eps)
def _scatter_add(tgt, idx, src, axis=0):
    return tgt.clone().index_add_(axis, idx, src)
def _segment_sum(src, seg, n):
    out = torch.zeros((n,) + src.shape[1:], dtype=src.dtype)
    return out.index_add_(0, seg, src)
def _pad(x, pw):
    flat = tuple(v for pair in reversed(pw) for v in pair)
    return torch.nn.functional.pad(x, flat)

kernel_name = 'recurrent_scan__softmax_full_mha__dense_activation_relu__prompt'

def setup_inputs():

    _w = (lambda a: (lambda t: t.to(torch.bfloat16) if t.is_floating_point() else t)(torch.as_tensor(a)))
    def _A_setup():
        B, S, D = 1, 2048, 640
        return {
            "x": _w((lambda *s: torch.randn(*s, dtype=torch.bfloat16) * 0.05)(B, S, D)),
            "wqkv": _w((lambda *s: torch.randn(*s, dtype=torch.bfloat16) * 0.05)(D, 3 * D)),
            "wo": _w((lambda *s: torch.randn(*s, dtype=torch.bfloat16) * 0.05)(D, D)),
        }
    _A_in = _A_setup()

    def _B_setup():
        B, S, D, Dff = 1, 2048, 640, 1536
        return {
            "x": _w((lambda *s: torch.randn(*s, dtype=torch.bfloat16) * 0.05)(B, S, D)),
            "w1": _w((lambda *s: torch.randn(*s, dtype=torch.bfloat16) * 0.05)(D, Dff)),
            "w2": _w((lambda *s: torch.randn(*s, dtype=torch.bfloat16) * 0.05)(Dff, D)),
        }
    _B_in = _B_setup()

    return {
        "A_x": _A_in["x"],
        "A_wqkv": _A_in["wqkv"],
        "A_wo": _A_in["wo"],
        "B_x": _B_in["x"],
        "B_w1": _B_in["w1"],
        "B_w2": _B_in["w2"],
    }

def reference(A_x, A_wqkv, A_wo, B_x, B_w1, B_w2):
    def _A_ref(x, wqkv, wo):
        B, S, D = x.shape
        H = 32; Dh = D // H
        qkv = (lambda x, *d: x.permute(*d))((x @ wqkv).reshape(B, S, 3, H, Dh), 2, 0, 3, 1, 4)
        q, k, v = qkv[0], qkv[1], qkv[2]
        scale = Dh ** -0.5
        scores = torch.einsum("bhqd,bhkd->bhqk", q, k) * scale
        p = _softmax(scores, axis=-1)
        o = torch.einsum("bhqk,bhkd->bhqd", p, v)
        return (lambda x, *d: x.permute(*d))(o, 0, 2, 1, 3).reshape(B, S, D) @ wo

    def _B_ref(x, w1, w2):
        h = torch.einsum("bsd,df->bsf", x, w1)
        zero = torch.zeros_like(h)
        h = torch.maximum(h, zero)
        return torch.einsum("bsf,fd->bsd", h, w2)

    x = A_x
    xn = _layernorm(x, axis=-1)
    s = _A_ref(xn, A_wqkv, A_wo)
    g = _silu(_B_ref(xn, B_w1, B_w2))
    return x + s * g
```

```python
def gen(name, nstage_inflight, BK=64, mfma_per_stage=0):
    s = f"""
.text
.globl {name}
.p2align 8
.type {name},@function
{name}:
    s_memtime s[40:41]
    s_load_dwordx4 s[4:7], s[0:1], 0
    s_load_dwordx2 s[24:25], s[0:1], 16
    v_lshrrev_b32 v1, 6, v0
    v_and_b32 v2, 63, v0
    s_nop 0
    v_readfirstlane_b32 s20, v1
    s_and_b32 s21, s2, 7             ; xcd
    s_lshr_b32 s22, s2, 3            ; j
    s_and_b32 s26, s21, 1            ; a
    s_lshr_b32 s27, s21, 1           ; b
    s_and_b32 s28, s22, 3
    s_lshl_b32 s29, s26, 2
    s_add_u32 s28, s28, s29
    s_lshr_b32 s29, s22, 2           ; j>>2 0..7
    s_mul_i32 s30, s27, 7
    s_add_u32 s30, s30, s29
    s_cmp_ge_u32 s29, 7
    s_cbranch_scc1 E_{name}
    s_cmp_ge_u32 s30, 27
    s_cbranch_scc1 E_{name}
    v_lshrrev_b32 v3, 3, v2
    s_lshl_b32 s31, s20, 3
    v_add_u32 v3, s31, v3
    v_lshrrev_b32 v4, 1, v3
    v_and_b32 v4, 7, v4
    v_and_b32 v5, 7, v2
    v_xor_b32 v5, v5, v4
    v_lshlrev_b32 v5, 4, v5
    s_mov_b32 s32, 1280
    v_mul_lo_u32 v6, v3, s32
    v_add_u32 v6, v6, v5             ; x voffset
    s_mul_i32 s33, s28, 256*1280
    v_lshrrev_b32 v3, 4, v2
    v_and_b32 v5, 15, v2
    v_lshlrev_b32 v4, 2, v3
    v_xor_b32 v5, v5, v4
    v_lshlrev_b32 v5, 4, v5
    s_lshl_b32 s31, s20, 2
    v_add_u32 v3, s31, v3
    s_mov_b32 s32, 3840
    v_mul_lo_u32 v7, v3, s32
    v_add_u32 v7, v7, v5
    s_waitcnt lgkmcnt(0)
    s_memtime s[42:43]
    s_mov_b32 s8, s4
    s_mov_b32 s9, s5
    s_mov_b32 s10, 2048*1280
    s_mov_b32 s11, 0x00020000
    s_mov_b32 s12, s6
    s_mov_b32 s13, s7
    s_mov_b32 s14, 2*640*3840
    s_mov_b32 s15, 0x00020000
    s_cmp_ge_u32 s30, 15
    s_cselect_b32 s34, 640*3840, 0
    s_cselect_b32 s35, 15, 0
    s_sub_u32 s30, s30, s35
    s_lshl_b32 s30, s30, 8
    s_add_u32 s34, s34, s30
    s_lshl_b32 s36, s20, 10
"""
    def issue(stage):
        slot = stage % 3
        t = ""
        base = slot * 49152
        for i in range(4):
            t += f"    s_add_u32 s37, s33, {i*64*1280 + stage*128}\n"
            t += f"    s_add_u32 m0, s36, {base + i*8192}\n"
            t += f"    s_nop 0\n"
            t += f"    buffer_load_dwordx4 v6, s[8:11], s37 offen lds\n"
        for i in range(2):
            t += f"    s_add_u32 s37, s34, {(stage*64 + i*32)*3840}\n"
            t += f"    s_add_u32 m0, s36, {base + 32768 + i*8192}\n"
            t += f"    s_nop 0\n"
            t += f"    buffer_load_dwordx4 v7, s[12:15], s37 offen lds\n"
        return t
    for st in range(nstage_inflight): s += issue(st)
    for st in range(10):
        outstanding = min(10, st + nstage_inflight) - st
        s += f"    s_waitcnt vmcnt({6*(outstanding-1)})\n    s_barrier\n"
        if st == 0: s += "    s_memtime s[44:45]\n"
        if st + nstage_inflight < 10 and nstage_inflight == 2: s += issue(st + nstage_inflight)
        for m in range(mfma_per_stage):
            s += f"    v_mfma_f32_32x32x16_bf16 v[{16+16*(m%4)}:{31+16*(m%4)}], v[8:11], v[12:15], v[{16+16*(m%4)}:{31+16*(m%4)}]\n"
        if st + nstage_inflight < 10 and nstage_inflight == 3:
            s += "    s_barrier\n"
            s += issue(st + nstage_inflight)
    s += f"""
    s_memtime s[46:47]
    s_waitcnt lgkmcnt(0)
    s_sub_u32 s42, s42, s40
    s_sub_u32 s44, s44, s40
    s_sub_u32 s46, s46, s40
    v_mov_b32 v10, s42
    v_mov_b32 v11, s44
    v_mov_b32 v12, s46
    v_mov_b32 v13, s40
    s_mov_b32 s8, s24
    s_mov_b32 s9, s25
    s_mov_b32 s10, 0x200000
    s_lshl_b32 s3, s2, 13
    v_lshlrev_b32 v9, 4, v0
    v_add_u32 v9, s3, v9
    buffer_store_dwordx4 v[10:13], v9, s[8:11], 0 offen
    s_waitcnt vmcnt(0)
E_{name}:
    s_endpgm
.section .rodata,"a"
.p2align 6
.amdhsa_kernel {name}
  .amdhsa_next_free_vgpr 128
  .amdhsa_next_free_sgpr 102
  .amdhsa_accum_offset 128
  .amdhsa_group_segment_fixed_size 0
  .amdhsa_kernarg_size 24
  .amdhsa_user_sgpr_count 2
  .amdhsa_user_sgpr_kernarg_segment_ptr 1
  .amdhsa_system_sgpr_workgroup_id_x 1
.end_amdhsa_kernel
.text
"""
    return s
out = '.amdgcn_target "amdgcn-amd-amdhsa--gfx950"\n'
names = []
for nm, a in (("d2", (2,64,0)), ("d3", (3,64,0)), ("d2m", (2,64,16)), ("d3m", (3,64,16))):
    out += gen(nm, *a); names.append(nm)
open("dma.s","w").write(out)
open("dma_names.txt","w").write("\n".join(names))
```

```python
import dma_gen
from dma_gen import gen
def with_pf(name, gran, nst=2, mf=0):
    s = gen(name, nst, 64, mf)
    nx = (1310720 + gran*14336 - 1)//(gran*14336)
    pf = "    s_lshl_b32 s50, s22, 3\n    s_add_u32 s50, s50, s20\n    s_lshl_b32 s50, s50, 6\n    v_add_u32 v20, s50, v2\n"
    pf += f"    v_mul_u32_u24 v21, {gran}, v20\n    s_mul_i32 s51, s26, 1310720\n"
    cnt = 0
    for i in range(nx):
        pf += f"    s_add_u32 s52, s51, {i*14336*gran}\n    buffer_load_dword v{30+cnt}, v21, s[8:11], s52 offen\n"; cnt += 1
    upr = 1792//gran
    tot = 640*upr
    nw = (tot + 14335)//14336
    magic = (2**32 + upr - 1)//upr
    pf += f"    s_mov_b32 s53, {magic}\n    s_mul_i32 s54, s27, 7\n"
    for i in range(nw):
        pf += f"    v_add_u32 v22, {i*14336}, v20\n    v_mul_hi_u32 v23, v22, s53\n    v_mul_u32_u24 v24, {upr}, v23\n    v_sub_u32 v24, v22, v24\n"
        pf += f"    v_mul_u32_u24 v24, {gran}, v24\n    s_lshl_b32 s55, s54, 8\n    v_add_u32 v24, s55, v24\n"
        pf += f"    v_cmp_le_u32 vcc, 3840, v24\n    v_subrev_u32 v25, 3840, v24\n    v_add_u32 v25, {640*3840}, v25\n    s_nop 1\n    v_cndmask_b32 v24, v24, v25, vcc\n"
        pf += f"    v_mul_u32_u24 v23, 3840, v23\n    v_add_u32 v24, v24, v23\n    buffer_load_dword v{30+cnt}, v24, s[12:15], 0 offen\n"; cnt += 1
    marker = "    s_waitcnt vmcnt(%d)\n    s_barrier\n    s_memtime s[44:45]\n" % (6*(nst-1))
    assert marker in s
    s = s.replace(marker, pf + "    s_waitcnt vmcnt(%d)\n    s_barrier\n    s_memtime s[44:45]\n" % (6*(nst-1)+cnt))
    return s
out = '.amdgcn_target "amdgcn-amd-amdhsa--gfx950"\n'
names = []
out += gen("d2", 2); names.append("d2")
out += with_pf("p128", 128); names.append("p128")
out += with_pf("p64", 64); names.append("p64")
out += with_pf("p128m", 128, 2, 16); names.append("p128m")
out += with_pf("p64m", 64, 2, 16); names.append("p64m")
open("dma2.s","w").write(out)
open("dma2_names.txt","w").write("\n".join(names))
```

```python
import sys
def kernel(name, body, iters=2000, vgpr=128, init=""):
    return f"""
.text
.globl {name}
.p2align 8
.type {name},@function
{name}:
    s_load_dwordx2 s[4:5], s[0:1], 0
    v_mov_b32 v127, v0
    s_waitcnt lgkmcnt(0)
    s_mov_b32 s8, s4
    s_mov_b32 s9, s5
    s_mov_b32 s10, 0x100000
    s_mov_b32 s11, 0x00020000
{init}
    s_mov_b32 s12, {iters}
    s_barrier
    s_memtime s[14:15]
    s_waitcnt lgkmcnt(0)
    .p2align 6
L_{name}:
{body}
    s_sub_u32 s12, s12, 1
    s_cmp_lg_u32 s12, 0
    s_cbranch_scc1 L_{name}
    s_nop 15
    s_nop 15
    s_memtime s[16:17]
    s_waitcnt lgkmcnt(0)
    s_sub_u32 s16, s16, s14
    s_subb_u32 s17, s17, s15
    v_mov_b32 v126, s16
    s_lshl_b32 s3, s2, 12
    v_lshlrev_b32 v125, 2, v127
    v_add_u32 v125, s3, v125
    buffer_store_dword v126, v125, s[8:11], 0 offen
    s_waitcnt vmcnt(0)
    s_endpgm
.section .rodata,"a"
.p2align 6
.amdhsa_kernel {name}
  .amdhsa_next_free_vgpr {vgpr}
  .amdhsa_next_free_sgpr 102
  .amdhsa_accum_offset {vgpr}
  .amdhsa_group_segment_fixed_size 0
  .amdhsa_kernarg_size 8
  .amdhsa_user_sgpr_count 2
  .amdhsa_user_sgpr_kernarg_segment_ptr 1
  .amdhsa_system_sgpr_workgroup_id_x 1
  .amdhsa_float_denorm_mode_32 3
.end_amdhsa_kernel
.text
"""
def initv():
    s = ""
    for i in range(0, 125):
        s += f"    v_mov_b32 v{i}, 0\n"
    return s
ks = {}
ks["exp16"] = "".join(f"    v_exp_f32 v{i}, v{i+16}\n" for i in range(16))
ks["fma16"] = "".join(f"    v_fma_f32 v{i}, v{i+16}, v{i+32}, v{i+48}\n" for i in range(16))
ks["add16"] = "".join(f"    v_add_f32 v{i}, v{i+16}, v{i+32}\n" for i in range(16))
ks["cvt16"] = "".join(f"    v_cvt_pk_bf16_f32 v{i}, v{i+16}, v{i+32}\n" for i in range(16))
ks["perm16"] = "".join(f"    v_perm_b32 v{i}, v{i+16}, v{i+32}, v{i+48}\n" for i in range(16))
ks["pkmul16"] = "".join(f"    v_pk_mul_f32 v[{2*i}:{2*i+1}], v[{32+2*i}:{33+2*i}], v[{64+2*i}:{65+2*i}]\n" for i in range(16))
ks["pkfma16"] = "".join(f"    v_pk_fma_f32 v[{2*i}:{2*i+1}], v[{32+2*i}:{33+2*i}], v[{64+2*i}:{65+2*i}], v[{64+2*i}:{65+2*i}]\n" for i in range(16))
ks["exph16"] = "".join(f"    v_exp_f16 v{i}, v{i+16}\n" for i in range(16))
ks["max3_16"] = "".join(f"    v_max3_f32 v{i}, v{i+16}, v{i+32}, v{i+48}\n" for i in range(16))
def mf(d, a, b, c=None):
    c = d if c is None else c
    cs = c if isinstance(c, str) else f"v[{c}:{c+15}]"
    return f"    v_mfma_f32_32x32x16_bf16 v[{d}:{d+15}], v[{a}:{a+3}], v[{b}:{b+3}], {cs}\n"
ks["mfma4"] = mf(0,64,68)+mf(16,64,68)+mf(32,64,68)+mf(48,64,68)
ks["mfma16x4"] = "".join(f"    v_mfma_f32_16x16x32_bf16 v[{4*i}:{4*i+3}], v[64:67], v[68:71], v[{4*i}:{4*i+3}]\n" for i in range(4))
ks["mfma2b"] = "".join(f"    v_mfma_f32_32x32x4_2b_bf16 v[{32*i}:{32*i+31}], v[64:65], v[68:69], v[{32*i}:{32*i+31}]\n" for i in range(2))
def attn_body():
    s = ""
    def half(Scur, Snext, P):
        t = ""
        t += mf(Snext, 64, 68, "0")
        for i in range(0, 4): t += f"    v_exp_f32 v{80+i}, v{Scur+i}\n"
        t += mf(Snext, 72, 76)
        for i in range(4, 8): t += f"    v_exp_f32 v{80+i}, v{Scur+i}\n"
        for i in range(0, 4): t += f"    v_cvt_pk_bf16_f32 v{P+i}, v{80+2*i}, v{81+2*i}\n"
        for i in range(8, 12): t += f"    v_exp_f32 v{80+i}, v{Scur+i}\n"
        t += mf(32, 64, P)
        for i in range(12, 16): t += f"    v_exp_f32 v{80+i}, v{Scur+i}\n"
        for i in range(4, 8): t += f"    v_cvt_pk_bf16_f32 v{P+i}, v{80+2*i}, v{81+2*i}\n"
        t += "    s_nop 0\n"
        t += mf(32, 72, P+4)
        return t
    return half(0, 16, 48) + half(16, 0, 56)
ks["attn2"] = attn_body()
def mix(nexp, ncvt, nm=1):
    s = ""
    for j in range(4):
        for q in range(nm): s += mf(16*((j+q)%4), 64, 68)
        for i in range(nexp): s += f"    v_exp_f32 v{80+(i%8)}, v{96+(i%8)}\n"
        for i in range(ncvt): s += f"    v_cvt_pk_bf16_f32 v{88+(i%8)}, v{96+i%8}, v{97+i%8}\n"
    return s
ks["mix_e3"] = mix(3,0)
ks["mix_e4"] = mix(4,0)
ks["mix_e4c2"] = mix(4,2)
ks["mix_e2"] = mix(2,0)
ks["mix_c6"] = mix(0,6)
ks["mix_c8"] = mix(0,8)
ks["mix_e8c4_m2"] = mix(8,4,2)
if __name__ == "__main__":
  pass
out = '.amdgcn_target "amdgcn-amd-amdhsa--gfx950"\n'
for n, b in ks.items():
    out += kernel("k_"+n, b, init=initv())
open("valu.s", "w").write(out)
open("valu_names.txt","w").write("\n".join("k_"+n for n in ks))
```

```python
from valu_gen import kernel, initv, mf
U=8
def mk(mtxt, nexp, extra=""):
    s = ""
    for u in range(U):
        for j in range(4):
            s += mtxt(j)
            s += extra
            for i in range(nexp): s += f"    v_exp_f32 v{100+(i%8)}, v{110+(i%8)}\n"
    return s
m_acc = lambda j: f"    v_mfma_f32_32x32x16_bf16 v[{16*(j&1)}:{16*(j&1)+15}], v[64:67], v[68:71], v[{16*(j&1)}:{16*(j&1)+15}]\n"
m_sepc = lambda j: f"    v_mfma_f32_32x32x16_bf16 v[{16*(j&1)}:{16*(j&1)+15}], v[64:67], v[68:71], v[{32+16*(j&1)}:{32+16*(j&1)+15}]\n"
ks = {}
for ne in (4, 6):
    ks[f"acc_e{ne}"] = mk(m_acc, ne)
    ks[f"sepc_e{ne}"] = mk(m_sepc, ne)
    ks[f"acc_e{ne}_rd128"] = mk(m_acc, ne, "    ds_read_b128 v[80:83], v120\n")
    ks[f"acc_e{ne}_rd64"] = mk(m_acc, ne, "    ds_read_b64 v[80:81], v120\n")
    ks[f"acc_e{ne}_rd128x2"] = mk(m_acc, ne, "    ds_read_b128 v[80:83], v120\n    ds_read_b128 v[84:87], v120 offset:1024\n")
    ks[f"acc_e{ne}_wait"] = mk(m_acc, ne, "    s_waitcnt lgkmcnt(0)\n")
    ks[f"acc_e{ne}_smov"] = mk(m_acc, ne, "    s_mov_b32 s20, 0\n")
out = '.amdgcn_target "amdgcn-amd-amdhsa--gfx950"\n'
init = initv() + "    v_and_b32 v120, 63, v127\n    v_lshlrev_b32 v120, 4, v120\n"
for n,b in ks.items(): out += kernel("k_"+n, b, init=init, iters=300, vgpr=128)
open("iss2.s","w").write(out)
open("iss2_names.txt","w").write("\n".join("k_"+n for n in ks))
```

```python
NAME = "recurrent_scan__softmax_full_mha__dense_activation_relu__prompt"
S, D, H, DH, FF = 2048, 640, 32, 20, 1536
QF_OFF  = 0x0
KF_OFF  = 0x280000
VF_OFF  = 0x500000
HF_OFF  = 0x780000
W2F_OFF = 0xD80000
WOF_OFF = 0xF60000
OF_OFF  = 0x1028000
G_OFF   = 0x12A8000
STA_OFF = 0x1528000
FLG_OFF = 0x1530000
WS_SIZE = 0x1600000
QSCALE = (DH ** -0.5) * 1.4426950408889634
import struct, os
E = os.environ.get
def f2u(x): return struct.unpack("<I", struct.pack("<f", x))[0]
def hexf(x): return "0x%08x" % f2u(x)
def _is_lit(t):
    t = t.strip()
    try:
        v = int(t, 0)
    except ValueError:
        return False
    return not (-16 <= v <= 64)
class Asm:
    def __init__(self): self.lines = []
    def __call__(self, text):
        for l in text.strip("\n").split("\n"):
            l = l.strip()
            if not l: continue
            if l.startswith("s_cselect_b32"):
                d, x, y = [t.strip() for t in l[len("s_cselect_b32"):].split(",")]
                if _is_lit(x) and _is_lit(y):
                    self.lines.append(f"    s_mov_b32 {d}, {y}")
                    l = f"s_cselect_b32 {d}, {x}, {d}"
            self.lines.append(("" if l.endswith(":") else "    ") + l)
    def raw(self, text): self.lines.append(text)
    def text(self): return "\n".join(self.lines) + "\n"
def vr(a, n=1): return f"v{a}" if n == 1 else f"v[{a}:{a+n-1}]"
def sr(a, n=1): return f"s{a}" if n == 1 else f"s[{a}:{a+n-1}]"
def mfma(d, a, b, c=None):
    cs = vr(d, 16) if c is None else (c if isinstance(c, str) else vr(c, 16))
    return f"v_mfma_f32_32x32x16_bf16 {vr(d,16)}, {vr(a,4)}, {vr(b,4)}, {cs}"
def mfma8(d, a, b, c=None):
    cs = vr(d, 16) if c is None else (c if isinstance(c, str) else vr(c, 16))
    return f"v_mfma_f32_32x32x8bf16_1k {vr(d,16)}, {vr(a,2)}, {vr(b,2)}, {cs}"
def srd(a, base_lo, base_hi, size):
    return f"""s_mov_b32 s{a}, {base_lo}
s_mov_b32 s{a+1}, {base_hi}
s_mov_b32 s{a+2}, {size}
s_mov_b32 s{a+3}, 0x00020000"""
def kernel_head(name):
    return f""".text
.globl {name}
.p2align 8
.type {name},@function
{name}:"""
def kernel_desc(name, vgpr, sgpr=96, accum=None):
    accum = accum or ((vgpr + 3) // 4 * 4)
    return f""".section .rodata,"a"
.p2align 6
.amdhsa_kernel {name}
  .amdhsa_next_free_vgpr {vgpr}
  .amdhsa_next_free_sgpr {sgpr}
  .amdhsa_accum_offset {accum}
  .amdhsa_group_segment_fixed_size 0
  .amdhsa_kernarg_size 72
  .amdhsa_user_sgpr_count 2
  .amdhsa_user_sgpr_kernarg_segment_ptr 1
  .amdhsa_system_sgpr_workgroup_id_x 1
  .amdhsa_float_denorm_mode_32 3
.end_amdhsa_kernel
.text"""
DIAG = int(E("DIAG", "0"))
DIAG_OFF = 0x2000000
def stamp(i):
    if not DIAG: return ""
    t = f"s_memtime s[{64+2*i}:{65+2*i}]\n"
    if i == 0: t += "s_memrealtime s[80:81]\n"
    t += "s_waitcnt lgkmcnt(0)\n"
    return t
def stamp_flush(kidx, n, srd_base):
    if not DIAG: return ""
    t = "s_waitcnt vmcnt(0)\ns_memrealtime s[82:83]\ns_waitcnt lgkmcnt(0)\n"
    t += "s_mov_b64 exec, -1\n"
    t += f"v_lshrrev_b32 v1, 6, v0\ns_lshl_b32 s3, s2, 4\nv_add_u32 v1, s3, v1\nv_lshlrev_b32 v1, 6, v1\n"
    t += f"s_mov_b32 s3, {DIAG_OFF + kidx*0x40000}\n"
    t += f"s_mov_b32 s{srd_base+2}, 0x3000000\n"
    for i in range(n):
        t += f"s_sub_u32 s84, s{64+2*i}, s64\nv_mov_b32 v2, s84\nbuffer_store_dword v2, v1, s[{srd_base}:{srd_base+3}], s3 offen offset:{4*i}\n"
    t += f"v_mov_b32 v2, s80\nbuffer_store_dword v2, v1, s[{srd_base}:{srd_base+3}], s3 offen offset:56\n"
    t += f"v_mov_b32 v2, s82\nbuffer_store_dword v2, v1, s[{srd_base}:{srd_base+3}], s3 offen offset:60\ns_waitcnt vmcnt(0)\n"
    return t
```

```python
from common import *
PSTR = 656
PBUF = 32 * PSTR
class VmQ:
    def __init__(self): self.q = []
    def issue(self, tag, n=1): self.q += [tag] * n
    def wait(self, tag):
        if tag not in self.q: return ""
        last = max(i for i, t in enumerate(self.q) if t == tag)
        n = len(self.q) - 1 - last
        self.q = self.q[last+1:]
        return f"s_waitcnt vmcnt({n})\n"
def gemm_loads(f, vL16, vL16b, srd, sA, sB):
    t = f"buffer_load_dwordx4 {vr(f,4)}, v{vL16}, s[{srd}:{srd+3}], s{sA} offen\n"
    for k in range(4): t += f"buffer_load_dwordx4 {vr(f+4+4*k,4)}, v{vL16}, s[{srd}:{srd+3}], s{sB} offen offset:{k*1024}\n"
    t += f"buffer_load_dwordx4 {vr(f+20,4)}, v{vL16b}, s[{srd}:{srd+3}], s{sB} offen\n"
    t += f"s_add_u32 s{sA}, s{sA}, 1024\ns_add_u32 s{sB}, s{sB}, {20*1024}\n"
    return t
def gemm_comp(f, ACC, first):
    return "".join(mfma(ACC[k], f+4+4*k, f, "0" if first else None) + "\n" for k in range(5))
def partial_write(ACC, vLane, sWv, sT0, base, vt=4):
    t = f"""
    v_and_b32 v{vt}, 31, v{vLane}
    v_lshrrev_b32 v{vt+1}, 5, v{vLane}
    v_mul_u32_u24 v{vt}, {PSTR}, v{vt}
    v_lshl_add_u32 v{vt}, v{vt+1}, 4, v{vt}
    s_mul_i32 s{sT0}, s{sWv}, {PBUF}
    s_add_u32 s{sT0}, s{sT0}, {base}
    v_add_u32 v{vt}, s{sT0}, v{vt}
    s_nop 6
    """
    for f in range(5):
        for i in range(4):
            t += f"ds_write_b128 v{vt}, {vr(ACC[f]+4*i,4)} offset:{(32*f+8*i)*4}\n"
    return t
def unit_addr(vTid, base, vL=6, vG=7):
    return f"""
    v_lshrrev_b32 v4, 3, v{vTid}
    v_and_b32 v5, 7, v{vTid}
    v_mul_u32_u24 v{vL}, {PSTR}, v4
    v_lshl_add_u32 v{vL}, v5, 4, v{vL}
    v_add_u32 v{vL}, {base}, v{vL}
    v_mul_u32_u24 v{vG}, 1280, v4
    v_lshl_add_u32 v{vG}, v5, 3, v{vG}
    """
def reduce(dst, vL=6, tmp=24):
    t = ""
    for i in range(5):
        for w in range(4): t += f"ds_read_b128 {vr(tmp+16*i+4*w,4)}, v{vL} offset:{w*PBUF+128*i}\n"
        if i == 2: t += "s_waitcnt lgkmcnt(8)\n"
    for i in range(5):
        b = tmp + 16*i; d = dst + 4*i
        t += f"s_waitcnt lgkmcnt({min(15, 4*(4-i))})\n" if i >= 1 else "s_waitcnt lgkmcnt(8)\n"
        for e in range(4):
            t += f"v_add_f32 v{b+e}, v{b+e}, v{b+4+e}\nv_add_f32 v{b+8+e}, v{b+8+e}, v{b+12+e}\n"
        for e in range(4): t += f"v_add_f32 v{d+e}, v{b+e}, v{b+8+e}\n"
    return t
```

```python
from common import *
CSL = 147456
K1_LDS = CSL + 512
XS, WS0 = 32768, 98304
ST = {"0": "", "1": " sc0 sc1", "2": " nt", "3": " sc1", "4": " sc0 sc1 nt"}[E("WT", "1")]
def k1(name):
    a = Asm()
    a(kernel_head(name))
    sW, sTB, sCT, sLD, sXB, sWB, sM0X, sKS, sST, sT0, sT1, sCur = 32,33,34,35,36,37,38,39,40,41,42,43
    sScale, sWM, sWN, sFA, sDX, sDW, sXG, sWG, sP, sLD6, sMX, sMW = 45,46,47,48,49,50,51,52,53,54,60,61
    DBG = 56
    vLane = 1
    vXD, vWD = 194, 198
    vXA, vWA = 4, 8
    vCs, vTmp = 12, 14
    vEA = 16
    vAB = 24
    vPoll, vPollA = 28, 29
    FR = [32, 48]
    ACC = lambda ft, tt: 64 + (ft*2+tt)*16
    VST = 128
    a(f"""
    s_cmp_ge_u32 s2, 256
    s_cbranch_scc1 L_{name}_exit
    """)
    a(stamp(0))
    a(f"""
    s_load_dwordx4 s[4:7], s[0:1], 0
    s_load_dwordx2 s[8:9], s[0:1], 16
    s_load_dwordx4 s[12:15], s[0:1], 32
    s_load_dwordx2 s[16:17], s[0:1], 64
    s_load_dwordx2 s[18:19], s[0:1], 56
    v_lshrrev_b32 v2, 6, v0
    v_and_b32 v{vLane}, 63, v0
    v_readfirstlane_b32 s{sW}, v2
    s_and_b32 s{sT0}, s2, 7
    s_lshr_b32 s{sT1}, s2, 3
    s_and_b32 s{sKS}, s{sT1}, 3
    s_and_b32 s3, s{sT0}, 1
    s_lshl_b32 s3, s3, 2
    s_add_u32 s{sTB}, s{sKS}, s3
    s_lshr_b32 s{sCT}, s{sT0}, 1
    s_mul_i32 s{sCT}, s{sCT}, 7
    s_lshr_b32 s3, s{sT1}, 2
    s_add_u32 s{sCT}, s{sCT}, s3
    s_cmp_ge_u32 s3, 7
    s_cbranch_scc1 L_{name}_spare
    s_cmp_ge_u32 s{sCT}, 27
    s_cbranch_scc1 L_{name}_spare
    """)
    rot = E("ROT", "0")
    if rot == "1":
        a(f"""
        s_mul_i32 s3, s3, 3
        s_mul_i32 s{sKS}, s{sKS}, 5
        s_lshr_b32 s{sKS}, s{sKS}, 1
        s_add_u32 s{sKS}, s{sKS}, s3
        s_cmp_ge_u32 s{sKS}, 20
        s_cselect_b32 s3, 20, 0
        s_sub_u32 s{sKS}, s{sKS}, s3
        s_cmp_ge_u32 s{sKS}, 10
        s_cselect_b32 s3, 10, 0
        s_sub_u32 s{sKS}, s{sKS}, s3
        """)
    elif rot == "2":
        a(f"""
        s_add_u32 s3, s3, s{sKS}
        s_and_b32 s3, s3, 1
        s_mul_i32 s{sKS}, s3, 5
        """)
    else:
        a(f"s_mov_b32 s{sKS}, 0")
    a(f"""
    s_cmp_ge_u32 s{sCT}, 15
    s_cselect_b32 s{sLD}, 3072, 3840
    s_cselect_b32 s3, 15, 0
    s_sub_u32 s3, s{sCT}, s3
    s_lshl_b32 s{sWB}, s3, 8
    s_mul_i32 s{sXB}, s{sTB}, {256*1280}
    s_lshl_b32 s{sM0X}, s{sW}, 10
    s_lshl_b32 s{sLD6}, s{sLD}, 6
    s_and_b32 s{sWM}, s{sW}, 3
    s_lshr_b32 s{sWN}, s{sW}, 2
    s_and_b32 s{sFA}, s{sW}, 1
    s_lshr_b32 s{sP}, s{sWM}, 1
    v_lshrrev_b32 v12, 4, v{vLane}
    s_lshl_b32 s3, s{sW}, 2
    v_add_u32 v13, s3, v12
    v_xor_b32 v5, v13, v{vLane}
    v_and_b32 v5, 7, v5
    v_lshrrev_b32 v4, 3, v{vLane}
    v_lshl_add_u32 v4, s{sW}, 3, v4
    v_mul_u32_u24 v4, 1280, v4
    v_lshl_add_u32 v{vXD}, v5, 4, v4
    v_add_u32 v{vXD+1}, {64*1280}, v{vXD}
    v_add_u32 v{vXD+2}, {128*1280}, v{vXD}
    v_add_u32 v{vXD+3}, {192*1280}, v{vXD}
    v_lshlrev_b32 v5, 2, v12
    v_xor_b32 v5, v5, v{vLane}
    v_and_b32 v5, 15, v5
    v_mul_u32_u24 v4, s{sLD}, v13
    v_lshl_add_u32 v{vWD}, v5, 4, v4
    s_lshl_b32 s3, s{sLD}, 5
    v_add_u32 v{vWD+1}, s3, v{vWD}
    v_and_b32 v192, 31, v{vLane}
    v_lshrrev_b32 v193, 5, v{vLane}
    v_bfe_u32 v14, v{vLane}, 1, 3
    s_lshl_b32 s3, s{sP}, 1
    v_add_u32 v15, s3, v193
    v_xor_b32 v14, v14, v15
    v_lshl_add_u32 v15, s{sWM}, 6, v192
    v_lshlrev_b32 v15, 7, v15
    v_lshl_add_u32 v{vXA}, v14, 4, v15
    v_xor_b32 v{vXA+1}, 32, v{vXA}
    v_xor_b32 v{vXA+2}, 64, v{vXA}
    v_xor_b32 v{vXA+3}, 0x60, v{vXA}
    v_bfe_u32 v14, v{vLane}, 2, 2
    v_lshl_add_u32 v15, v193, 3, v14
    s_lshl_b32 s{sT0}, s{sP}, 4
    v_add_u32 v15, s{sT0}, v15
    s_lshl_b32 s3, s{sWN}, 1
    s_add_u32 s3, s3, s{sFA}
    v_xor_b32 v14, s3, v14
    v_lshlrev_b32 v14, 6, v14
    v_lshl_add_u32 v15, v15, 8, v14
    v_and_b32 v14, 1, v12
    v_lshl_add_u32 v15, v14, 5, v15
    v_and_b32 v14, 3, v{vLane}
    v_lshl_add_u32 v15, v14, 3, v15
    v_add_u32 v{vWA}, {WS0}, v15
    v_xor_b32 v{vWA+1}, 0x1000, v{vWA}
    v_xor_b32 v{vWA+2}, 64, v{vWA}
    v_xor_b32 v{vWA+3}, 0x1040, v{vWA}
    v_and_b32 v14, 127, v0
    v_lshlrev_b32 v14, 2, v14
    v_add_u32 v14, {CSL}, v14
    v_mov_b32 v{vCs}, 0
    v_mov_b32 v{vCs+1}, 0
    ds_write_b32 v14, v{vCs}
    s_mov_b32 s{sST}, 0
    s_mov_b32 s{sCur}, 0
    s_mov_b32 s{sScale}, 0xffff0000
    s_waitcnt lgkmcnt(0)
    """)
    a(stamp(6))
    a(srd(20, "s4", "s5", S*D*2))
    a(f"""
    s_cmp_ge_u32 s{sCT}, 15
    s_cselect_b32 s24, s12, s6
    s_cselect_b32 s25, s13, s7
    s_cselect_b32 s26, {640*3072}, {640*3840}
    s_mov_b32 s27, 0x00020000
    v_mov_b32 v{vPollA}, 0
    v_mov_b32 v{vEA}, 0
    v_mov_b32 v{vEA+1}, 0
    """)
    a(srd(28, "s16", "s17", WS_SIZE))
    a(srd(DBG, "s18", "s19", 256))
    def issue_pre():
        t = f"s_lshl_b32 s{sXG}, s{sKS}, 7\ns_add_u32 s{sXG}, s{sXG}, s{sXB}\n"
        t += f"s_mul_i32 s{sWG}, s{sLD6}, s{sKS}\ns_add_u32 s{sWG}, s{sWG}, s{sWB}\n"
        t += f"s_add_u32 s{sKS}, s{sKS}, 1\ns_cmp_ge_u32 s{sKS}, 10\ns_cselect_b32 s{sKS}, 0, s{sKS}\n"
        return t
    def dma_m0(i): return f"s_add_u32 m0, s{sMX}, {i*8192}\n" if i < 4 else f"s_add_u32 m0, s{sMW}, {(i-4)*8192}\n"
    def dma_ld(i):
        if i < 4: return f"buffer_load_dwordx4 v{vXD+i}, s[20:23], s{sXG} offen lds\n"
        return f"buffer_load_dwordx4 v{vWD+i-4}, s[24:27], s{sWG} offen lds\n"
    def issue():
        t = issue_pre()
        for i in range(6): t += dma_m0(i) + "s_nop 0\n" + dma_ld(i)
        return t
    def slot_m0(slot_sgpr=None, slot=None):
        if slot is not None:
            return f"s_add_u32 s{sMX}, s{sM0X}, {slot*XS}\ns_add_u32 s{sMW}, s{sM0X}, {WS0+slot*16384}\n"
        return (f"s_lshl_b32 s{sMX}, s{slot_sgpr}, 15\ns_add_u32 s{sMX}, s{sMX}, s{sM0X}\n"
                f"s_lshl_b32 s{sMW}, s{slot_sgpr}, 14\ns_add_u32 s{sMW}, s{sMW}, s{sM0X}\ns_add_u32 s{sMW}, s{sMW}, {WS0}\n")
    if E("PF", "0") != "0":
        PF0 = int(E("PF0", "3"))
        a(f"""
        s_add_u32 s{sT0}, s{sW}, {PF0}
        s_cmp_ge_u32 s{sT0}, 10
        s_cbranch_scc1 L_{name}_nopf
        s_lshr_b32 s{sT1}, s2, 3
        s_mul_i32 s3, s{sT1}, 37
        v_add_u32 v14, s3, v{vLane}
        v_min_u32 v14, 0x3ff, v14
        s_and_b32 s3, s2, 1
        s_lshl_b32 s3, s3, 10
        v_add_u32 v14, s3, v14
        v_mul_u32_u24 v14, 1280, v14
        s_lshl_b32 s3, s{sT0}, 7
        s_mov_b32 exec_hi, 0x1f
        buffer_load_dword v30, v14, s[20:23], s3 offen
        s_mov_b64 exec, 0xffffffff
        s_lshl_b32 s3, s{sT1}, 5
        v_add_u32 v14, s3, v{vLane}
        v_mul_u32_u24 v15, 4682, v14
        v_lshrrev_b32 v15, 16, v15
        v_mul_u32_u24 v18, 14, v15
        v_sub_u32 v14, v14, v18
        s_lshl_b32 s3, s{sT0}, 6
        v_add_u32 v15, s3, v15
        s_bfe_u32 s3, s2, 0x20001
        s_mul_i32 s3, s3, 14
        v_add_u32 v14, s3, v14
        v_min_u32 v14, 53, v14
        v_lshlrev_b32 v14, 7, v14
        v_cmp_gt_u32 vcc, 3840, v14
        v_mul_u32_u24 v18, 3840, v15
        v_mul_u32_u24 v19, 3072, v15
        v_add_u32 v18, v18, v14
        v_add_u32 v19, v19, v14
        v_subrev_u32 v19, 3840, v19
        v_cndmask_b32 v18, v19, v18, vcc
        v_mov_b32 v20, s12
        v_mov_b32 v21, s13
        v_mov_b32 v22, s6
        v_mov_b32 v23, s7
        v_cndmask_b32 v20, v20, v22, vcc
        v_cndmask_b32 v21, v21, v23, vcc
        v_add_co_u32 v20, vcc, v20, v18
        s_nop 1
        v_addc_co_u32 v21, vcc, 0, v21, vcc
        global_load_dword v31, v[20:21], off
        s_mov_b64 exec, -1
        L_{name}_nopf:
        """)
    NPRE = int(E("NPRE", "2"))
    a(f"L_{name}_pre:")
    a(slot_m0(slot_sgpr=sCur)); a(issue())
    a(f"""
    s_add_u32 s{sCur}, s{sCur}, 1
    s_cmp_lt_u32 s{sCur}, {NPRE}
    {"s_barrier" if E("PBAR", "1") == "1" else "s_nop 0"}
    s_cbranch_scc1 L_{name}_pre
    """)
    if NPRE == 2: a(slot_m0(slot_sgpr=sCur) + issue_pre())
    a(f"s_mov_b32 s{sCur}, 0")
    a(stamp(7))
    def late_setup(orient):
        t = f"""
        s_lshl_b32 s{sT0}, s{sTB}, 2
        v_mov_b32 v{vPollA}, s{sT0}
        """
        if orient == 1:
            t += f"""
            s_mov_b32 s{sT1}, 52429
            s_sub_u32 s3, s{sCT}, 10
            s_lshl_b32 s3, s3, 7
            s_lshl_b32 s{sT0}, s{sWN}, 6
            s_add_u32 s3, s3, s{sT0}
            v_mul_u32_u24 v24, 320, v193
            """
            for ft in range(2):
                t += f"""
                s_xor_b32 s{sT0}, s{sFA}, {ft}
                s_lshl_b32 s{sT0}, s{sT0}, 5
                s_add_u32 s{sT0}, s{sT0}, s3
                v_add_u32 v30, s{sT0}, v192
                v_mul_u32_u24 v31, s{sT1}, v30
                v_lshrrev_b32 v31, 20, v31
                v_mul_u32_u24 v25, 20, v31
                v_sub_u32 v25, v30, v25
                v_mul_u32_u24 v31, {128*640}, v31
                v_lshl_add_u32 v31, v25, 4, v31
                v_add_u32 v{vEA+ft}, v31, v24
                """
        return t
    def reads(s, fs):
        if E("NOREAD"): return [""] * 6
        b = FR[fs]
        t = [f"ds_read_b128 {vr(b,4)}, v{vXA+s}\n", f"ds_read_b128 {vr(b+4,4)}, v{vXA+s} offset:4096\n"]
        for ft in range(2):
            o = (s >> 1) * 8192
            t.append(f"ds_read_b64_tr_b16 {vr(b+8+ft*4,2)}, v{vWA+ft*2+(s&1)} offset:{o}\n")
            t.append(f"ds_read_b64_tr_b16 {vr(b+10+ft*4,2)}, v{vWA+ft*2+(s&1)} offset:{o+1024}\n")
        return t
    def compute(s, fs, orient, zero=False, rd=None, extra=None):
        b = FR[fs]; X = [b, b+4]; W = [b+8, b+12]
        t = ""; k = 0
        for ft in range(2):
            for tt in range(2):
                c = "0" if zero else None
                if orient == 0: t += mfma(ACC(ft,tt), W[ft], X[tt], c) + "\n"
                else: t += mfma(ACC(ft,tt), X[tt], W[ft], c) + "\n"
                if extra: t += extra[k]
                elif rd and k < 3: t += rd[2*k] + rd[2*k+1]
                if (s & 1) == 0 and not E("NOCS"):
                    t += f"v_lshlrev_b32 v{vTmp}, 16, v{W[0]+k}\nv_and_b32 v{vTmp+1}, s{sScale}, v{W[0]+k}\n"
                    t += f"v_add_f32 v{vCs}, v{vCs}, v{vTmp}\nv_add_f32 v{vCs+1}, v{vCs+1}, v{vTmp+1}\n"
                k += 1
        return t
    def dma_extra(rd):
        return [dma_m0(0) + rd[0] + dma_ld(0) + dma_m0(1) + rd[1] + dma_ld(1),
                dma_m0(2) + rd[2] + dma_ld(2) + dma_m0(3) + rd[3] + dma_ld(3),
                dma_m0(4) + rd[4] + dma_ld(4) + dma_m0(5) + rd[5] + dma_ld(5), ""]
    a(f"""
    s_waitcnt vmcnt({6*(NPRE-1)})
    s_barrier
    """)
    a(stamp(1))
    a("".join(reads(0, 0)))
    a(f"""
    s_cmp_ge_u32 s{sCT}, 10
    s_cbranch_scc0 L_{name}_ent0
    s_cmp_lt_u32 s{sCT}, 15
    s_cbranch_scc1 L_{name}_ent1
    """)
    def rotate_s():
        return f"""s_cmp_eq_u32 s{sCur}, 2
        s_cselect_b32 s{sDX}, {-2*XS & 0xffffffff}, {XS}
        s_cselect_b32 s{sDW}, {-2*16384 & 0xffffffff}, 16384
        s_cselect_b32 s{sCur}, -1, s{sCur}
        s_add_u32 s{sCur}, s{sCur}, 1
        """
    def rotate_v(lo, hi):
        t = ""
        for r in range(lo, hi):
            t += f"v_add_u32 v{vXA+r}, s{sDX}, v{vXA+r}\nv_add_u32 v{vWA+r}, s{sDW}, v{vWA+r}\n"
        return t
    for orient in range(2):
        L = f"L_{name}_loop{orient}"
        a(f"L_{name}_ent{orient}:")
        a("s_waitcnt lgkmcnt(0)")
        if NPRE == 2: a(compute(0, 0, orient, zero=True, extra=dma_extra(reads(1, 1))))
        else: a(compute(0, 0, orient, zero=True, rd=reads(1, 1)))
        a(f"s_branch {L}_k1")
        a(f"{L}:")
        a("s_waitcnt lgkmcnt(0)")
        a(compute(0, 0, orient, rd=reads(1, 1)))
        a(f"{L}_k1:")
        a("s_waitcnt lgkmcnt(0)")
        r2 = reads(2, 0)
        a(compute(1, 1, orient, extra=[r2[0] + r2[1] + slot_m0(slot_sgpr=sCur), r2[2] + r2[3] + issue_pre(), r2[4] + r2[5] + rotate_s(), ""]))
        a("s_waitcnt lgkmcnt(0)")
        r3 = reads(3, 1)
        a(compute(2, 0, orient, extra=[r3[0] + r3[1], r3[2] + r3[3], r3[4] + r3[5], rotate_v(0, 4)]))
        a(f"""
        s_cmp_ge_u32 s{sST}, 7
        s_cbranch_scc1 {L}_tail
        s_waitcnt vmcnt(6) lgkmcnt(0)
        s_barrier
        """)
        a(compute(3, 1, orient, extra=dma_extra(reads(0, 0))))
        a(f"""
        s_add_u32 s{sST}, s{sST}, 1
        s_branch {L}
        {L}_tail:
        s_cmp_ge_u32 s{sST}, 9
        s_cbranch_scc1 {L}_last
        s_cmp_ge_u32 s{sST}, 8
        s_cbranch_scc1 {L}_w0
        s_waitcnt vmcnt(6) lgkmcnt(0)
        s_barrier
        """)
        a(late_setup(orient))
        a(f"""
        buffer_load_dword v{vPoll}, v{vPollA}, s[{DBG}:{DBG+3}], 0 offen sc1
        s_branch {L}_go
        {L}_w0:
        s_waitcnt vmcnt(0) lgkmcnt(0)
        s_barrier
        s_mov_b32 s{sT1}, 0
        {L}_spin:
        v_readfirstlane_b32 s{sT0}, v{vPoll}
        s_add_u32 s{sT1}, s{sT1}, 1
        s_cmp_ge_u32 s{sT0}, {0 if E("NOSPARE") else 4}
        s_cbranch_scc1 {L}_got
        s_cmp_ge_u32 s{sT1}, 0x40000
        s_cbranch_scc1 {L}_got
        s_sleep 2
        buffer_load_dword v{vPoll}, v{vPollA}, s[{DBG}:{DBG+3}], 0 offen sc1
        s_waitcnt vmcnt(0)
        s_branch {L}_spin
        {L}_got:
        s_lshl_b32 s{sT0}, s{sTB}, 10
        s_lshl_b32 s{sT1}, s{sWM}, 8
        s_add_u32 s{sT0}, s{sT0}, s{sT1}
        s_add_u32 s{sT0}, s{sT0}, {STA_OFF}
        s_add_u32 s{sT1}, s{sT0}, 8192
        """)
        if orient == 0:
            a(f"""
            v_lshlrev_b32 v30, 2, v192
            buffer_load_dword v{vAB}, v30, s[28:31], s{sT0} offen sc1
            buffer_load_dword v{vAB+1}, v30, s[28:31], s{sT1} offen sc1
            buffer_load_dword v{vAB+2}, v30, s[28:31], s{sT0} offen offset:128 sc1
            buffer_load_dword v{vAB+3}, v30, s[28:31], s{sT1} offen offset:128 sc1
            """)
        else:
            a("v_lshlrev_b32 v30, 4, v193")
            for tt in range(2):
                for i in range(4):
                    a(f"buffer_load_dwordx4 {vr(VST+32*tt+4*i,4)}, v30, s[28:31], s{sT0} offen offset:{tt*128+i*32} sc1")
                    a(f"buffer_load_dwordx4 {vr(VST+32*tt+16+4*i,4)}, v30, s[28:31], s{sT1} offen offset:{tt*128+i*32} sc1")
        a(f"{L}_go:")
        a(compute(3, 1, orient, rd=reads(0, 0)))
        a(f"""
        s_add_u32 s{sST}, s{sST}, 1
        s_branch {L}
        {L}_last:
        s_waitcnt lgkmcnt(0)
        """)
        a(compute(3, 1, orient))
        if orient == 0: a(f"s_branch L_{name}_stats")
    a(f"L_{name}_stats:")
    a(stamp(2))
    a(f"""
    v_add_f32 v{vCs}, v{vCs}, v{vCs+1}
    v_mov_b32 v{vTmp}, v{vCs}
    s_lshl_b32 s{sT0}, s{sWN}, 6
    s_lshl_b32 s{sT1}, s{sFA}, 5
    s_add_u32 s{sT0}, s{sT0}, s{sT1}
    v_mov_b32 v13, v{vCs}
    s_nop 1
    v_permlane32_swap_b32 v13, v{vTmp}
    v_add_u32 v30, s{sT0}, v192
    v_lshlrev_b32 v30, 2, v30
    v_add_u32 v30, {CSL}, v30
    v_add_f32 v13, v13, v{vTmp}
    s_mov_b64 exec, 0xffffffff
    ds_add_f32 v30, v13
    s_mov_b64 exec, -1
    s_lshl_b32 s{sT0}, s{sTB}, 3
    s_lshl_b32 s{sT1}, s{sWM}, 1
    s_add_u32 s{sST}, s{sT0}, s{sT1}
    s_waitcnt lgkmcnt(0)
    s_barrier
    """)
    a(stamp(3))
    a(f"""
    s_cmp_ge_u32 s{sCT}, 10
    s_cbranch_scc0 L_{name}_epiT
    s_cmp_lt_u32 s{sCT}, 15
    s_cbranch_scc1 L_{name}_epiV
    L_{name}_epiT:
    s_lshl_b32 s{sT0}, s{sWN}, 8
    v_lshlrev_b32 v30, 4, v193
    v_add_u32 v30, s{sT0}, v30
    v_add_u32 v30, {CSL}, v30
    s_lshl_b32 s{sT0}, s{sFA}, 7
    v_add_u32 v31, s{sT0}, v30
    s_xor_b32 s{sT0}, s{sT0}, 128
    v_add_u32 v30, s{sT0}, v30
    """)
    for i in range(4): a(f"ds_read_b128 {vr(32+4*i,4)}, v31 offset:{i*32}")
    for i in range(4): a(f"ds_read_b128 {vr(48+4*i,4)}, v30 offset:{i*32}")
    def norm_pair_tok(accreg, csreg, ab, tmp):
        return (f"v_pk_mul_f32 {vr(tmp,2)}, {vr(csreg,2)}, {vr(ab,2)} op_sel:[0,1] op_sel_hi:[1,1]\n"
                f"v_pk_fma_f32 {vr(accreg,2)}, {vr(accreg,2)}, {vr(ab,2)}, {vr(tmp,2)} op_sel:[0,0,0] op_sel_hi:[1,0,1]\n")
    a(f"""
    s_cmp_lt_u32 s{sCT}, 5
    s_cselect_b32 s{sScale}, {hexf(QSCALE)}, 1.0
    s_cselect_b32 s{sXG}, {QF_OFF}, {KF_OFF}
    s_cselect_b32 s3, 0, 5
    s_sub_u32 s3, s{sCT}, s3
    s_lshl_b32 s3, s3, 4
    s_lshl_b32 s{sT0}, s{sWN}, 3
    s_add_u32 s3, s3, s{sT0}
    s_mul_i32 s{sT0}, s{sST}, 80
    s_add_u32 s3, s3, s{sT0}
    s_lshl_b32 s3, s3, 9
    s_add_u32 s{sXG}, s{sXG}, s3
    v_lshlrev_b32 v{vEA}, 4, v192
    v_lshl_add_u32 v{vEA}, v193, 9, v{vEA}
    s_waitcnt vmcnt(0)
    """)
    for r in range(4): a(f"v_mul_f32 v{vAB+r}, s{sScale}, v{vAB+r}")
    a(f"""
    s_cmp_ge_u32 s{sCT}, 15
    s_cbranch_scc1 L_{name}_epiH
    s_waitcnt lgkmcnt(0)
    """)
    for ft in range(2):
        for tt in range(2):
            ab = vAB + 2*tt
            a(f"""
            s_xor_b32 s{sT0}, s{sFA}, {ft}
            s_lshl_b32 s{sT0}, s{sT0}, 11
            s_add_u32 s{sT0}, s{sT0}, s{sXG}
            """)
            if tt: a(f"s_add_u32 s{sT0}, s{sT0}, {80*512}")
            for half in range(2):
                A0 = ACC(ft,tt) + 8*half
                for i in range(2):
                    A = A0 + 4*i; C = 32 + ft*16 + 8*half + 4*i
                    a(norm_pair_tok(A, C, ab, 28)); a(norm_pair_tok(A+2, C+2, ab, 30))
                for p in range(4): a(f"v_cvt_pk_bf16_f32 v{A0+p}, v{A0+2*p}, v{A0+2*p+1}")
                a(f"s_nop 0\nv_permlane32_swap_b32 v{A0}, v{A0+2}\nv_permlane32_swap_b32 v{A0+1}, v{A0+3}")
                a(f"buffer_store_dwordx4 {vr(A0,4)}, v{vEA}, s[28:31], s{sT0} offen offset:{half*1024}{ST}")
    a(f"s_branch L_{name}_end")
    a(f"L_{name}_epiH:")
    a(f"""
    s_mul_i32 s{sT0}, s{sST}, 96
    s_sub_u32 s3, s{sCT}, 15
    s_lshl_b32 s3, s3, 3
    s_add_u32 s{sT0}, s{sT0}, s3
    s_lshl_b32 s3, s{sWN}, 2
    s_add_u32 s{sT0}, s{sT0}, s3
    s_lshl_b32 s{sT0}, s{sT0}, 10
    s_add_u32 s{sXG}, s{sT0}, {HF_OFF}
    v_lshlrev_b32 v4, 4, v{vLane}
    s_waitcnt lgkmcnt(0)
    """)
    for ft in range(2):
        for tt in range(2):
            ab = vAB + 2*tt
            a(f"""
            s_xor_b32 s{sT0}, s{sFA}, {ft}
            s_lshl_b32 s{sT0}, s{sT0}, 11
            s_add_u32 s{sT0}, s{sT0}, s{sXG}
            s_add_u32 s{sT0}, s{sT0}, {tt*96*1024}
            """)
            for half in range(2):
                A0 = ACC(ft,tt) + 8*half
                for i in range(2):
                    A = A0 + 4*i; C = 32 + ft*16 + 8*half + 4*i
                    a(norm_pair_tok(A, C, ab, 28)); a(norm_pair_tok(A+2, C+2, ab, 30))
                for p in range(4):
                    a(f"v_cvt_pk_bf16_f32 v{A0+p}, v{A0+2*p}, v{A0+2*p+1}")
                for p in range(4):
                    a(f"v_pk_max_i16 v{A0+p}, v{A0+p}, 0")
                a(f"buffer_store_dwordx4 {vr(A0,4)}, v4, s[28:31], s{sT0} offen offset:{half*1024}{ST}")
    a(f"s_branch L_{name}_end")
    a(f"L_{name}_epiV:")
    a(f"""
    s_lshl_b32 s{sT0}, s{sWN}, 6
    v_add_u32 v30, s{sT0}, v192
    v_lshlrev_b32 v30, 2, v30
    v_add_u32 v30, {CSL}, v30
    s_lshl_b32 s{sT1}, s{sFA}, 7
    v_add_u32 v31, s{sT1}, v30
    s_xor_b32 s{sT1}, s{sT1}, 128
    v_add_u32 v30, s{sT1}, v30
    ds_read_b32 v24, v31
    ds_read_b32 v26, v30
    s_mul_i32 s{sT0}, s{sST}, 1280
    s_add_u32 s{sXG}, s{sT0}, {VF_OFF}
    s_waitcnt vmcnt(0) lgkmcnt(0)
    """)
    for tt in range(2):
        if tt == 1: a(f"s_add_u32 s{sXG}, s{sXG}, 1280")
        for ft in range(2):
            cs = 24 + 2*ft
            A0 = ACC(ft,tt)
            for p in range(8):
                A = A0 + 2*p
                tmp = 28 + 2*(p & 1)
                a(f"v_pk_mul_f32 {vr(tmp,2)}, {vr(VST+32*tt+16+2*p,2)}, {vr(cs,2)} op_sel:[0,0] op_sel_hi:[1,0]")
                a(f"v_pk_fma_f32 {vr(A,2)}, {vr(A,2)}, {vr(VST+32*tt+2*p,2)}, {vr(tmp,2)}")
            for p in range(8): a(f"v_cvt_pk_bf16_f32 v{A0+p}, v{A0+2*p}, v{A0+2*p+1}")
            a(f"buffer_store_dwordx4 {vr(A0,4)}, v{vEA+ft}, s[28:31], s{sXG} offen{ST}")
            a(f"buffer_store_dwordx4 {vr(A0+4,4)}, v{vEA+ft}, s[28:31], s{sXG} offen offset:640{ST}")
    a(f"s_branch L_{name}_end")
    a(f"L_{name}_spare:")
    if E("NOSPARE"): a(f"s_branch L_{name}_exit")
    a(f"""
    s_and_b32 s{sT0}, s2, 7
    s_lshr_b32 s{sT1}, s2, 3
    s_cmp_ge_u32 s{sT1}, 28
    s_cbranch_scc1 L_{name}_sp1
    s_sub_u32 s{sT0}, s{sT0}, 6
    s_lshl_b32 s{sT0}, s{sT0}, 2
    s_add_u32 s{sT0}, s{sT0}, s{sT1}
    s_add_u32 s{sST}, s{sT0}, 8
    s_branch L_{name}_sp2
    L_{name}_sp1:
    s_lshl_b32 s{sT0}, s{sT0}, 2
    s_add_u32 s{sT0}, s{sT0}, s{sT1}
    s_sub_u32 s{sST}, s{sT0}, 28
    L_{name}_sp2:
    v_lshrrev_b32 v4, 4, v{vLane}
    v_and_b32 v5, 15, v{vLane}
    v_mul_u32_u24 v6, 1280, v4
    v_lshl_add_u32 v6, v5, 4, v6
    s_waitcnt lgkmcnt(0)
    """)
    a(srd(28, "s16", "s17", WS_SIZE))
    a(f"""
    s_cmp_ge_u32 s{sST}, 32
    s_cbranch_scc1 L_{name}_relay
    """)
    a(srd(20, "s4", "s5", S*D*2))
    a(srd(DBG, "s18", "s19", 256))
    a(f"""
    s_lshl_b32 s{sT0}, s{sST}, 6
    s_lshl_b32 s{sT1}, s{sW}, 3
    s_add_u32 s{sT0}, s{sT0}, s{sT1}
    s_mul_i32 s{sXG}, s{sT0}, 1280
    s_add_u32 s{sWG}, s{sXG}, {4*1280}
    """)
    SPF = E("SPF", "1") == "1"
    def pf():
        if not SPF: return ""
        return "global_load_dword v24, v[20:21], off\nv_add_co_u32 v20, vcc, v22, v20\ns_nop 1\nv_addc_co_u32 v21, vcc, 0, v21, vcc\n"
    if SPF:
        a(f"""
        s_and_b32 s3, s{sST}, 3
        s_lshl_b32 s3, s3, 3
        s_add_u32 s3, s3, s{sW}
        s_cmp_ge_u32 s3, 16
        s_cbranch_scc1 L_{name}_pfw
        v_lshl_add_u32 v20, s3, 6, v{vLane}
        s_and_b32 s3, s2, 1
        s_lshl_b32 s3, s3, 10
        v_add_u32 v20, s3, v20
        v_mul_u32_u24 v20, 1280, v20
        v_add_u32 v20, {3*128}, v20
        v_mov_b32 v22, 128
        v_mov_b32 v18, s4
        v_mov_b32 v21, s5
        s_branch L_{name}_pfa
        L_{name}_pfw:
        s_sub_u32 s3, s3, 16
        s_min_u32 s3, s3, 13
        v_lshl_add_u32 v16, s3, 6, v{vLane}
        v_mul_u32_u24 v17, 4682, v16
        v_lshrrev_b32 v17, 16, v17
        v_mul_u32_u24 v18, 14, v17
        v_sub_u32 v16, v16, v18
        s_bfe_u32 s3, s2, 0x20001
        s_mul_i32 s3, s3, 14
        v_add_u32 v16, s3, v16
        v_min_u32 v16, 53, v16
        v_lshlrev_b32 v16, 7, v16
        v_add_u32 v17, {3*64}, v17
        v_cmp_gt_u32 vcc, 3840, v16
        v_mul_u32_u24 v18, 3840, v17
        v_mul_u32_u24 v19, 3072, v17
        v_add_u32 v18, v18, v16
        v_add_u32 v19, v19, v16
        v_subrev_u32 v19, 3840, v19
        v_cndmask_b32 v20, v19, v18, vcc
        v_mov_b32 v18, s12
        v_mov_b32 v21, s13
        v_mov_b32 v16, s6
        v_mov_b32 v17, s7
        v_cndmask_b32 v18, v18, v16, vcc
        v_cndmask_b32 v21, v21, v17, vcc
        v_mov_b32 v22, {64*3072}
        v_mov_b32 v16, {64*3840}
        v_cndmask_b32 v22, v22, v16, vcc
        L_{name}_pfa:
        v_add_co_u32 v20, vcc, v18, v20
        s_nop 1
        v_addc_co_u32 v21, vcc, 0, v21, vcc
        """)
        a(pf() * int(E("NPF1", "1")))
    for g in range(2):
        for i in range(5):
            a(f"buffer_load_dwordx4 {vr(32+20*g+4*i,4)}, v6, s[20:23], s{sXG if g==0 else sWG} offen offset:{i*256}")
    for g in range(2):
        a(f"s_waitcnt vmcnt({5 if g == 0 else 0})")
        su, sq = 8 + 4*g, 10 + 4*g
        a(f"v_mov_b32 v{su}, 0\nv_mov_b32 v{su+1}, 0\nv_mov_b32 v{sq}, 0\nv_mov_b32 v{sq+1}, 0")
        for r in range(20):
            x = 32 + 20*g + r; t = 16 + 2*(r & 1)
            a(f"v_lshlrev_b32 v{t}, 16, v{x}\nv_and_b32 v{t+1}, 0xffff0000, v{x}")
            a(f"v_pk_add_f32 {vr(su,2)}, {vr(su,2)}, {vr(t,2)}\nv_pk_fma_f32 {vr(sq,2)}, {vr(t,2)}, {vr(t,2)}, {vr(sq,2)}")
        a(f"v_add_f32 v{su}, v{su}, v{su+1}\nv_add_f32 v{sq}, v{sq}, v{sq+1}")
    for sh in (8, 4, 2, 1):
        a("s_nop 1")
        for r in (8, 10, 12, 14):
            a(f"v_add_f32_dpp v{r}, v{r}, v{r} row_ror:{sh} row_mask:0xf bank_mask:0xf")
    a(f"s_mov_b32 s{sT1}, {hexf(1.0/640)}")
    for g in range(2):
        su, sq = 8 + 4*g, 10 + 4*g
        a(f"""
        v_mul_f32 v{su}, s{sT1}, v{su}
        v_mul_f32 v{sq}, s{sT1}, v{sq}
        v_fma_f32 v{sq}, -v{su}, v{su}, v{sq}
        v_max_f32 v{sq}, 0, v{sq}
        v_add_f32 v{sq}, {hexf(1e-5)}, v{sq}
        v_rsq_f32 v{sq}, v{sq}
        s_nop 0
        v_mul_f32 v{su}, v{su}, v{sq}
        v_sub_f32 v{su}, 0, v{su}
        """)
    a(f"""
    v_lshlrev_b32 v7, 2, v4
    s_lshl_b32 s{sT0}, s{sT0}, 2
    s_add_u32 s{sT0}, s{sT0}, {STA_OFF}
    s_add_u32 s{sT1}, s{sT0}, 8192
    s_mov_b32 s60, 0x00010001
    s_mov_b32 s61, 0x00010001
    s_mov_b64 exec, s[60:61]
    buffer_store_dword v10, v7, s[28:31], s{sT0} offen sc0 sc1
    buffer_store_dword v8, v7, s[28:31], s{sT1} offen sc0 sc1
    buffer_store_dword v14, v7, s[28:31], s{sT0} offen offset:16 sc0 sc1
    buffer_store_dword v12, v7, s[28:31], s{sT1} offen offset:16 sc0 sc1
    s_mov_b64 exec, -1
    s_waitcnt vmcnt(0)
    s_barrier
    """)
    a(pf() * (7 - int(E("NPF1", "1"))))
    a(f"""
    s_cmp_lg_u32 s{sW}, 0
    s_cbranch_scc1 L_{name}_relay
    s_lshr_b32 s{sT0}, s{sST}, 2
    s_lshl_b32 s{sT0}, s{sT0}, 2
    v_mov_b32 v7, s{sT0}
    v_mov_b32 v8, 1
    s_mov_b64 exec, 1
    buffer_atomic_add v8, v7, s[{DBG}:{DBG+3}], 0 offen sc1
    s_mov_b64 exec, -1
    L_{name}_relay:
    s_cmp_lg_u32 s{sST}, 39
    s_cbranch_scc1 L_{name}_nz
    v_and_b32 v7, 63, v0
    v_lshlrev_b32 v7, 8, v7
    v_mov_b32 v8, 0
    s_mov_b32 s{sT0}, {FLG_OFF}
    buffer_store_dword v8, v7, s[28:31], s{sT0} offen
    L_{name}_nz:
    s_cmp_lt_u32 s{sST}, 8
    s_cbranch_scc1 L_{name}_exit
    s_sub_u32 s{sST}, s{sST}, 8
    v_lshlrev_b32 v2, 4, v{vLane}
    v_lshrrev_b32 v10, 5, v{vLane}
    v_and_b32 v5, 15, v{vLane}
    v_lshrrev_b32 v6, 2, v5
    v_and_b32 v5, 3, v5
    v_lshlrev_b32 v5, 3, v5
    v_bfe_u32 v11, v{vLane}, 4, 1
    v_lshl_add_u32 v11, v11, 5, v5
    s_lshl_b32 s{sT1}, s{sW}, 10
    s_cmp_ge_u32 s{sST}, 24
    s_cbranch_scc1 L_{name}_rwo
    """)
    a(srd(20, "s14", "s15", 1536*1280))
    a(f"s_mul_i32 s{sWG}, s{sST}, 81920")
    for j in range(10):
        a(f"""
        s_add_u32 s{sT0}, s{sT1}, {j*8192}
        s_mov_b32 m0, s{sT0}
        s_add_u32 s{sT0}, s{sT0}, s{sWG}
        buffer_load_dwordx4 v2, s[20:23], s{sT0} offen lds
        """)
    a(f"""
    v_lshl_add_u32 v4, v10, 2, v6
    v_mul_u32_u24 v4, 1280, v4
    v_add_u32 v4, v4, v11
    s_lshr_b32 s{sT0}, s{sW}, 1
    s_mul_i32 s{sT1}, s{sT0}, 20480
    s_and_b32 s{sFA}, s{sW}, 1
    s_mul_i32 s{sFA}, s{sFA}, 10
    s_lshl_b32 s{sLD}, s{sFA}, 6
    s_add_u32 s{sT1}, s{sT1}, s{sLD}
    v_add_u32 v4, s{sT1}, v4
    v_add_u32 v5, {8*1280}, v4
    s_lshl_b32 s3, s{sST}, 2
    s_add_u32 s3, s3, s{sT0}
    s_mul_i32 s3, s3, 20
    s_add_u32 s3, s3, s{sFA}
    s_lshl_b32 s3, s3, 10
    s_add_u32 s{sXG}, s3, {W2F_OFF}
    s_waitcnt vmcnt(0)
    s_barrier
    """)
    for j in range(10):
        a(f"ds_read_b64_tr_b16 {vr(32+4*j,2)}, v4 offset:{j*64}\nds_read_b64_tr_b16 {vr(34+4*j,2)}, v5 offset:{j*64}")
    a("s_waitcnt lgkmcnt(0)")
    for j in range(10):
        a(f"buffer_store_dwordx4 {vr(32+4*j,4)}, v2, s[28:31], s{sXG} offen{ST}")
        if j < 9: a(f"s_add_u32 s{sXG}, s{sXG}, 1024")
    a(f"s_branch L_{name}_exit")
    a(f"L_{name}_rwo:")
    a(srd(20, "s8", "s9", 640*1280))
    a(f"s_sub_u32 s{sST}, s{sST}, 24\ns_mul_i32 s{sWG}, s{sST}, 102400")
    for j in range(13):
        if j == 12:
            a(f"s_cmp_ge_u32 s{sW}, 4\ns_cbranch_scc1 L_{name}_rwo1")
        a(f"""
        s_add_u32 s{sT0}, s{sT1}, {j*8192}
        s_mov_b32 m0, s{sT0}
        s_add_u32 s{sT0}, s{sT0}, s{sWG}
        buffer_load_dwordx4 v2, s[20:23], s{sT0} offen lds
        """)
    a(f"L_{name}_rwo1:")
    base0 = [0, 8, 20, 28, 16]; base1 = [4, 12, 24, 32, 36]
    a("s_waitcnt vmcnt(0)\ns_barrier")
    a(f"s_mov_b32 s{sDX}, 0")
    a(f"""
    L_{name}_rwl:
    s_lshl_b32 s{sT0}, s{sDX}, 3
    s_add_u32 s{sT0}, s{sT0}, s{sW}
    s_cmp_ge_u32 s{sT0}, 100
    s_cbranch_scc1 L_{name}_exit
    s_mul_i32 s{sT1}, s{sT0}, 3277
    s_lshr_b32 s{sT1}, s{sT1}, 16
    s_mul_i32 s3, s{sT1}, 20
    s_sub_u32 s3, s{sT0}, s3
    s_mul_i32 s{sXG}, s{sST}, 100
    s_add_u32 s{sXG}, s{sXG}, s{sT0}
    s_lshl_b32 s{sXG}, s{sXG}, 10
    s_add_u32 s{sXG}, s{sXG}, {WOF_OFF}
    s_lshl_b32 s3, s3, 6
    s_lshl_b32 s{sT1}, s{sT1}, 1
    v_add_u32 v7, s{sT1}, v10
    v_mul_u32_u24 v8, 52429, v7
    v_lshrrev_b32 v8, 18, v8
    v_mul_u32_u24 v9, 5, v8
    v_sub_u32 v9, v7, v9
    v_mul_u32_u24 v8, 40, v8
    v_lshlrev_b32 v12, 3, v9
    v_cmp_lt_u32 vcc, 1, v9
    v_add_u32 v13, 4, v12
    s_nop 0
    v_cndmask_b32 v12, v12, v13, vcc
    v_cmp_eq_u32 vcc, 4, v9
    v_add_u32 v13, 4, v12
    v_mov_b32 v14, 36
    v_cndmask_b32 v12, v12, 16, vcc
    v_cndmask_b32 v13, v13, v14, vcc
    v_add3_u32 v12, v12, v8, v6
    v_add3_u32 v13, v13, v8, v6
    v_mul_u32_u24 v12, 1280, v12
    v_mul_u32_u24 v13, 1280, v13
    v_add3_u32 v12, v12, v11, s3
    v_add3_u32 v13, v13, v11, s3
    ds_read_b64_tr_b16 v[32:33], v12
    ds_read_b64_tr_b16 v[34:35], v13
    s_add_u32 s{sDX}, s{sDX}, 1
    s_waitcnt lgkmcnt(0)
    buffer_store_dwordx4 v[32:35], v2, s[28:31], s{sXG} offen{ST}
    s_nop 1
    s_branch L_{name}_rwl
    """)
    a(f"L_{name}_end:")
    if DIAG:
        a(stamp(4)); a("s_waitcnt vmcnt(0)"); a(stamp(5)); a(stamp_flush(0, 8, 28))
    a(f"L_{name}_exit:\ns_endpgm")
    a(kernel_desc(name, 200))
    return a.text()
```

```python
from common import *
from ffn_parts import *
SLOT = 22528
ONES = 3*SLOT
PART = ONES + 10240
K2_LDS = PART + 4*PBUF
ST = " sc0 sc1" if E("WT", "0") == "1" else ""
def k2(name):
    a = Asm()
    a(kernel_head(name))
    sW, sHead, sT, sF, sC, sT0, sT1, sSlot, sCQ, sOdd = 32, 33, 34, 35, 36, 37, 38, 39, 44, 45
    sMaskV = 40
    sOk = 42
    sKG, sK2G, sVG, sA, sB, sBW, sTF, sFQ, sPass = 46, 47, 48, 49, 50, 51, 52, 53, 54
    vLane, vL16 = 1, 2
    a(f"""
    s_cmp_ge_u32 s2, 256
    s_cbranch_scc1 L_{name}_exit
    """)
    a(stamp(0))
    a(f"""
    s_load_dwordx2 s[4:5], s[0:1], 64
    s_load_dwordx2 s[6:7], s[0:1], 0
    s_load_dwordx4 s[12:15], s[0:1], 48
    v_lshrrev_b32 v2, 6, v0
    v_and_b32 v{vLane}, 63, v0
    v_readfirstlane_b32 s{sW}, v2
    s_and_b32 s{sT0}, s2, 7
    s_lshr_b32 s{sT1}, s2, 3
    s_lshl_b32 s{sHead}, s{sT0}, 2
    s_and_b32 s3, s{sT1}, 3
    s_add_u32 s{sHead}, s{sHead}, s3
    s_mul_i32 s{sF}, s{sHead}, 5
    s_add_u32 s{sF}, s{sF}, 1
    s_lshr_b32 s{sF}, s{sF}, 1
    s_and_b32 s{sOdd}, s{sHead}, 1
    s_cmp_eq_u32 s{sOdd}, 0
    s_cselect_b32 s3, 2, -1
    s_add_u32 s{sCQ}, s{sF}, s3
    s_lshl_b32 s{sF}, s{sF}, 9
    s_lshl_b32 s{sCQ}, s{sCQ}, 9
    s_lshl_b32 s{sOdd}, s{sOdd}, 3
    v_lshlrev_b32 v{vL16}, 4, v{vLane}
    v_and_b32 v3, 31, v{vLane}
    v_lshrrev_b32 v11, 5, v{vLane}
    s_cmp_ge_u32 s{sW}, 4
    s_cbranch_scc1 L_{name}_bg
    """)
    vK1, vK2, vV, vM01 = 4, 5, 6, 7
    Q1 = [12, 16]; Q2 = [20, 22]
    K1 = [24, 28]; K2 = [32, 34]; V1 = [36, 40]; V2 = [44, 48]; P1, P2 = 52, 56
    SS = [64, 80]; O = [96, 112]; CM = [128, 144]
    a(f"""
    s_lshr_b32 s{sT}, s{sT1}, 2
    s_lshl_b32 s{sT}, s{sT}, 3
    s_lshl_b32 s3, s{sW}, 1
    s_add_u32 s{sT}, s{sT}, s3
    v_lshlrev_b32 v{vK2}, 4, v3
    v_lshl_add_u32 v{vK1}, v11, 9, v{vK2}
    v_add_u32 v{vK2}, s{sOdd}, v{vK2}
    s_mul_i32 s3, s{sT}, 40960
    s_add_u32 s{sT0}, s3, s{sF}
    s_add_u32 s{sT1}, s3, s{sCQ}
    v_mov_b32 v{Q2[0]}, 0
    v_mov_b32 v{Q2[0]+1}, 0
    v_mov_b32 v{Q2[1]}, 0
    v_mov_b32 v{Q2[1]+1}, 0
    s_waitcnt lgkmcnt(0)
    """)
    a(srd(8, "s4", "s5", WS_SIZE))
    a(f"""
    s_add_u32 s{sA}, s{sT0}, 40960
    s_add_u32 s{sB}, s{sT1}, 40960
    buffer_load_dwordx4 {vr(Q1[0],4)}, v{vK1}, s[8:11], s{sT0} offen
    buffer_load_dwordx4 {vr(Q1[1],4)}, v{vK1}, s[8:11], s{sA} offen
    s_mov_b64 exec, 0xffffffff
    buffer_load_dwordx2 {vr(Q2[0],2)}, v{vK2}, s[8:11], s{sT1} offen
    buffer_load_dwordx2 {vr(Q2[1],2)}, v{vK2}, s[8:11], s{sB} offen
    s_mov_b64 exec, -1
    s_setprio {E('APRIO', '2')}
    s_mov_b32 s{sMaskV}, 0x000fffff
    s_mov_b32 s{sMaskV+1}, 0x000fffff
    v_mul_u32_u24 v{vV}, 320, v11
    v_lshl_add_u32 v{vV}, v3, 4, v{vV}
    v_cmp_eq_u32 vcc, 20, v3
    v_mov_b32 v11, {ONES-12288+(0 if E('ONESALL') else 16)}
    v_mov_b32 v8, {ONES-12288}
    v_cndmask_b32 v11, v11, v8, vcc
    v_cmp_gt_u32 vcc, 20, v3
    v_mov_b32 v{vM01}, 0
    s_nop 0
    v_cndmask_b32 v{vV}, v11, v{vV}, vcc
    v_cndmask_b32 v{vM01}, v{vM01}, 1, vcc
    """)
    for r in range(4): a(f"v_mov_b32 v{V2[1]+r}, 0\nv_mov_b32 v{P2+r}, 0")
    for q in range(2):
        for r in range(16): a(f"v_mov_b32 v{O[q]+r}, 0")
    a(f"""
    s_mov_b32 s{sC}, 0
    s_mov_b32 s{sSlot}, 0
    s_waitcnt vmcnt(0)
    s_barrier
    """)
    a(stamp(1))
    def rd_k1(p, j): return f"ds_read_b128 {vr(K1[p],4)}, v{vK1} offset:{j*1024}\n"
    def rd_k2(p, j): return f"ds_read_b64 {vr(K2[p],2)}, v{vK2} offset:{8192+j*512}\n"
    def rd_v1(p, j): return f"ds_read_b128 {vr(V1[p],4)}, v{vV} offset:{12288+j*1280}\n"
    def rd_v2(p, j): return f"ds_read_b128 {vr(V2[p],4)}, v{vV} offset:{12288+j*1280+640}\n"
    a(rd_k1(0,0) + rd_k2(0,0) + rd_v1(0,0) + rd_v2(0,0))
    a("s_waitcnt lgkmcnt(2)")
    for q in range(2): a(mfma(SS[q], K1[0], Q1[q], "0"))
    for q in range(2): a(mfma8(SS[q], K2[0], Q2[q]))
    a("s_nop 10")
    for q in range(2):
        S0 = SS[q]; t = 3 if q == 0 else 11
        a(f"v_max3_f32 v{t}, v{S0}, v{S0+1}, v{S0+2}")
        for r in range(3, 15, 2): a(f"v_max3_f32 v{t}, v{t}, v{S0+r}, v{S0+r+1}")
        a(f"v_max_f32 v{t}, v{t}, v{S0+15}")
    a(f"""
    v_mov_b32 v{P1}, v3
    v_mov_b32 v{P1+1}, v11
    s_nop 1
    v_permlane32_swap_b32 v3, v{P1}
    v_permlane32_swap_b32 v11, v{P1+1}
    v_max_f32 v3, v3, v{P1}
    v_max_f32 v11, v11, v{P1+1}
    """)
    for r in range(16): a(f"v_sub_f32 v{CM[0]+r}, 0, v3")
    for r in range(16): a(f"v_sub_f32 v{CM[1]+r}, 0, v11")
    a("s_waitcnt lgkmcnt(0)\ns_nop 0")
    a(mfma(SS[0], K1[0], Q1[0], CM[0])); a(mfma8(SS[0], K2[0], Q2[0]))
    a("s_nop 11")
    a(stamp(2))
    L = f"L_{name}_loop"
    a(f"{L}:")
    for n in range(16):
        j, q = n >> 1, n & 1
        p, pn = j & 1, (j + 1) & 1
        Sc, qn = SS[q], 1 - q
        Sn = SS[qn]
        def e(r): return f"v_exp_f32 v{Sc+r}, v{Sc+r}\n"
        def c(P, i, r): return f"v_cvt_pk_bf16_f32 v{P+i}, v{Sc+r}, v{Sc+r+1}\n"
        nx = (j + 1) & 7
        if q == 1: a("s_waitcnt lgkmcnt(0)")
        kq = p if q == 0 else pn
        a(mfma(Sn, K1[kq], Q1[qn], "0" if E("NOCM") else CM[qn]))
        a(e(0)+e(1)+e(2)+e(3)+c(P1,0,0)+c(P1,1,2))
        a(mfma(O[qn], V2[pn if q == 0 else p], P2))
        if q == 0:
            if j == 7:
                a(f"""
                s_barrier
                s_cmp_eq_u32 s{sSlot}, 2
                s_cselect_b32 s{sT0}, {(-2*SLOT) & 0xffffffff}, {SLOT}
                s_cselect_b32 s{sSlot}, -1, s{sSlot}
                s_add_u32 s{sSlot}, s{sSlot}, 1
                v_add_u32 v{vK1}, s{sT0}, v{vK1}
                v_add_u32 v{vK2}, s{sT0}, v{vK2}
                v_mad_i32_i24 v{vV}, v{vM01}, s{sT0}, v{vV}
                """)
            a(rd_k1(pn, nx) + rd_k2(pn, nx) + rd_v1(pn, nx) + rd_v2(pn, nx))
        a(e(4)+e(5)+e(6)+e(7)+c(P1,2,4)+c(P1,3,6))
        a(mfma8(Sn, K2[kq], Q2[qn]))
        a(e(8)+e(9)+e(10)+e(11)+c(P2,0,8)+c(P2,1,10))
        a(mfma(O[q], V1[p], P1))
        a(e(12)+e(13)+e(14)+e(15)+c(P2,2,12)+c(P2,3,14))
    a(f"""
    s_add_u32 s{sC}, s{sC}, 1
    s_cmp_lt_u32 s{sC}, 8
    s_cbranch_scc1 {L}
    s_nop 0
    """)
    a(mfma(O[1], V2[1], P2))
    a(stamp(3))
    a(f"""
    s_mov_b32 s{sPass}, 0
    s_lshr_b32 s{sA}, s{sHead}, 1
    s_mul_i32 s{sA}, s{sA}, 5
    s_mul_i32 s3, s{sT}, 80
    s_add_u32 s{sA}, s{sA}, s3
    s_lshl_b32 s{sA}, s{sA}, 9
    s_add_u32 s{sA}, s{sA}, {OF_OFF}
    s_add_u32 s{sB}, s{sA}, s{sOdd}
    s_lshl_b32 s3, s{sOdd}, 7
    s_add_u32 s{sA}, s{sA}, s3
    v_and_b32 v9, 31, v{vLane}
    v_lshrrev_b32 v8, 5, v{vLane}
    v_lshlrev_b32 v9, 4, v9
    v_lshl_add_u32 v8, v8, 9, v9
    s_waitcnt lgkmcnt(0)
    """)
    O0 = O[0]
    a(f"""
    L_{name}_norm:
    v_mov_b32 v3, v{O0+8}
    v_mov_b32 v11, v{O0+8}
    s_mov_b32 s{sT0}, {hexf(2.0**-40)}
    s_mov_b32 s{sT1}, {hexf(2.0**60)}
    v_permlane32_swap_b32 v3, v11
    v_pk_add_f32 v[60:61], {vr(O0,2)}, {vr(O0+2,2)}
    v_rcp_f32 v10, v11
    v_pk_add_f32 v[62:63], {vr(O0+4,2)}, {vr(O0+6,2)}
    v_med3_f32 v3, v11, s{sT0}, v11
    v_pk_add_f32 v[60:61], v[60:61], {vr(O0+8,2)}
    v_pk_add_f32 v[62:63], v[62:63], {vr(O0+10,2)}
    v_min_f32 v3, s{sT1}, v11
    v_max_f32 v3, s{sT0}, v3
    v_pk_add_f32 v[60:61], v[60:61], v[62:63]
    v_cmp_eq_f32 s[{sOk}:{sOk+1}], v3, v11
    v_add_f32 v60, v60, v61
    s_movk_i32 s3, 0x1f8
    v_cmp_class_f32 vcc, v60, s3
    s_and_b64 s[{sOk}:{sOk+1}], s[{sOk}:{sOk+1}], vcc
    s_cmp_eq_u64 s[{sOk}:{sOk+1}], -1
    {"s_nop 0" if E("NOSLOW") else "s_cbranch_scc0 L_"+name+"_slow"}
    L_{name}_fin:
    """)
    for p in range(6): a(f"v_pk_mul_f32 {vr(O0+2*p,2)}, {vr(O0+2*p,2)}, v[10:11] op_sel_hi:[1,0]")
    for p in range(6): a(f"v_cvt_pk_bf16_f32 v{O0+p}, v{O0+2*p}, v{O0+2*p+1}")
    a(f"""
    s_nop 0
    v_permlane32_swap_b32 v{O0}, v{O0+2}
    v_permlane32_swap_b32 v{O0+1}, v{O0+3}
    buffer_store_dwordx4 {vr(O0,4)}, v8, s[8:11], s{sA} offen sc0 sc1
    s_mov_b64 exec, 0xffffffff
    buffer_store_dwordx2 {vr(O0+4,2)}, v9, s[8:11], s{sB} offen offset:2048 sc0 sc1
    s_mov_b64 exec, -1
    s_cmp_lg_u32 s{sPass}, 0
    s_cbranch_scc1 L_{name}_aend
    s_mov_b32 s{sPass}, 1
    s_add_u32 s{sA}, s{sA}, 40960
    s_add_u32 s{sB}, s{sB}, 40960
    """)
    for r in range(12): a(f"v_mov_b32 v{O[0]+r}, v{O[1]+r}")
    for r in range(4): a(f"v_mov_b32 v{Q1[0]+r}, v{Q1[1]+r}")
    for r in range(2): a(f"v_mov_b32 v{Q2[0]+r}, v{Q2[1]+r}")
    a(f"s_branch L_{name}_norm")
    a(f"L_{name}_aend:")
    if DIAG: a(stamp(4))
    a(f"""
    s_lshl_b32 s{sT0}, s{sT}, 8
    s_add_u32 s{sT0}, s{sT0}, {FLG_OFF}
    s_add_u32 s{sT1}, s{sT0}, 256
    v_mov_b32 v8, 0
    v_mov_b32 v9, 1
    s_waitcnt vmcnt(0)
    s_mov_b64 exec, 1
    buffer_atomic_add v9, v8, s[8:11], s{sT0} offen sc1
    buffer_atomic_add v9, v8, s[8:11], s{sT1} offen sc1
    s_mov_b64 exec, -1
    """)
    if DIAG:
        a(stamp(5)); a(stamp_flush(1, 6, 8))
    a("s_endpgm")
    vM, vAl, vTm = 128, 129, 130
    a(f"""
    L_{name}_slow:
    v_and_b32 v10, 31, v{vLane}
    v_lshrrev_b32 v11, 5, v{vLane}
    v_lshlrev_b32 v{vK2}, 4, v10
    v_lshl_add_u32 v{vK1}, v11, 9, v{vK2}
    v_add_u32 v{vK2}, s{sOdd}, v{vK2}
    v_mul_u32_u24 v{vV}, 320, v11
    v_lshl_add_u32 v{vV}, v10, 4, v{vV}
    v_mov_b32 v{vM}, 0xff800000
    v_mov_b32 v3, 0x3f803f80
    """)
    for r in range(4): a(f"v_mov_b32 v{V1[0]+r}, v3\nv_mov_b32 v{V2[0]+r}, v3")
    for r in range(16): a(f"v_mov_b32 v{O0+r}, 0")
    S0 = SS[0]
    a(f"""
    s_mov_b32 s{sC}, 0
    s_add_u32 s{sKG}, s{sF}, {KF_OFF}
    s_add_u32 s{sK2G}, s{sCQ}, {KF_OFF}
    s_mul_i32 s{sVG}, s{sHead}, {128*640}
    s_add_u32 s{sVG}, s{sVG}, {VF_OFF}
    L_{name}_sl:
    buffer_load_dwordx4 {vr(K1[0],4)}, v{vK1}, s[8:11], s{sKG} offen
    buffer_load_dwordx2 {vr(K2[0],2)}, v{vK2}, s[8:11], s{sK2G} offen
    s_mov_b64 exec, s[{sMaskV}:{sMaskV+1}]
    buffer_load_dwordx4 {vr(V1[0],4)}, v{vV}, s[8:11], s{sVG} offen
    buffer_load_dwordx4 {vr(V2[0],4)}, v{vV}, s[8:11], s{sVG} offen offset:640
    s_mov_b64 exec, -1
    s_waitcnt vmcnt(2)
    """)
    a(mfma(S0, K1[0], Q1[0], "0")); a(mfma8(S0, K2[0], Q2[0]))
    a("s_nop 11")
    a(f"v_max3_f32 v{vTm}, v{S0}, v{S0+1}, v{S0+2}")
    for r in range(3, 15, 2): a(f"v_max3_f32 v{vTm}, v{vTm}, v{S0+r}, v{S0+r+1}")
    a(f"""
    v_max3_f32 v{vTm}, v{vTm}, v{S0+15}, v{vM}
    v_mov_b32 v3, v{vTm}
    s_nop 1
    v_permlane32_swap_b32 v{vTm}, v3
    v_max_f32 v{vTm}, v{vTm}, v3
    v_sub_f32 v{vAl}, v{vM}, v{vTm}
    v_exp_f32 v{vAl}, v{vAl}
    v_mov_b32 v{vM}, v{vTm}
    """)
    for r in range(16): a(f"v_sub_f32 v{S0+r}, v{S0+r}, v{vM}")
    for r in range(16): a(f"v_exp_f32 v{S0+r}, v{S0+r}")
    for r in range(16): a(f"v_mul_f32 v{O0+r}, v{O0+r}, v{vAl}")
    for i in range(4): a(f"v_cvt_pk_bf16_f32 v{P1+i}, v{S0+2*i}, v{S0+2*i+1}")
    for i in range(4): a(f"v_cvt_pk_bf16_f32 v{P2+i}, v{S0+8+2*i}, v{S0+8+2*i+1}")
    a("s_waitcnt vmcnt(0)\ns_nop 0")
    a(mfma(O0, V1[0], P1)); a(mfma(O0, V2[0], P2))
    a(f"""
    s_add_u32 s{sKG}, s{sKG}, 40960
    s_add_u32 s{sK2G}, s{sK2G}, 40960
    s_add_u32 s{sVG}, s{sVG}, 1280
    s_add_u32 s{sC}, s{sC}, 1
    s_cmp_lt_u32 s{sC}, 64
    s_nop 6
    s_cbranch_scc1 L_{name}_sl
    s_nop 3
    v_mov_b32 v3, v{O0+8}
    v_mov_b32 v11, v{O0+8}
    s_nop 1
    v_permlane32_swap_b32 v3, v11
    v_rcp_f32 v10, v11
    s_nop 0
    s_branch L_{name}_fin
    """)
    vK2D, vL16b = 3, 19
    ACC = [96 + 16*f for f in range(5)]
    FR = lambda b: 24 + 24*b
    a(f"""
    L_{name}_bg:
    s_sub_u32 s{sBW}, s{sW}, 4
    v_mul_u32_u24 v{vK2D}, 40960, v11
    v_and_b32 v4, 31, v{vLane}
    v_lshl_add_u32 v{vK2D}, v4, 4, v{vK2D}
    v_add_u32 v{vL16b}, 4096, v{vL16}
    s_mul_i32 s3, s{sBW}, {2*40960}
    s_add_u32 s3, s3, {KF_OFF}
    s_add_u32 s{sKG}, s3, s{sF}
    s_add_u32 s{sK2G}, s3, s{sCQ}
    s_mul_i32 s{sVG}, s{sHead}, {128*640}
    s_mul_i32 s3, s{sBW}, 2560
    s_add_u32 s{sVG}, s{sVG}, s3
    s_add_u32 s{sVG}, s{sVG}, {VF_OFF}
    s_and_b32 s{sFQ}, s2, 1
    s_lshl_b32 s{sFQ}, s{sFQ}, 1
    s_and_b32 s3, s{sT1}, 1
    s_add_u32 s{sFQ}, s{sFQ}, s3
    s_bfe_u32 s{sTF}, s2, 0x20001
    s_lshl_b32 s{sTF}, s{sTF}, 4
    s_lshr_b32 s3, s{sT1}, 1
    s_add_u32 s{sTF}, s{sTF}, s3
    s_waitcnt lgkmcnt(0)
    """)
    a(srd(8, "s4", "s5", WS_SIZE))
    vq = VmQ()
    def dma(c):
        sl = (c % 3) * SLOT
        t = f"""
        s_lshl_b32 s{sT0}, s{sBW}, 11
        s_add_u32 m0, s{sT0}, {sl}
        s_add_u32 s{sT1}, s{sKG}, 40960
        buffer_load_dwordx4 v{vL16}, s[8:11], s{sKG} offen lds
        s_add_u32 m0, s{sT0}, {sl+1024}
        s_lshl_b32 s{sT0}, s{sBW}, 10
        buffer_load_dwordx4 v{vL16}, s[8:11], s{sT1} offen lds
        s_add_u32 m0, s{sT0}, {sl+8192}
        s_mul_i32 s{sT0}, s{sBW}, 2560
        buffer_load_dwordx4 v{vK2D}, s[8:11], s{sK2G} offen lds
        s_add_u32 m0, s{sT0}, {sl+12288}
        s_add_u32 s{sT1}, s{sVG}, 1024
        buffer_load_dwordx4 v{vL16}, s[8:11], s{sVG} offen lds
        s_add_u32 m0, s{sT0}, {sl+12288+1024}
        s_add_u32 s{sKG}, s{sKG}, {8*40960}
        buffer_load_dwordx4 v{vL16}, s[8:11], s{sT1} offen lds
        s_add_u32 m0, s{sT0}, {sl+12288+2048}
        s_add_u32 s{sT1}, s{sVG}, 2048
        s_mov_b64 exec, 0xffffffff
        buffer_load_dwordx4 v{vL16}, s[8:11], s{sT1} offen lds
        s_mov_b64 exec, -1
        s_add_u32 s{sK2G}, s{sK2G}, {8*40960}
        s_add_u32 s{sVG}, s{sVG}, 10240
        """
        vq.issue(f"D{c}", 6)
        return t
    WP, AO, A4, GF, X = 24, 184, 200, 216, 236
    vOq = 4
    OL, X4L, W4L = 0, 40960, PART
    sXO, sX4 = 55, 56
    a(dma(0))
    a(f"""
    s_mul_i32 s{sA}, s{sTF}, 96
    s_mul_i32 s3, s{sBW}, 24
    s_add_u32 s{sA}, s{sA}, s3
    s_lshl_b32 s{sA}, s{sA}, 10
    s_add_u32 s{sA}, s{sA}, {HF_OFF}
    s_mul_i32 s{sB}, s3, 20
    s_mul_i32 s3, s{sFQ}, 5
    s_add_u32 s{sB}, s{sB}, s3
    s_lshl_b32 s{sB}, s{sB}, 10
    s_add_u32 s{sB}, s{sB}, {W2F_OFF}
    v_lshrrev_b32 v4, 2, v{vLane}
    v_mul_u32_u24 v4, 640, v4
    v_and_b32 v5, 3, v{vLane}
    v_lshl_add_u32 v4, v5, 2, v4
    v_add_u32 v4, {ONES}, v4
    v_mov_b32 v5, 0x3f803f80
    v_mov_b32 v6, 0
    ds_write_b32 v4, v5
    ds_write_b32 v4, v6 offset:16
    """)
    a(dma(1)); a(dma(2))
    def ld(s):
        vq.issue(f"L{s}", 6)
        return gemm_loads(FR(s % 3), vL16, vL16b, 8, sA, sB)
    a(vq.wait("D0")); a("s_waitcnt lgkmcnt(0)\ns_barrier")
    if not E("NOFFN"):
        for s in range(3): a(ld(s))
    s = 0
    for c in range(8):
        if c <= 4 and not E("NOFFN"):
            for k in range(5 if c < 4 else 4):
                a(vq.wait(f"L{s}"))
                a(gemm_comp(FR(s % 3), ACC, s == 0))
                if s + 3 < 24: a(ld(s + 3))
                s += 1
        if c == 5:
            a(partial_write(ACC, vLane, sBW, sT0, PART))
            a("s_waitcnt lgkmcnt(0)")
        if c == 6:
            a(f"""
            v_and_b32 v4, 31, v{vLane}
            v_lshrrev_b32 v5, 5, v{vLane}
            v_mul_u32_u24 v6, {PSTR}, v4
            v_lshl_add_u32 v6, v5, 4, v6
            s_lshl_b32 s{sT0}, s{sBW}, 7
            s_add_u32 s{sT0}, s{sT0}, {PART}
            v_add_u32 v7, s{sT0}, v6
            s_lshl_b32 s{sT0}, s{sBW}, 5
            s_add_u32 s{sT0}, s{sT0}, {PART+512}
            v_add_u32 v6, s{sT0}, v6
            """)
            for i in range(4):
                for w in range(4): a(f"ds_read_b128 {vr(24+16*i+4*w,4)}, v7 offset:{w*PBUF+32*i}")
                if i == 2: a("s_waitcnt lgkmcnt(8)")
            for w in range(4): a(f"ds_read_b128 {vr(88+4*w,4)}, v6 offset:{w*PBUF}")
            a(srd(16, "s6", "s7", S*D*2))
            a(srd(20, "s12", "s13", S*D*2))
            a(f"""
            v_mul_u32_u24 v12, 1280, v4
            v_lshl_add_u32 v13, v5, 4, v12
            v_lshl_add_u32 v12, v5, 3, v12
            s_mul_i32 s{sXO}, s{sTF}, {32*1280}
            s_mul_i32 s3, s{sFQ}, 320
            s_add_u32 s{sXO}, s{sXO}, s3
            s_lshl_b32 s3, s{sBW}, 4
            s_add_u32 s{sX4}, s{sXO}, s3
            s_add_u32 s{sX4}, s{sX4}, 256
            s_lshl_b32 s3, s{sBW}, 6
            s_add_u32 s{sXO}, s{sXO}, s3
            """)
            for i in range(4): a(f"buffer_load_dwordx2 {vr(X+2*i,2)}, v12, s[16:19], s{sXO} offen offset:{16*i}")
            a(f"buffer_load_dwordx2 {vr(X+8,2)}, v12, s[16:19], s{sX4} offen")
            for i in range(5):
                b = 24 + 16*i; d = GF + 4*i
                a(f"s_waitcnt lgkmcnt({[8, 12, 8, 4, 0][i]})")
                for e in range(4): a(f"v_add_f32 v{b+e}, v{b+e}, v{b+4+e}\nv_add_f32 v{b+8+e}, v{b+8+e}, v{b+12+e}")
                for e in range(4): a(f"v_add_f32 v{d+e}, v{b+e}, v{b+8+e}")
            for qd in range(4):
                a(f"""
                s_add_u32 s3, s{sBW}, {qd}
                s_and_b32 s3, s3, 3
                s_mul_i32 s{sB}, s3, {10*20*1024}
                s_mul_i32 s{sT0}, s{sFQ}, 5
                s_add_u32 s{sT0}, s{sT0}, s{sBW}
                s_lshl_b32 s{sT0}, s{sT0}, 10
                s_add_u32 s{sB}, s{sB}, s{sT0}
                s_add_u32 s{sB}, s{sB}, {WOF_OFF}
                s_mul_i32 s3, s3, 10240
                s_add_u32 s3, s3, {OL}
                v_add_u32 v{vOq+qd}, s3, v{vL16}
                """)
                for j in range(10):
                    a(f"buffer_load_dwordx4 {vr(WP+4*(10*qd+j),4)}, v{vL16}, s[8:11], s{sB} offen")
                    if j < 9: a(f"s_add_u32 s{sB}, s{sB}, {20*1024}")
            vq.issue("XW", 45)
        if c == 7:
            a(f"""
            s_mul_i32 s{sB}, s{sBW}, {10*20*1024}
            s_mul_i32 s{sT0}, s{sFQ}, 5
            s_add_u32 s{sT0}, s{sT0}, 4
            s_lshl_b32 s{sT0}, s{sT0}, 10
            s_add_u32 s{sB}, s{sB}, s{sT0}
            s_add_u32 s{sB}, s{sB}, {WOF_OFF}
            s_mul_i32 s{sT0}, s{sBW}, 10240
            s_add_u32 s{sT0}, s{sT0}, {W4L}
            v_add_u32 v14, s{sT0}, v{vL16}
            """)
            for j in range(10):
                a(f"s_add_u32 m0, s{sT0}, {j*1024}\ns_nop 0\nbuffer_load_dwordx4 v{vL16}, s[8:11], s{sB} offen lds")
                if j < 9: a(f"s_add_u32 s{sB}, s{sB}, {20*1024}")
        if c <= 6: a(vq.wait(f"D{c+1}"))
        a("s_barrier")
        if c + 3 <= 7: a(dma(c + 3))
    a(f"s_mov_b32 s{sT0}, {hexf(-1.4426950408889634)}")
    GT = 8
    for r in range(0, 20, 4):
        for e in range(4): a(f"v_mul_f32 v{GT+e}, s{sT0}, v{GF+r+e}")
        for e in range(4): a(f"v_exp_f32 v{GT+e}, v{GT+e}")
        for e in range(4): a(f"v_add_f32 v{GT+e}, 1.0, v{GT+e}")
        for e in range(4): a(f"v_rcp_f32 v{GT+e}, v{GT+e}")
        for e in range(4): a(f"v_mul_f32 v{GF+r+e}, v{GF+r+e}, v{GT+e}")
    a(f"""
    s_cmp_lg_u32 s{sBW}, 0
    s_cbranch_scc1 L_{name}_ready
    s_lshl_b32 s{sT0}, s{sTF}, 8
    s_add_u32 s{sT0}, s{sT0}, {FLG_OFF}
    v_mov_b32 v8, 0
    s_mov_b32 s{sT1}, 0
    L_{name}_poll:
    buffer_load_dword v9, v8, s[8:11], s{sT0} offen sc1
    s_add_u32 s{sT1}, s{sT1}, 1
    s_waitcnt vmcnt(0)
    v_readfirstlane_b32 s3, v9
    s_cmp_ge_u32 s3, 32
    s_cbranch_scc1 L_{name}_ready
    s_cmp_ge_u32 s{sT1}, 0x40000
    s_cbranch_scc1 L_{name}_ready
    s_sleep {E('SLP', '2')}
    s_branch L_{name}_poll
    L_{name}_ready:
    s_waitcnt vmcnt(0) lgkmcnt(0)
    s_barrier
    """)
    if DIAG: a(stamp(1))
    a(f"""
    s_mul_i32 s{sA}, s{sTF}, 40
    s_mul_i32 s3, s{sBW}, 10
    s_add_u32 s{sA}, s{sA}, s3
    s_lshl_b32 s{sA}, s{sA}, 10
    s_add_u32 s{sA}, s{sA}, {OF_OFF}
    s_mul_i32 s{sT0}, s{sBW}, 10240
    s_add_u32 s{sT0}, s{sT0}, {OL}
    """)
    for j in range(10):
        a(f"s_add_u32 m0, s{sT0}, {j*1024}\ns_nop 0\nbuffer_load_dwordx4 v{vL16}, s[8:11], s{sA} offen sc1 lds")
        if j < 9: a(f"s_add_u32 s{sA}, s{sA}, 1024")
    OB = [246, 250]; W4 = [8, 16]
    def rdo(u): return f"ds_read_b128 {vr(OB[u & 1],4)}, v{vOq + u//10} offset:{(u % 10)*1024}\n"
    def rdw(u): return f"ds_read_b128 {vr(W4[u & 1],4)}, v14 offset:{u*1024}\n"
    a("s_waitcnt vmcnt(8)")
    a(rdo(0) + rdw(0))
    for u in range(40):
        nxt = ""
        if u + 1 < 10 and (u + 1) % 2 == 0: a(f"s_waitcnt vmcnt({max(0, 10 - (u + 1) - 2)})")
        if u + 1 == 10: a("s_waitcnt vmcnt(0)\ns_barrier")
        if u + 1 < 40: nxt = rdo(u + 1) + (rdw(u + 1) if u + 1 < 10 else "")
        a(nxt)
        cnt = (1 if u + 1 < 40 else 0) + (1 if u + 1 < 10 else 0)
        a(f"s_waitcnt lgkmcnt({cnt})")
        a(mfma(AO, WP + 4*u, OB[u & 1], "0" if u == 0 else None))
        if u < 10: a(mfma(A4, W4[u & 1], OB[u & 1], "0" if u == 0 else None))
    if DIAG: a(stamp(2))
    a(f"""
    s_lshl_b32 s{sT0}, s{sBW}, 12
    s_add_u32 s{sT0}, s{sT0}, {X4L}
    v_add_u32 v14, s{sT0}, v{vL16}
    s_lshl_b32 s{sT0}, s{sBW}, 10
    s_add_u32 s{sT0}, s{sT0}, {X4L}
    v_add_u32 v15, s{sT0}, v{vL16}
    """)
    for i in range(4): a(f"ds_write_b128 v14, {vr(A4+4*i,4)} offset:{i*1024}")
    a("s_waitcnt lgkmcnt(0)\ns_barrier")
    for w in range(4): a(f"ds_read_b128 {vr(24+4*w,4)}, v15 offset:{w*4096}")
    def fin(sreg, g, x, d):
        t = f"""
        v_lshlrev_b32 v40, 16, v{x}
        v_and_b32 v41, 0xffff0000, v{x}
        v_lshlrev_b32 v42, 16, v{x+1}
        v_and_b32 v43, 0xffff0000, v{x+1}
        """
        for e in range(4): t += f"v_fma_f32 v{40+e}, v{sreg+e}, v{g+e}, v{40+e}\n"
        t += f"v_cvt_pk_bf16_f32 v{d}, v40, v41\nv_cvt_pk_bf16_f32 v{d+1}, v42, v43\n"
        return t
    for i in range(4): a(fin(AO+4*i, GF+4*i, X+2*i, 48+2*i))
    a(f"""
    v_permlane32_swap_b32 v48, v50
    v_permlane32_swap_b32 v49, v51
    v_permlane32_swap_b32 v52, v54
    v_permlane32_swap_b32 v53, v55
    buffer_store_dwordx4 v[48:51], v13, s[20:23], s{sXO} offen
    buffer_store_dwordx4 v[52:55], v13, s[20:23], s{sXO} offen offset:32
    s_waitcnt lgkmcnt(0)
    """)
    for e in range(4): a(f"v_add_f32 v{24+e}, v{24+e}, v{28+e}\nv_add_f32 v{32+e}, v{32+e}, v{36+e}")
    for e in range(4): a(f"v_add_f32 v{24+e}, v{24+e}, v{32+e}")
    a(fin(24, GF+16, X+8, 56))
    a(f"buffer_store_dwordx2 v[56:57], v12, s[20:23], s{sX4} offen")
    if DIAG: a(stamp(3))
    a(f"L_{name}_end:")
    if DIAG:
        a(stamp(4)); a("s_waitcnt vmcnt(0)"); a(stamp(5)); a(stamp_flush(1, 6, 8))
    a(f"L_{name}_exit:\ns_endpgm")
    a(kernel_desc(name, 254))
    return a.text()
```

```python
from common import *
from ffn_parts import *
K3_LDS = 4 * PBUF
def k3(name):
    a = Asm()
    a(kernel_head(name))
    sW, sT, sFQ, sA, sB, sT0, sT1 = 32, 33, 34, 35, 36, 37, 38
    vL16, vL16b = 2, 3
    ACC = [96 + 16*f for f in range(5)]
    NB = 3
    FR = lambda b: 24 + 24*b
    X, G = 176, 186
    a(f"""
    s_cmp_ge_u32 s2, 256
    s_cbranch_scc1 L_{name}_exit
    """)
    a(stamp(0))
    a(f"""
    s_load_dwordx2 s[4:5], s[0:1], 64
    s_load_dwordx2 s[6:7], s[0:1], 0
    s_load_dwordx2 s[12:13], s[0:1], 48
    v_lshrrev_b32 v2, 6, v0
    v_and_b32 v1, 63, v0
    v_readfirstlane_b32 s{sW}, v2
    s_and_b32 s{sT0}, s2, 7
    s_lshr_b32 s{sT1}, s2, 3
    s_and_b32 s{sFQ}, s{sT0}, 1
    s_lshl_b32 s{sFQ}, s{sFQ}, 1
    s_and_b32 s3, s{sT1}, 1
    s_add_u32 s{sFQ}, s{sFQ}, s3
    s_lshr_b32 s{sT}, s{sT0}, 1
    s_lshl_b32 s{sT}, s{sT}, 4
    s_lshr_b32 s3, s{sT1}, 1
    s_add_u32 s{sT}, s{sT}, s3
    v_lshlrev_b32 v{vL16}, 4, v1
    v_add_u32 v{vL16b}, 4096, v{vL16}
    s_mul_i32 s{sA}, s{sT}, 40
    s_mul_i32 s3, s{sW}, 10
    s_add_u32 s{sA}, s{sA}, s3
    s_lshl_b32 s{sA}, s{sA}, 10
    s_add_u32 s{sA}, s{sA}, {OF_OFF}
    s_mul_i32 s{sB}, s3, 20
    s_mul_i32 s3, s{sFQ}, 5
    s_add_u32 s{sB}, s{sB}, s3
    s_lshl_b32 s{sB}, s{sB}, 10
    s_add_u32 s{sB}, s{sB}, {WOF_OFF}
    s_waitcnt lgkmcnt(0)
    """)
    a(srd(8, "s4", "s5", WS_SIZE))
    vq = VmQ()
    def ld(s):
        vq.issue(f"L{s}", 6)
        return gemm_loads(FR(s % NB), vL16, vL16b, 8, sA, sB)
    for s in range(NB): a(ld(s))
    a(srd(16, "s6", "s7", S*D*2))
    a(srd(20, "s12", "s13", S*D*2))
    a(unit_addr(0, 0))
    a(f"""
    s_mul_i32 s{sT0}, s{sT}, {32*1280}
    s_mul_i32 s3, s{sFQ}, 320
    s_add_u32 s{sT0}, s{sT0}, s3
    s_add_u32 s{sT1}, s{sT0}, {G_OFF}
    """)
    for i in range(5): a(f"buffer_load_dwordx2 {vr(X+2*i,2)}, v7, s[16:19], s{sT0} offen offset:{64*i}")
    for i in range(5): a(f"buffer_load_dwordx2 {vr(G+2*i,2)}, v7, s[8:11], s{sT1} offen offset:{64*i}")
    vq.issue("XG", 10)
    a(stamp(1))
    GF, GT = 196, 216
    def silu(i):
        g0, g1, d = G+2*i, G+2*i+1, GF+4*i
        t = f"""
        v_lshlrev_b32 v{d}, 16, v{g0}
        v_and_b32 v{d+1}, 0xffff0000, v{g0}
        v_lshlrev_b32 v{d+2}, 16, v{g1}
        v_and_b32 v{d+3}, 0xffff0000, v{g1}
        """
        for e in range(4): t += f"v_mul_f32 v{GT+e}, s40, v{d+e}\n"
        for e in range(4): t += f"v_exp_f32 v{GT+e}, v{GT+e}\n"
        for e in range(4): t += f"v_add_f32 v{GT+e}, 1.0, v{GT+e}\n"
        for e in range(4): t += f"v_rcp_f32 v{GT+e}, v{GT+e}\n"
        for e in range(4): t += f"v_mul_f32 v{d+e}, v{d+e}, v{GT+e}\n"
        return t
    a(f"s_mov_b32 s40, {hexf(-1.4426950408889634)}")
    for s in range(10):
        a(vq.wait(f"L{s}"))
        a(gemm_comp(FR(s % NB), ACC, s == 0))
        if s + NB < 10: a(ld(s + NB))
        if 3 <= s < 8: a(silu(s - 3))
    a(stamp(2))
    a(partial_write(ACC, 1, sW, sT1, 0))
    a("s_waitcnt lgkmcnt(0)\ns_barrier")
    a(stamp(3))
    SS = 104
    a(reduce(SS))
    for i in range(5):
        x0, x1 = X+2*i, X+2*i+1
        a(f"""
        v_lshlrev_b32 v24, 16, v{x0}
        v_and_b32 v25, 0xffff0000, v{x0}
        v_lshlrev_b32 v26, 16, v{x1}
        v_and_b32 v27, 0xffff0000, v{x1}
        """)
        for e in range(4): a(f"v_fma_f32 v{24+e}, v{SS+4*i+e}, v{GF+4*i+e}, v{24+e}")
        a(f"""
        v_cvt_pk_bf16_f32 v{32+2*i}, v24, v25
        v_cvt_pk_bf16_f32 v{33+2*i}, v26, v27
        buffer_store_dwordx2 {vr(32+2*i,2)}, v7, s[20:23], s{sT0} offen offset:{64*i}
        """)
    a(f"L_{name}_end:")
    if DIAG:
        a(stamp(4)); a("s_waitcnt vmcnt(0)"); a(stamp(5)); a(stamp_flush(2, 6, 8))
    a(f"L_{name}_exit:\ns_endpgm")
    a(kernel_desc(name, 220))
    return a.text()
```

```python
import sys, os
sys.path.insert(0, os.path.dirname(os.path.abspath(__file__)))
from common import *
import k1, k2, k3
HEADER = """; Kernarg layout for this problem (72 bytes, ptrs only, base s[0:1]):
"""
def build(out):
    launches = [("k1_gemm_kernel", 256, 512, k1.K1_LDS), ("k2_attn_kernel", 256, 512, k2.K2_LDS)]
    txt = HEADER
    for n, g, b, l in launches: txt += f"; @launch kernel={n} grid=({g},1,1) block=({b},1,1) lds={l}\n"
    txt += '.amdgcn_target "amdgcn-amd-amdhsa--gfx950"\n'
    txt += k1.k1("k1_gemm_kernel") + k2.k2("k2_attn_kernel")
    open(out, "w").write(txt)
if __name__ == "__main__":
    out = sys.argv[1] if len(sys.argv) > 1 else f"cdna_kernels/{NAME}.s"
    build(out)
    print("wrote", out)
```

```python
from common import *
from ffn_parts import *
SLOT = 22528
ONES = 3*SLOT
PART = ONES + 10240
K2_LDS = PART + 4*PBUF
ST = " sc0 sc1" if E("WT", "0") == "1" else ""
def k2(name):
    a = Asm()
    a(kernel_head(name))
    sW, sHead, sT, sF, sC, sT0, sT1, sSlot, sCQ, sOdd = 32, 33, 34, 35, 36, 37, 38, 39, 44, 45
    sMaskV = 40
    sOk = 42
    sKG, sK2G, sVG, sA, sB, sBW, sTF, sFQ, sPass = 46, 47, 48, 49, 50, 51, 52, 53, 54
    vLane, vL16 = 1, 2
    a(f"""
    s_cmp_ge_u32 s2, 256
    s_cbranch_scc1 L_{name}_exit
    """)
    a(stamp(0))
    a(f"""
    s_load_dwordx2 s[4:5], s[0:1], 64
    s_load_dwordx2 s[6:7], s[0:1], 0
    s_load_dwordx4 s[12:15], s[0:1], 48
    v_lshrrev_b32 v2, 6, v0
    v_and_b32 v{vLane}, 63, v0
    v_readfirstlane_b32 s{sW}, v2
    s_and_b32 s{sT0}, s2, 7
    s_lshr_b32 s{sT1}, s2, 3
    s_lshl_b32 s{sHead}, s{sT0}, 2
    s_and_b32 s3, s{sT1}, 3
    s_add_u32 s{sHead}, s{sHead}, s3
    s_mul_i32 s{sF}, s{sHead}, 5
    s_add_u32 s{sF}, s{sF}, 1
    s_lshr_b32 s{sF}, s{sF}, 1
    s_and_b32 s{sOdd}, s{sHead}, 1
    s_cmp_eq_u32 s{sOdd}, 0
    s_cselect_b32 s3, 2, -1
    s_add_u32 s{sCQ}, s{sF}, s3
    s_lshl_b32 s{sF}, s{sF}, 9
    s_lshl_b32 s{sCQ}, s{sCQ}, 9
    s_lshl_b32 s{sOdd}, s{sOdd}, 3
    v_lshlrev_b32 v{vL16}, 4, v{vLane}
    v_and_b32 v3, 31, v{vLane}
    v_lshrrev_b32 v11, 5, v{vLane}
    s_cmp_ge_u32 s{sW}, 4
    s_cbranch_scc1 L_{name}_bg
    """)
    vK1, vK2, vV, vM01 = 4, 5, 6, 7
    Q1 = [12, 16]; Q2 = [20, 22]
    K1 = [24, 28]; K2 = [32, 34]; V1 = [36, 40]; V2 = [44, 48]; P1, P2 = 52, 56
    SS = [64, 80]; O = [96, 112]; CM = [128, 144]
    a(f"""
    s_lshr_b32 s{sT}, s{sT1}, 2
    s_lshl_b32 s{sT}, s{sT}, 3
    s_lshl_b32 s3, s{sW}, 1
    s_add_u32 s{sT}, s{sT}, s3
    v_lshlrev_b32 v{vK2}, 4, v3
    v_lshl_add_u32 v{vK1}, v11, 9, v{vK2}
    v_add_u32 v{vK2}, s{sOdd}, v{vK2}
    s_mul_i32 s3, s{sT}, 40960
    s_add_u32 s{sT0}, s3, s{sF}
    s_add_u32 s{sT1}, s3, s{sCQ}
    v_mov_b32 v{Q2[0]}, 0
    v_mov_b32 v{Q2[0]+1}, 0
    v_mov_b32 v{Q2[1]}, 0
    v_mov_b32 v{Q2[1]+1}, 0
    s_waitcnt lgkmcnt(0)
    """)
    a(srd(8, "s4", "s5", WS_SIZE))
    a(f"""
    s_add_u32 s{sA}, s{sT0}, 40960
    s_add_u32 s{sB}, s{sT1}, 40960
    buffer_load_dwordx4 {vr(Q1[0],4)}, v{vK1}, s[8:11], s{sT0} offen
    buffer_load_dwordx4 {vr(Q1[1],4)}, v{vK1}, s[8:11], s{sA} offen
    s_mov_b64 exec, 0xffffffff
    buffer_load_dwordx2 {vr(Q2[0],2)}, v{vK2}, s[8:11], s{sT1} offen
    buffer_load_dwordx2 {vr(Q2[1],2)}, v{vK2}, s[8:11], s{sB} offen
    s_mov_b64 exec, -1
    s_setprio {E('APRIO', '2')}
    s_mov_b32 s{sMaskV}, 0x000fffff
    s_mov_b32 s{sMaskV+1}, 0x000fffff
    v_mul_u32_u24 v{vV}, 320, v11
    v_lshl_add_u32 v{vV}, v3, 4, v{vV}
    v_cmp_eq_u32 vcc, 20, v3
    v_mov_b32 v11, {ONES-12288+(0 if E('ONESALL') else 16)}
    v_mov_b32 v8, {ONES-12288}
    v_cndmask_b32 v11, v11, v8, vcc
    v_cmp_gt_u32 vcc, 20, v3
    v_mov_b32 v{vM01}, 0
    s_nop 0
    v_cndmask_b32 v{vV}, v11, v{vV}, vcc
    v_cndmask_b32 v{vM01}, v{vM01}, 1, vcc
    """)
    for r in range(4): a(f"v_mov_b32 v{V2[1]+r}, 0\nv_mov_b32 v{P2+r}, 0")
    for q in range(2):
        for r in range(16): a(f"v_mov_b32 v{O[q]+r}, 0")
    a(f"""
    s_mov_b32 s{sC}, 0
    s_mov_b32 s{sSlot}, 0
    s_waitcnt vmcnt(0)
    s_barrier
    """)
    a(stamp(1))
    def rd_k1(p, j): return f"ds_read_b128 {vr(K1[p],4)}, v{vK1} offset:{j*1024}\n"
    def rd_k2(p, j): return f"ds_read_b64 {vr(K2[p],2)}, v{vK2} offset:{8192+j*512}\n"
    def rd_v1(p, j): return f"ds_read_b128 {vr(V1[p],4)}, v{vV} offset:{12288+j*1280}\n"
    def rd_v2(p, j): return f"ds_read_b128 {vr(V2[p],4)}, v{vV} offset:{12288+j*1280+640}\n"
    a(rd_k1(0,0) + rd_k2(0,0) + rd_v1(0,0) + rd_v2(0,0))
    a("s_waitcnt lgkmcnt(2)")
    for q in range(2): a(mfma(SS[q], K1[0], Q1[q], "0"))
    for q in range(2): a(mfma8(SS[q], K2[0], Q2[q]))
    a("s_nop 10")
    for q in range(2):
        S0 = SS[q]; t = 3 if q == 0 else 11
        a(f"v_max3_f32 v{t}, v{S0}, v{S0+1}, v{S0+2}")
        for r in range(3, 15, 2): a(f"v_max3_f32 v{t}, v{t}, v{S0+r}, v{S0+r+1}")
        a(f"v_max_f32 v{t}, v{t}, v{S0+15}")
    a(f"""
    v_mov_b32 v{P1}, v3
    v_mov_b32 v{P1+1}, v11
    s_nop 1
    v_permlane32_swap_b32 v3, v{P1}
    v_permlane32_swap_b32 v11, v{P1+1}
    v_max_f32 v3, v3, v{P1}
    v_max_f32 v11, v11, v{P1+1}
    """)
    for r in range(16): a(f"v_sub_f32 v{CM[0]+r}, 0, v3")
    for r in range(16): a(f"v_sub_f32 v{CM[1]+r}, 0, v11")
    a("s_waitcnt lgkmcnt(0)\ns_nop 0")
    a(mfma(SS[0], K1[0], Q1[0], CM[0])); a(mfma8(SS[0], K2[0], Q2[0]))
    a("s_nop 11")
    a(stamp(2))
    L = f"L_{name}_loop"
    if E("INSTREAM"): a(f"s_mov_b32 s{sT1}, {HF_OFF}")
    al = E("ALIGN", "0")
    if al != "0": a(".p2align 6")
    if al == "3": a("s_nop 0")
    a(f"{L}:")
    for n in range(16):
        j, q = n >> 1, n & 1
        p, pn = j & 1, (j + 1) & 1
        Sc, qn = SS[q], 1 - q
        Sn = SS[qn]
        def e(r): return f"v_exp_f32 v{Sc+r}, v{Sc+r}\n"
        def c(P, i, r): return f"v_cvt_pk_bf16_f32 v{P+i}, v{Sc+r}, v{Sc+r+1}\n"
        nx = (j + 1) & 7
        if q == 1: a("s_waitcnt lgkmcnt(0)" + ("\ns_nop 0" if E("ALIGN") == "2" else ""))
        kq = p if q == 0 else pn
        INS = E("INSTREAM")
        def rds():
            if q != 0: return ""
            t = ""
            if j == 7:
                t += f"""
                s_barrier
                s_cmp_eq_u32 s{sSlot}, 2
                s_cselect_b32 s{sT0}, {(-2*SLOT) & 0xffffffff}, {SLOT}
                s_cselect_b32 s{sSlot}, -1, s{sSlot}
                s_add_u32 s{sSlot}, s{sSlot}, 1
                v_add_u32 v{vK1}, s{sT0}, v{vK1}
                v_add_u32 v{vK2}, s{sT0}, v{vK2}
                v_mad_i32_i24 v{vV}, v{vM01}, s{sT0}, v{vV}
                """
            return t + rd_k1(pn, nx) + rd_k2(pn, nx) + rd_v1(pn, nx) + rd_v2(pn, nx)
        if INS and n < 15:
            FA, FF_ = 160, 240
            f = n % 5
            a(mfma(Sn, K1[kq], Q1[qn], CM[qn]))
            a(e(0)+e(1)+e(2)+e(3))
            a(mfma(O[qn], V2[pn if q == 0 else p], P2))
            a(rds())
            a(e(4)+e(5)+e(6)+c(P1,0,0)+c(P1,1,2))
            a(mfma8(Sn, K2[kq], Q2[qn]))
            a(e(7)+e(8)+e(9)+c(P1,2,4)+c(P1,3,6))
            if f == 0 and INS != "2": a("s_waitcnt vmcnt(0)")
            a(mfma(FA + 16*f, FF_, FF_ + 4))
            if f == 0 and INS != "2":
                for k in range(6): a(f"buffer_load_dwordx4 {vr(248, 4)}, v{vL16}, s[8:11], s{sT1} offen offset:{(k%4)*1024}")
            a(e(10)+e(11)+e(12)+c(P2,0,8)+c(P2,1,10))
            a(mfma(O[q], V1[p], P1))
            a(e(13)+e(14)+e(15)+c(P2,2,12)+c(P2,3,14))
        else:
            a(mfma(Sn, K1[kq], Q1[qn], "0" if E("NOCM") else CM[qn]))
            a(e(0)+e(1)+e(2)+e(3)+c(P1,0,0)+c(P1,1,2))
            a(mfma(O[qn], V2[pn if q == 0 else p], P2))
            a(rds())
            a(e(4)+e(5)+e(6)+e(7)+c(P1,2,4)+c(P1,3,6))
            a(mfma8(Sn, K2[kq], Q2[qn]))
            a(e(8)+e(9)+e(10)+e(11)+c(P2,0,8)+c(P2,1,10))
            a(mfma(O[q], V1[p], P1))
            a(e(12)+e(13)+e(14)+e(15)+c(P2,2,12)+c(P2,3,14))
    a(f"""
    s_add_u32 s{sC}, s{sC}, 1
    s_cmp_lt_u32 s{sC}, 8
    s_cbranch_scc1 {L}
    s_nop 0
    """)
    a(mfma(O[1], V2[1], P2))
    a(stamp(3))
    a(f"""
    s_mov_b32 s{sPass}, 0
    s_lshr_b32 s{sA}, s{sHead}, 1
    s_mul_i32 s{sA}, s{sA}, 5
    s_mul_i32 s3, s{sT}, 80
    s_add_u32 s{sA}, s{sA}, s3
    s_lshl_b32 s{sA}, s{sA}, 9
    s_add_u32 s{sA}, s{sA}, {OF_OFF}
    s_add_u32 s{sB}, s{sA}, s{sOdd}
    s_lshl_b32 s3, s{sOdd}, 7
    s_add_u32 s{sA}, s{sA}, s3
    v_and_b32 v9, 31, v{vLane}
    v_lshrrev_b32 v8, 5, v{vLane}
    v_lshlrev_b32 v9, 4, v9
    v_lshl_add_u32 v8, v8, 9, v9
    s_waitcnt lgkmcnt(0)
    """)
    O0 = O[0]
    a(f"""
    L_{name}_norm:
    v_mov_b32 v3, v{O0+8}
    v_mov_b32 v11, v{O0+8}
    s_mov_b32 s{sT0}, {hexf(2.0**-40)}
    s_mov_b32 s{sT1}, {hexf(2.0**60)}
    v_permlane32_swap_b32 v3, v11
    v_pk_add_f32 v[60:61], {vr(O0,2)}, {vr(O0+2,2)}
    v_rcp_f32 v10, v11
    v_pk_add_f32 v[62:63], {vr(O0+4,2)}, {vr(O0+6,2)}
    v_med3_f32 v3, v11, s{sT0}, v11
    v_pk_add_f32 v[60:61], v[60:61], {vr(O0+8,2)}
    v_pk_add_f32 v[62:63], v[62:63], {vr(O0+10,2)}
    v_min_f32 v3, s{sT1}, v11
    v_max_f32 v3, s{sT0}, v3
    v_pk_add_f32 v[60:61], v[60:61], v[62:63]
    v_cmp_eq_f32 s[{sOk}:{sOk+1}], v3, v11
    v_add_f32 v60, v60, v61
    s_movk_i32 s3, 0x1f8
    v_cmp_class_f32 vcc, v60, s3
    s_and_b64 s[{sOk}:{sOk+1}], s[{sOk}:{sOk+1}], vcc
    s_cmp_eq_u64 s[{sOk}:{sOk+1}], -1
    {"s_nop 0" if E("NOSLOW") else "s_cbranch_scc0 L_"+name+"_slow"}
    L_{name}_fin:
    """)
    for p in range(6): a(f"v_pk_mul_f32 {vr(O0+2*p,2)}, {vr(O0+2*p,2)}, v[10:11] op_sel_hi:[1,0]")
    for p in range(6): a(f"v_cvt_pk_bf16_f32 v{O0+p}, v{O0+2*p}, v{O0+2*p+1}")
    a(f"""
    s_nop 0
    v_permlane32_swap_b32 v{O0}, v{O0+2}
    v_permlane32_swap_b32 v{O0+1}, v{O0+3}
    buffer_store_dwordx4 {vr(O0,4)}, v8, s[8:11], s{sA} offen sc0 sc1
    s_mov_b64 exec, 0xffffffff
    buffer_store_dwordx2 {vr(O0+4,2)}, v9, s[8:11], s{sB} offen offset:2048 sc0 sc1
    s_mov_b64 exec, -1
    s_cmp_lg_u32 s{sPass}, 0
    s_cbranch_scc1 L_{name}_aend
    s_mov_b32 s{sPass}, 1
    s_add_u32 s{sA}, s{sA}, 40960
    s_add_u32 s{sB}, s{sB}, 40960
    """)
    for r in range(12): a(f"v_mov_b32 v{O[0]+r}, v{O[1]+r}")
    for r in range(4): a(f"v_mov_b32 v{Q1[0]+r}, v{Q1[1]+r}")
    for r in range(2): a(f"v_mov_b32 v{Q2[0]+r}, v{Q2[1]+r}")
    a(f"s_branch L_{name}_norm")
    a(f"L_{name}_aend:")
    if DIAG: a(stamp(4))
    a(f"""
    s_lshl_b32 s{sT0}, s{sT}, 8
    s_add_u32 s{sT0}, s{sT0}, {FLG_OFF}
    s_add_u32 s{sT1}, s{sT0}, 256
    v_mov_b32 v8, 0
    v_mov_b32 v9, 1
    s_waitcnt vmcnt(0)
    s_mov_b64 exec, 1
    buffer_atomic_add v9, v8, s[8:11], s{sT0} offen sc1
    buffer_atomic_add v9, v8, s[8:11], s{sT1} offen sc1
    s_mov_b64 exec, -1
    """)
    if DIAG:
        a(stamp(5)); a(stamp_flush(1, 6, 8))
    a("s_endpgm")
    vM, vAl, vTm = 128, 129, 130
    a(f"""
    L_{name}_slow:
    v_and_b32 v10, 31, v{vLane}
    v_lshrrev_b32 v11, 5, v{vLane}
    v_lshlrev_b32 v{vK2}, 4, v10
    v_lshl_add_u32 v{vK1}, v11, 9, v{vK2}
    v_add_u32 v{vK2}, s{sOdd}, v{vK2}
    v_mul_u32_u24 v{vV}, 320, v11
    v_lshl_add_u32 v{vV}, v10, 4, v{vV}
    v_mov_b32 v{vM}, 0xff800000
    v_mov_b32 v3, 0x3f803f80
    """)
    for r in range(4): a(f"v_mov_b32 v{V1[0]+r}, v3\nv_mov_b32 v{V2[0]+r}, v3")
    for r in range(16): a(f"v_mov_b32 v{O0+r}, 0")
    S0 = SS[0]
    a(f"""
    s_mov_b32 s{sC}, 0
    s_add_u32 s{sKG}, s{sF}, {KF_OFF}
    s_add_u32 s{sK2G}, s{sCQ}, {KF_OFF}
    s_mul_i32 s{sVG}, s{sHead}, {128*640}
    s_add_u32 s{sVG}, s{sVG}, {VF_OFF}
    L_{name}_sl:
    buffer_load_dwordx4 {vr(K1[0],4)}, v{vK1}, s[8:11], s{sKG} offen
    buffer_load_dwordx2 {vr(K2[0],2)}, v{vK2}, s[8:11], s{sK2G} offen
    s_mov_b64 exec, s[{sMaskV}:{sMaskV+1}]
    buffer_load_dwordx4 {vr(V1[0],4)}, v{vV}, s[8:11], s{sVG} offen
    buffer_load_dwordx4 {vr(V2[0],4)}, v{vV}, s[8:11], s{sVG} offen offset:640
    s_mov_b64 exec, -1
    s_waitcnt vmcnt(2)
    """)
    a(mfma(S0, K1[0], Q1[0], "0")); a(mfma8(S0, K2[0], Q2[0]))
    a("s_nop 11")
    a(f"v_max3_f32 v{vTm}, v{S0}, v{S0+1}, v{S0+2}")
    for r in range(3, 15, 2): a(f"v_max3_f32 v{vTm}, v{vTm}, v{S0+r}, v{S0+r+1}")
    a(f"""
    v_max3_f32 v{vTm}, v{vTm}, v{S0+15}, v{vM}
    v_mov_b32 v3, v{vTm}
    s_nop 1
    v_permlane32_swap_b32 v{vTm}, v3
    v_max_f32 v{vTm}, v{vTm}, v3
    v_sub_f32 v{vAl}, v{vM}, v{vTm}
    v_exp_f32 v{vAl}, v{vAl}
    v_mov_b32 v{vM}, v{vTm}
    """)
    for r in range(16): a(f"v_sub_f32 v{S0+r}, v{S0+r}, v{vM}")
    for r in range(16): a(f"v_exp_f32 v{S0+r}, v{S0+r}")
    for r in range(16): a(f"v_mul_f32 v{O0+r}, v{O0+r}, v{vAl}")
    for i in range(4): a(f"v_cvt_pk_bf16_f32 v{P1+i}, v{S0+2*i}, v{S0+2*i+1}")
    for i in range(4): a(f"v_cvt_pk_bf16_f32 v{P2+i}, v{S0+8+2*i}, v{S0+8+2*i+1}")
    a("s_waitcnt vmcnt(0)\ns_nop 0")
    a(mfma(O0, V1[0], P1)); a(mfma(O0, V2[0], P2))
    a(f"""
    s_add_u32 s{sKG}, s{sKG}, 40960
    s_add_u32 s{sK2G}, s{sK2G}, 40960
    s_add_u32 s{sVG}, s{sVG}, 1280
    s_add_u32 s{sC}, s{sC}, 1
    s_cmp_lt_u32 s{sC}, 64
    s_nop 6
    s_cbranch_scc1 L_{name}_sl
    s_nop 3
    v_mov_b32 v3, v{O0+8}
    v_mov_b32 v11, v{O0+8}
    s_nop 1
    v_permlane32_swap_b32 v3, v11
    v_rcp_f32 v10, v11
    s_nop 0
    s_branch L_{name}_fin
    """)
    vK2D, vL16b = 3, 19
    ACC = [96 + 16*f for f in range(5)]
    FR = lambda b: 24 + 24*b
    a(f"""
    L_{name}_bg:
    s_sub_u32 s{sBW}, s{sW}, 4
    v_mul_u32_u24 v{vK2D}, 40960, v11
    v_and_b32 v4, 31, v{vLane}
    v_lshl_add_u32 v{vK2D}, v4, 4, v{vK2D}
    v_add_u32 v{vL16b}, 4096, v{vL16}
    s_mul_i32 s3, s{sBW}, {2*40960}
    s_add_u32 s3, s3, {KF_OFF}
    s_add_u32 s{sKG}, s3, s{sF}
    s_add_u32 s{sK2G}, s3, s{sCQ}
    s_mul_i32 s{sVG}, s{sHead}, {128*640}
    s_mul_i32 s3, s{sBW}, 2560
    s_add_u32 s{sVG}, s{sVG}, s3
    s_add_u32 s{sVG}, s{sVG}, {VF_OFF}
    s_and_b32 s{sFQ}, s2, 1
    s_lshl_b32 s{sFQ}, s{sFQ}, 1
    s_and_b32 s3, s{sT1}, 1
    s_add_u32 s{sFQ}, s{sFQ}, s3
    s_bfe_u32 s{sTF}, s2, 0x20001
    s_lshl_b32 s{sTF}, s{sTF}, 4
    s_lshr_b32 s3, s{sT1}, 1
    s_add_u32 s{sTF}, s{sTF}, s3
    s_waitcnt lgkmcnt(0)
    """)
    a(srd(8, "s4", "s5", WS_SIZE))
    vq = VmQ()
    def dma(c):
        sl = (c % 3) * SLOT
        t = f"""
        s_lshl_b32 s{sT0}, s{sBW}, 11
        s_add_u32 m0, s{sT0}, {sl}
        s_add_u32 s{sT1}, s{sKG}, 40960
        buffer_load_dwordx4 v{vL16}, s[8:11], s{sKG} offen lds
        s_add_u32 m0, s{sT0}, {sl+1024}
        s_lshl_b32 s{sT0}, s{sBW}, 10
        buffer_load_dwordx4 v{vL16}, s[8:11], s{sT1} offen lds
        s_add_u32 m0, s{sT0}, {sl+8192}
        s_mul_i32 s{sT0}, s{sBW}, 2560
        buffer_load_dwordx4 v{vK2D}, s[8:11], s{sK2G} offen lds
        s_add_u32 m0, s{sT0}, {sl+12288}
        s_add_u32 s{sT1}, s{sVG}, 1024
        buffer_load_dwordx4 v{vL16}, s[8:11], s{sVG} offen lds
        s_add_u32 m0, s{sT0}, {sl+12288+1024}
        s_add_u32 s{sKG}, s{sKG}, {8*40960}
        buffer_load_dwordx4 v{vL16}, s[8:11], s{sT1} offen lds
        s_add_u32 m0, s{sT0}, {sl+12288+2048}
        s_add_u32 s{sT1}, s{sVG}, 2048
        s_mov_b64 exec, 0xffffffff
        buffer_load_dwordx4 v{vL16}, s[8:11], s{sT1} offen lds
        s_mov_b64 exec, -1
        s_add_u32 s{sK2G}, s{sK2G}, {8*40960}
        s_add_u32 s{sVG}, s{sVG}, 10240
        """
        vq.issue(f"D{c}", 6)
        return t
    WP, AO, A4, GF, X = 24, 184, 200, 216, 236
    vOq = 4
    OL, X4L, W4L = 40960, 81920, 0
    sXO, sX4 = 55, 56
    a(dma(0))
    a(f"""
    s_mul_i32 s{sA}, s{sTF}, 96
    s_mul_i32 s3, s{sBW}, 24
    s_add_u32 s{sA}, s{sA}, s3
    s_lshl_b32 s{sA}, s{sA}, 10
    s_add_u32 s{sA}, s{sA}, {HF_OFF}
    s_mul_i32 s{sB}, s3, 20
    s_mul_i32 s3, s{sFQ}, 5
    s_add_u32 s{sB}, s{sB}, s3
    s_lshl_b32 s{sB}, s{sB}, 10
    s_add_u32 s{sB}, s{sB}, {W2F_OFF}
    v_lshrrev_b32 v4, 2, v{vLane}
    v_mul_u32_u24 v4, 640, v4
    v_and_b32 v5, 3, v{vLane}
    v_lshl_add_u32 v4, v5, 2, v4
    v_add_u32 v4, {ONES}, v4
    v_mov_b32 v5, 0x3f803f80
    v_mov_b32 v6, 0
    ds_write_b32 v4, v5
    ds_write_b32 v4, v6 offset:16
    """)
    a(dma(1)); a(dma(2))
    def ld(s):
        vq.issue(f"L{s}", 6)
        return gemm_loads(FR(s % 3), vL16, vL16b, 8, sA, sB)
    a(vq.wait("D0")); a("s_waitcnt lgkmcnt(0)\ns_barrier")
    if not E("NOFFN"):
        for s in range(3): a(ld(s))
    s = 0
    for c in range(8):
        if c <= 4 and not E("NOFFN"):
            for k in range(5 if c < 4 else 4):
                a(vq.wait(f"L{s}"))
                a(gemm_comp(FR(s % 3), ACC, s == 0))
                if s + 3 < 24: a(ld(s + 3))
                s += 1
        if c == 5:
            a(partial_write(ACC, vLane, sBW, sT0, PART))
            a("s_waitcnt lgkmcnt(0)")
        if c == 6:
            a(f"""
            v_and_b32 v4, 31, v{vLane}
            v_lshrrev_b32 v5, 5, v{vLane}
            """)
            a(srd(16, "s6", "s7", S*D*2))
            a(srd(20, "s12", "s13", S*D*2))
            a(f"""
            v_mul_u32_u24 v12, 1280, v4
            v_lshl_add_u32 v13, v5, 4, v12
            v_lshl_add_u32 v12, v5, 3, v12
            v_mul_u32_u24 v15, {PSTR}, v4
            v_lshl_add_u32 v15, v5, 4, v15
            s_mul_i32 s{sXO}, s{sTF}, {32*1280}
            s_mul_i32 s3, s{sFQ}, 320
            s_add_u32 s{sXO}, s{sXO}, s3
            s_lshl_b32 s3, s{sBW}, 4
            s_add_u32 s{sX4}, s{sXO}, s3
            s_add_u32 s{sX4}, s{sX4}, 256
            s_lshl_b32 s3, s{sBW}, 6
            s_add_u32 s{sXO}, s{sXO}, s3
            """)
            for i in range(4): a(f"buffer_load_dwordx2 {vr(X+2*i,2)}, v12, s[16:19], s{sXO} offen offset:{16*i}")
            a(f"buffer_load_dwordx2 {vr(X+8,2)}, v12, s[16:19], s{sX4} offen")
            vq.issue("X", 5)
        if c in (6, 7):
            for qd in ((0, 1) if c == 6 else (2, 3)):
                a(f"""
                s_add_u32 s3, s{sBW}, {qd}
                s_and_b32 s3, s3, 3
                s_mul_i32 s{sB}, s3, {10*20*1024}
                s_mul_i32 s{sT0}, s{sFQ}, 5
                s_add_u32 s{sT0}, s{sT0}, s{sBW}
                s_lshl_b32 s{sT0}, s{sT0}, 10
                s_add_u32 s{sB}, s{sB}, s{sT0}
                s_add_u32 s{sB}, s{sB}, {WOF_OFF}
                s_mul_i32 s3, s3, 10240
                s_add_u32 s3, s3, {OL}
                v_add_u32 v{vOq+qd}, s3, v{vL16}
                """)
                for j in range(10):
                    a(f"buffer_load_dwordx4 {vr(WP+4*(10*qd+j),4)}, v{vL16}, s[8:11], s{sB} offen")
                    if j < 9: a(f"s_add_u32 s{sB}, s{sB}, {20*1024}")
                vq.issue("W", 10)
        if c <= 6: a(vq.wait(f"D{c+1}"))
        a("s_barrier")
        if c + 3 <= 7: a(dma(c + 3))
    a(f"""
    s_mul_i32 s{sB}, s{sBW}, {10*20*1024}
    s_mul_i32 s{sT0}, s{sFQ}, 5
    s_add_u32 s{sT0}, s{sT0}, 4
    s_lshl_b32 s{sT0}, s{sT0}, 10
    s_add_u32 s{sB}, s{sB}, s{sT0}
    s_add_u32 s{sB}, s{sB}, {WOF_OFF}
    s_mul_i32 s{sT0}, s{sBW}, 10240
    s_add_u32 s{sT0}, s{sT0}, {W4L}
    v_add_u32 v14, s{sT0}, v{vL16}
    """)
    for j in range(10):
        a(f"s_add_u32 m0, s{sT0}, {j*1024}\ns_nop 0\nbuffer_load_dwordx4 v{vL16}, s[8:11], s{sB} offen lds")
        if j < 9: a(f"s_add_u32 s{sB}, s{sB}, {20*1024}")
    a(f"""
    s_lshl_b32 s{sT0}, s{sBW}, 7
    s_add_u32 s{sT0}, s{sT0}, {PART}
    v_add_u32 v16, s{sT0}, v15
    s_lshl_b32 s{sT0}, s{sBW}, 5
    s_add_u32 s{sT0}, s{sT0}, {PART+512}
    v_add_u32 v15, s{sT0}, v15
    """)
    TB = [184, 200]
    def grd(i):
        b = TB[i & 1]
        return "".join((f"ds_read_b128 {vr(b+4*w,4)}, v16 offset:{w*PBUF+32*i}\n" if i < 4 else f"ds_read_b128 {vr(b+4*w,4)}, v15 offset:{w*PBUF}\n") for w in range(4))
    a(grd(0))
    for i in range(5):
        b = TB[i & 1]; d = GF + 4*i
        if i < 4: a(grd(i + 1))
        a(f"s_waitcnt lgkmcnt({4 if i < 4 else 0})")
        for e in range(4): a(f"v_add_f32 v{b+e}, v{b+e}, v{b+4+e}\nv_add_f32 v{b+8+e}, v{b+8+e}, v{b+12+e}")
        for e in range(4): a(f"v_add_f32 v{d+e}, v{b+e}, v{b+8+e}")
    a(f"s_mov_b32 s{sT0}, {hexf(-1.4426950408889634)}")
    GT = 8
    for r in range(0, 20, 4):
        for e in range(4): a(f"v_mul_f32 v{GT+e}, s{sT0}, v{GF+r+e}")
        for e in range(4): a(f"v_exp_f32 v{GT+e}, v{GT+e}")
        for e in range(4): a(f"v_add_f32 v{GT+e}, 1.0, v{GT+e}")
        for e in range(4): a(f"v_rcp_f32 v{GT+e}, v{GT+e}")
        for e in range(4): a(f"v_mul_f32 v{GF+r+e}, v{GF+r+e}, v{GT+e}")
    a(f"""
    s_cmp_lg_u32 s{sBW}, 0
    s_cbranch_scc1 L_{name}_ready
    s_lshl_b32 s{sT0}, s{sTF}, 8
    s_add_u32 s{sT0}, s{sT0}, {FLG_OFF}
    v_mov_b32 v8, 0
    s_mov_b32 s{sT1}, 0
    L_{name}_poll:
    buffer_load_dword v9, v8, s[8:11], s{sT0} offen sc1
    s_add_u32 s{sT1}, s{sT1}, 1
    s_waitcnt vmcnt(0)
    v_readfirstlane_b32 s3, v9
    s_cmp_ge_u32 s3, 32
    s_cbranch_scc1 L_{name}_ready
    s_cmp_ge_u32 s{sT1}, 0x40000
    s_cbranch_scc1 L_{name}_ready
    s_sleep {E('SLP', '2')}
    s_branch L_{name}_poll
    L_{name}_ready:
    s_waitcnt vmcnt(0) lgkmcnt(0)
    s_barrier
    """)
    if DIAG: a(stamp(1))
    a(f"""
    s_mul_i32 s{sA}, s{sTF}, 40
    s_mul_i32 s3, s{sBW}, 10
    s_add_u32 s{sA}, s{sA}, s3
    s_lshl_b32 s{sA}, s{sA}, 10
    s_add_u32 s{sA}, s{sA}, {OF_OFF}
    s_mul_i32 s{sT0}, s{sBW}, 10240
    s_add_u32 s{sT0}, s{sT0}, {OL}
    """)
    for j in range(10):
        a(f"s_add_u32 m0, s{sT0}, {j*1024}\ns_nop 0\nbuffer_load_dwordx4 v{vL16}, s[8:11], s{sA} offen sc1 lds")
        if j < 9: a(f"s_add_u32 s{sA}, s{sA}, 1024")
    OB = [246, 250]; W4 = [8, 16]
    def rdo(u): return f"ds_read_b128 {vr(OB[u & 1],4)}, v{vOq + u//10} offset:{(u % 10)*1024}\n"
    def rdw(u): return f"ds_read_b128 {vr(W4[u & 1],4)}, v14 offset:{u*1024}\n"
    a("s_waitcnt vmcnt(8)")
    a(rdo(0) + rdw(0))
    for u in range(40):
        nxt = ""
        if u + 1 < 10 and (u + 1) % 2 == 0: a(f"s_waitcnt vmcnt({max(0, 10 - (u + 1) - 2)})")
        if u + 1 == 10: a("s_waitcnt vmcnt(0)\ns_barrier")
        if u + 1 < 40: nxt = rdo(u + 1) + (rdw(u + 1) if u + 1 < 10 else "")
        a(nxt)
        cnt = (1 if u + 1 < 40 else 0) + (1 if u + 1 < 10 else 0)
        a(f"s_waitcnt lgkmcnt({cnt})")
        a(mfma(AO, WP + 4*u, OB[u & 1], "0" if u == 0 else None))
        if u < 10: a(mfma(A4, W4[u & 1], OB[u & 1], "0" if u == 0 else None))
    if DIAG: a(stamp(2))
    a(f"""
    s_lshl_b32 s{sT0}, s{sBW}, 12
    s_add_u32 s{sT0}, s{sT0}, {X4L}
    v_add_u32 v14, s{sT0}, v{vL16}
    s_lshl_b32 s{sT0}, s{sBW}, 10
    s_add_u32 s{sT0}, s{sT0}, {X4L}
    v_add_u32 v15, s{sT0}, v{vL16}
    """)
    for i in range(4): a(f"ds_write_b128 v14, {vr(A4+4*i,4)} offset:{i*1024}")
    a("s_waitcnt lgkmcnt(0)\ns_barrier")
    for w in range(4): a(f"ds_read_b128 {vr(24+4*w,4)}, v15 offset:{w*4096}")
    def fin(sreg, g, x, d):
        t = f"""
        v_lshlrev_b32 v40, 16, v{x}
        v_and_b32 v41, 0xffff0000, v{x}
        v_lshlrev_b32 v42, 16, v{x+1}
        v_and_b32 v43, 0xffff0000, v{x+1}
        """
        for e in range(4): t += f"v_fma_f32 v{40+e}, v{sreg+e}, v{g+e}, v{40+e}\n"
        t += f"v_cvt_pk_bf16_f32 v{d}, v40, v41\nv_cvt_pk_bf16_f32 v{d+1}, v42, v43\n"
        return t
    for i in range(4): a(fin(AO+4*i, GF+4*i, X+2*i, 48+2*i))
    a(f"""
    v_permlane32_swap_b32 v48, v50
    v_permlane32_swap_b32 v49, v51
    v_permlane32_swap_b32 v52, v54
    v_permlane32_swap_b32 v53, v55
    buffer_store_dwordx4 v[48:51], v13, s[20:23], s{sXO} offen
    buffer_store_dwordx4 v[52:55], v13, s[20:23], s{sXO} offen offset:32
    s_waitcnt lgkmcnt(0)
    """)
    for e in range(4): a(f"v_add_f32 v{24+e}, v{24+e}, v{28+e}\nv_add_f32 v{32+e}, v{32+e}, v{36+e}")
    for e in range(4): a(f"v_add_f32 v{24+e}, v{24+e}, v{32+e}")
    a(fin(24, GF+16, X+8, 56))
    a(f"buffer_store_dwordx2 v[56:57], v12, s[20:23], s{sX4} offen")
    if DIAG: a(stamp(3))
    a(f"L_{name}_end:")
    if DIAG:
        a(stamp(4)); a("s_waitcnt vmcnt(0)"); a(stamp(5)); a(stamp_flush(1, 6, 8))
    a(f"L_{name}_exit:\ns_endpgm")
    a(kernel_desc(name, 254))
    return a.text()
```

```python
from common import *
PSTR = 656
PBUF = 32 * PSTR
class VmQ:
    def __init__(self): self.q = []
    def issue(self, tag, n=1): self.q += [tag] * n
    def wait(self, tag):
        if tag not in self.q: return ""
        last = max(i for i, t in enumerate(self.q) if t == tag)
        n = len(self.q) - 1 - last
        self.q = self.q[last+1:]
        return f"s_waitcnt vmcnt({n})\n"
def gemm_loads(f, vL16, vL16b, srd, sA, sB, sc=""):
    t = f"buffer_load_dwordx4 {vr(f,4)}, v{vL16}, s[{srd}:{srd+3}], s{sA} offen{sc}\n"
    for k in range(4): t += f"buffer_load_dwordx4 {vr(f+4+4*k,4)}, v{vL16}, s[{srd}:{srd+3}], s{sB} offen offset:{k*1024}{sc}\n"
    t += f"buffer_load_dwordx4 {vr(f+20,4)}, v{vL16b}, s[{srd}:{srd+3}], s{sB} offen{sc}\n"
    t += f"s_add_u32 s{sA}, s{sA}, 1024\ns_add_u32 s{sB}, s{sB}, {20*1024}\n"
    return t
def gemm_comp(f, ACC, first):
    return "".join(mfma(ACC[k], f+4+4*k, f, "0" if first else None) + "\n" for k in range(5))
def partial_write(ACC, vLane, sWv, sT0, base, vt=4):
    t = f"""
    v_and_b32 v{vt}, 31, v{vLane}
    v_lshrrev_b32 v{vt+1}, 5, v{vLane}
    v_mul_u32_u24 v{vt}, {PSTR}, v{vt}
    v_lshl_add_u32 v{vt}, v{vt+1}, 4, v{vt}
    s_mul_i32 s{sT0}, s{sWv}, {PBUF}
    s_add_u32 s{sT0}, s{sT0}, {base}
    v_add_u32 v{vt}, s{sT0}, v{vt}
    s_nop 6
    """
    for f in range(5):
        for i in range(4):
            t += f"ds_write_b128 v{vt}, {vr(ACC[f]+4*i,4)} offset:{(32*f+8*i)*4}\n"
    return t
def unit_addr(vTid, base, vL=6, vG=7):
    return f"""
    v_lshrrev_b32 v4, 3, v{vTid}
    v_and_b32 v5, 7, v{vTid}
    v_mul_u32_u24 v{vL}, {PSTR}, v4
    v_lshl_add_u32 v{vL}, v5, 4, v{vL}
    v_add_u32 v{vL}, {base}, v{vL}
    v_mul_u32_u24 v{vG}, 1280, v4
    v_lshl_add_u32 v{vG}, v5, 3, v{vG}
    """
def reduce(dst, vL=6, tmp=24):
    t = ""
    for i in range(5):
        for w in range(4): t += f"ds_read_b128 {vr(tmp+16*i+4*w,4)}, v{vL} offset:{w*PBUF+128*i}\n"
        if i == 2: t += "s_waitcnt lgkmcnt(8)\n"
    for i in range(5):
        b = tmp + 16*i; d = dst + 4*i
        t += f"s_waitcnt lgkmcnt({min(15, 4*(4-i))})\n" if i >= 1 else "s_waitcnt lgkmcnt(8)\n"
        for e in range(4):
            t += f"v_add_f32 v{b+e}, v{b+e}, v{b+4+e}\nv_add_f32 v{b+8+e}, v{b+8+e}, v{b+12+e}\n"
        for e in range(4): t += f"v_add_f32 v{d+e}, v{b+e}, v{b+8+e}\n"
    return t
```

```python
from common import *
CSL = 147456
K1_LDS = CSL + 512
XS, WS0 = 32768, 98304
ST = {"0": "", "1": " sc0 sc1", "2": " nt", "3": " sc1", "4": " sc0 sc1 nt"}[E("WT", "1")]
def k1(name, fused=None, sym=None):
    a = Asm()
    a(kernel_head(sym or name))
    NSTAT = 5 if fused else 4
    DONE = f"L_{name}_rdone" if fused else f"L_{name}_exit"
    sW, sTB, sCT, sLD, sXB, sWB, sM0X, sKS, sST, sT0, sT1, sCur = 32,33,34,35,36,37,38,39,40,41,42,43
    sScale, sWM, sWN, sFA, sDX, sDW, sXG, sWG, sP, sLD6, sMX, sMW = 45,46,47,48,49,50,51,52,53,54,60,61
    DBG = 56
    vLane = 1
    vXD, vWD = 194, 198
    vXA, vWA = 4, 8
    vCs, vTmp = 12, 14
    vEA = 16
    vAB = 24
    vPoll, vPollA = 28, 29
    FR = [32, 48]
    ACC = lambda ft, tt: 64 + (ft*2+tt)*16
    VST = 128
    a(f"""
    s_cmp_ge_u32 s2, 256
    s_cbranch_scc1 L_{name}_exit
    """)
    a(stamp(0))
    a(f"""
    s_load_dwordx4 s[4:7], s[0:1], 0
    s_load_dwordx2 s[8:9], s[0:1], 16
    s_load_dwordx4 s[12:15], s[0:1], 32
    s_load_dwordx2 s[16:17], s[0:1], 64
    s_load_dwordx2 s[18:19], s[0:1], 56
    v_lshrrev_b32 v2, 6, v0
    v_and_b32 v{vLane}, 63, v0
    v_readfirstlane_b32 s{sW}, v2
    s_and_b32 s{sT0}, s2, 7
    s_lshr_b32 s{sT1}, s2, 3
    s_and_b32 s{sKS}, s{sT1}, 3
    s_and_b32 s3, s{sT0}, 1
    s_lshl_b32 s3, s3, 2
    s_add_u32 s{sTB}, s{sKS}, s3
    s_lshr_b32 s{sCT}, s{sT0}, 1
    s_mul_i32 s{sCT}, s{sCT}, 7
    s_lshr_b32 s3, s{sT1}, 2
    s_add_u32 s{sCT}, s{sCT}, s3
    s_cmp_ge_u32 s3, 7
    s_cbranch_scc1 L_{name}_spare
    s_cmp_ge_u32 s{sCT}, 27
    s_cbranch_scc1 L_{name}_spare
    """)
    rot = E("ROT", "0")
    if rot == "1":
        a(f"""
        s_mul_i32 s3, s3, 3
        s_mul_i32 s{sKS}, s{sKS}, 5
        s_lshr_b32 s{sKS}, s{sKS}, 1
        s_add_u32 s{sKS}, s{sKS}, s3
        s_cmp_ge_u32 s{sKS}, 20
        s_cselect_b32 s3, 20, 0
        s_sub_u32 s{sKS}, s{sKS}, s3
        s_cmp_ge_u32 s{sKS}, 10
        s_cselect_b32 s3, 10, 0
        s_sub_u32 s{sKS}, s{sKS}, s3
        """)
    elif rot == "2":
        a(f"""
        s_add_u32 s3, s3, s{sKS}
        s_and_b32 s3, s3, 1
        s_mul_i32 s{sKS}, s3, 5
        """)
    else:
        a(f"s_mov_b32 s{sKS}, 0")
    a(f"""
    s_cmp_ge_u32 s{sCT}, 15
    s_cselect_b32 s{sLD}, 3072, 3840
    s_cselect_b32 s3, 15, 0
    s_sub_u32 s3, s{sCT}, s3
    s_lshl_b32 s{sWB}, s3, 8
    s_mul_i32 s{sXB}, s{sTB}, {256*1280}
    s_lshl_b32 s{sM0X}, s{sW}, 10
    s_lshl_b32 s{sLD6}, s{sLD}, 6
    s_and_b32 s{sWM}, s{sW}, 3
    s_lshr_b32 s{sWN}, s{sW}, 2
    s_and_b32 s{sFA}, s{sW}, 1
    s_lshr_b32 s{sP}, s{sWM}, 1
    v_lshrrev_b32 v12, 4, v{vLane}
    s_lshl_b32 s3, s{sW}, 2
    v_add_u32 v13, s3, v12
    v_xor_b32 v5, v13, v{vLane}
    v_and_b32 v5, 7, v5
    v_lshrrev_b32 v4, 3, v{vLane}
    v_lshl_add_u32 v4, s{sW}, 3, v4
    v_mul_u32_u24 v4, 1280, v4
    v_lshl_add_u32 v{vXD}, v5, 4, v4
    v_add_u32 v{vXD+1}, {64*1280}, v{vXD}
    v_add_u32 v{vXD+2}, {128*1280}, v{vXD}
    v_add_u32 v{vXD+3}, {192*1280}, v{vXD}
    v_lshlrev_b32 v5, 2, v12
    v_xor_b32 v5, v5, v{vLane}
    v_and_b32 v5, 15, v5
    v_mul_u32_u24 v4, s{sLD}, v13
    v_lshl_add_u32 v{vWD}, v5, 4, v4
    s_lshl_b32 s3, s{sLD}, 5
    v_add_u32 v{vWD+1}, s3, v{vWD}
    v_and_b32 v192, 31, v{vLane}
    v_lshrrev_b32 v193, 5, v{vLane}
    v_bfe_u32 v14, v{vLane}, 1, 3
    s_lshl_b32 s3, s{sP}, 1
    v_add_u32 v15, s3, v193
    v_xor_b32 v14, v14, v15
    v_lshl_add_u32 v15, s{sWM}, 6, v192
    v_lshlrev_b32 v15, 7, v15
    v_lshl_add_u32 v{vXA}, v14, 4, v15
    v_xor_b32 v{vXA+1}, 32, v{vXA}
    v_xor_b32 v{vXA+2}, 64, v{vXA}
    v_xor_b32 v{vXA+3}, 0x60, v{vXA}
    v_bfe_u32 v14, v{vLane}, 2, 2
    v_lshl_add_u32 v15, v193, 3, v14
    s_lshl_b32 s{sT0}, s{sP}, 4
    v_add_u32 v15, s{sT0}, v15
    s_lshl_b32 s3, s{sWN}, 1
    s_add_u32 s3, s3, s{sFA}
    v_xor_b32 v14, s3, v14
    v_lshlrev_b32 v14, 6, v14
    v_lshl_add_u32 v15, v15, 8, v14
    v_and_b32 v14, 1, v12
    v_lshl_add_u32 v15, v14, 5, v15
    v_and_b32 v14, 3, v{vLane}
    v_lshl_add_u32 v15, v14, 3, v15
    v_add_u32 v{vWA}, {WS0}, v15
    v_xor_b32 v{vWA+1}, 0x1000, v{vWA}
    v_xor_b32 v{vWA+2}, 64, v{vWA}
    v_xor_b32 v{vWA+3}, 0x1040, v{vWA}
    v_and_b32 v14, 127, v0
    v_lshlrev_b32 v14, 2, v14
    v_add_u32 v14, {CSL}, v14
    v_mov_b32 v{vCs}, 0
    v_mov_b32 v{vCs+1}, 0
    ds_write_b32 v14, v{vCs}
    s_mov_b32 s{sST}, 0
    s_mov_b32 s{sCur}, 0
    s_mov_b32 s{sScale}, 0xffff0000
    s_waitcnt lgkmcnt(0)
    """)
    a(stamp(6))
    a(srd(20, "s4", "s5", S*D*2))
    a(f"""
    s_cmp_ge_u32 s{sCT}, 15
    s_cselect_b32 s24, s12, s6
    s_cselect_b32 s25, s13, s7
    s_cselect_b32 s26, {640*3072}, {640*3840}
    s_mov_b32 s27, 0x00020000
    v_mov_b32 v{vPollA}, 0
    v_mov_b32 v{vEA}, 0
    v_mov_b32 v{vEA+1}, 0
    """)
    a(srd(28, "s16", "s17", WS_SIZE))
    a(srd(DBG, "s18", "s19", 256))
    def issue_pre():
        t = f"s_lshl_b32 s{sXG}, s{sKS}, 7\ns_add_u32 s{sXG}, s{sXG}, s{sXB}\n"
        t += f"s_mul_i32 s{sWG}, s{sLD6}, s{sKS}\ns_add_u32 s{sWG}, s{sWG}, s{sWB}\n"
        t += f"s_add_u32 s{sKS}, s{sKS}, 1\ns_cmp_ge_u32 s{sKS}, 10\ns_cselect_b32 s{sKS}, 0, s{sKS}\n"
        return t
    def dma_m0(i): return f"s_add_u32 m0, s{sMX}, {i*8192}\n" if i < 4 else f"s_add_u32 m0, s{sMW}, {(i-4)*8192}\n"
    def dma_ld(i):
        if i < 4: return f"buffer_load_dwordx4 v{vXD+i}, s[20:23], s{sXG} offen lds\n"
        return f"buffer_load_dwordx4 v{vWD+i-4}, s[24:27], s{sWG} offen lds\n"
    def issue():
        t = issue_pre()
        for i in range(6): t += dma_m0(i) + "s_nop 0\n" + dma_ld(i)
        return t
    def slot_m0(slot_sgpr=None, slot=None):
        if slot is not None:
            return f"s_add_u32 s{sMX}, s{sM0X}, {slot*XS}\ns_add_u32 s{sMW}, s{sM0X}, {WS0+slot*16384}\n"
        return (f"s_lshl_b32 s{sMX}, s{slot_sgpr}, 15\ns_add_u32 s{sMX}, s{sMX}, s{sM0X}\n"
                f"s_lshl_b32 s{sMW}, s{slot_sgpr}, 14\ns_add_u32 s{sMW}, s{sMW}, s{sM0X}\ns_add_u32 s{sMW}, s{sMW}, {WS0}\n")
    if E("PF", "0") != "0":
        PF0 = int(E("PF0", "3"))
        a(f"""
        s_add_u32 s{sT0}, s{sW}, {PF0}
        s_cmp_ge_u32 s{sT0}, 10
        s_cbranch_scc1 L_{name}_nopf
        s_lshr_b32 s{sT1}, s2, 3
        s_mul_i32 s3, s{sT1}, 37
        v_add_u32 v14, s3, v{vLane}
        v_min_u32 v14, 0x3ff, v14
        s_and_b32 s3, s2, 1
        s_lshl_b32 s3, s3, 10
        v_add_u32 v14, s3, v14
        v_mul_u32_u24 v14, 1280, v14
        s_lshl_b32 s3, s{sT0}, 7
        s_mov_b32 exec_hi, 0x1f
        buffer_load_dword v30, v14, s[20:23], s3 offen
        s_mov_b64 exec, 0xffffffff
        s_lshl_b32 s3, s{sT1}, 5
        v_add_u32 v14, s3, v{vLane}
        v_mul_u32_u24 v15, 4682, v14
        v_lshrrev_b32 v15, 16, v15
        v_mul_u32_u24 v18, 14, v15
        v_sub_u32 v14, v14, v18
        s_lshl_b32 s3, s{sT0}, 6
        v_add_u32 v15, s3, v15
        s_bfe_u32 s3, s2, 0x20001
        s_mul_i32 s3, s3, 14
        v_add_u32 v14, s3, v14
        v_min_u32 v14, 53, v14
        v_lshlrev_b32 v14, 7, v14
        v_cmp_gt_u32 vcc, 3840, v14
        v_mul_u32_u24 v18, 3840, v15
        v_mul_u32_u24 v19, 3072, v15
        v_add_u32 v18, v18, v14
        v_add_u32 v19, v19, v14
        v_subrev_u32 v19, 3840, v19
        v_cndmask_b32 v18, v19, v18, vcc
        v_mov_b32 v20, s12
        v_mov_b32 v21, s13
        v_mov_b32 v22, s6
        v_mov_b32 v23, s7
        v_cndmask_b32 v20, v20, v22, vcc
        v_cndmask_b32 v21, v21, v23, vcc
        v_add_co_u32 v20, vcc, v20, v18
        s_nop 1
        v_addc_co_u32 v21, vcc, 0, v21, vcc
        global_load_dword v31, v[20:21], off
        s_mov_b64 exec, -1
        L_{name}_nopf:
        """)
    NPRE = int(E("NPRE", "2"))
    a(f"L_{name}_pre:")
    a(slot_m0(slot_sgpr=sCur)); a(issue())
    a(f"""
    s_add_u32 s{sCur}, s{sCur}, 1
    s_cmp_lt_u32 s{sCur}, {NPRE}
    {"s_barrier" if E("PBAR", "1") == "1" else "s_nop 0"}
    s_cbranch_scc1 L_{name}_pre
    """)
    if NPRE == 2: a(slot_m0(slot_sgpr=sCur) + issue_pre())
    a(f"s_mov_b32 s{sCur}, 0")
    a(stamp(7))
    def late_setup(orient):
        t = f"""
        s_lshl_b32 s{sT0}, s{sTB}, 2
        v_mov_b32 v{vPollA}, s{sT0}
        """
        if orient == 1:
            t += f"""
            s_mov_b32 s{sT1}, 52429
            s_sub_u32 s3, s{sCT}, 10
            s_lshl_b32 s3, s3, 7
            s_lshl_b32 s{sT0}, s{sWN}, 6
            s_add_u32 s3, s3, s{sT0}
            v_mul_u32_u24 v24, 320, v193
            """
            for ft in range(2):
                t += f"""
                s_xor_b32 s{sT0}, s{sFA}, {ft}
                s_lshl_b32 s{sT0}, s{sT0}, 5
                s_add_u32 s{sT0}, s{sT0}, s3
                v_add_u32 v30, s{sT0}, v192
                v_mul_u32_u24 v31, s{sT1}, v30
                v_lshrrev_b32 v31, 20, v31
                v_mul_u32_u24 v25, 20, v31
                v_sub_u32 v25, v30, v25
                v_mul_u32_u24 v31, {128*640}, v31
                v_lshl_add_u32 v31, v25, 4, v31
                v_add_u32 v{vEA+ft}, v31, v24
                """
        return t
    def reads(s, fs):
        if E("NOREAD"): return [""] * 6
        b = FR[fs]
        t = [f"ds_read_b128 {vr(b,4)}, v{vXA+s}\n", f"ds_read_b128 {vr(b+4,4)}, v{vXA+s} offset:4096\n"]
        for ft in range(2):
            o = (s >> 1) * 8192
            t.append(f"ds_read_b64_tr_b16 {vr(b+8+ft*4,2)}, v{vWA+ft*2+(s&1)} offset:{o}\n")
            t.append(f"ds_read_b64_tr_b16 {vr(b+10+ft*4,2)}, v{vWA+ft*2+(s&1)} offset:{o+1024}\n")
        return t
    def compute(s, fs, orient, zero=False, rd=None, extra=None):
        b = FR[fs]; X = [b, b+4]; W = [b+8, b+12]
        t = ""; k = 0
        for ft in range(2):
            for tt in range(2):
                c = "0" if zero else None
                if orient == 0: t += mfma(ACC(ft,tt), W[ft], X[tt], c) + "\n"
                else: t += mfma(ACC(ft,tt), X[tt], W[ft], c) + "\n"
                if extra: t += extra[k]
                elif rd and k < 3: t += rd[2*k] + rd[2*k+1]
                if (s & 1) == 0 and not E("NOCS"):
                    t += f"v_lshlrev_b32 v{vTmp}, 16, v{W[0]+k}\nv_and_b32 v{vTmp+1}, s{sScale}, v{W[0]+k}\n"
                    t += f"v_add_f32 v{vCs}, v{vCs}, v{vTmp}\nv_add_f32 v{vCs+1}, v{vCs+1}, v{vTmp+1}\n"
                k += 1
        return t
    def dma_extra(rd):
        return [dma_m0(0) + rd[0] + dma_ld(0) + dma_m0(1) + rd[1] + dma_ld(1),
                dma_m0(2) + rd[2] + dma_ld(2) + dma_m0(3) + rd[3] + dma_ld(3),
                dma_m0(4) + rd[4] + dma_ld(4) + dma_m0(5) + rd[5] + dma_ld(5), ""]
    a(f"""
    s_waitcnt vmcnt({6*(NPRE-1)})
    s_barrier
    """)
    a(stamp(1))
    a("".join(reads(0, 0)))
    a(f"""
    s_cmp_ge_u32 s{sCT}, 10
    s_cbranch_scc0 L_{name}_ent0
    s_cmp_lt_u32 s{sCT}, 15
    s_cbranch_scc1 L_{name}_ent1
    """)
    def rotate_s():
        return f"""s_cmp_eq_u32 s{sCur}, 2
        s_cselect_b32 s{sDX}, {-2*XS & 0xffffffff}, {XS}
        s_cselect_b32 s{sDW}, {-2*16384 & 0xffffffff}, 16384
        s_cselect_b32 s{sCur}, -1, s{sCur}
        s_add_u32 s{sCur}, s{sCur}, 1
        """
    def rotate_v(lo, hi):
        t = ""
        for r in range(lo, hi):
            t += f"v_add_u32 v{vXA+r}, s{sDX}, v{vXA+r}\nv_add_u32 v{vWA+r}, s{sDW}, v{vWA+r}\n"
        return t
    for orient in range(2):
        L = f"L_{name}_loop{orient}"
        a(f"L_{name}_ent{orient}:")
        a("s_waitcnt lgkmcnt(0)")
        if NPRE == 2: a(compute(0, 0, orient, zero=True, extra=dma_extra(reads(1, 1))))
        else: a(compute(0, 0, orient, zero=True, rd=reads(1, 1)))
        a(f"s_branch {L}_k1")
        a(f"{L}:")
        a("s_waitcnt lgkmcnt(0)")
        a(compute(0, 0, orient, rd=reads(1, 1)))
        a(f"{L}_k1:")
        a("s_waitcnt lgkmcnt(0)")
        r2 = reads(2, 0)
        a(compute(1, 1, orient, extra=[r2[0] + r2[1] + slot_m0(slot_sgpr=sCur), r2[2] + r2[3] + issue_pre(), r2[4] + r2[5] + rotate_s(), ""]))
        a("s_waitcnt lgkmcnt(0)")
        r3 = reads(3, 1)
        a(compute(2, 0, orient, extra=[r3[0] + r3[1], r3[2] + r3[3], r3[4] + r3[5], rotate_v(0, 4)]))
        a(f"""
        s_cmp_ge_u32 s{sST}, 7
        s_cbranch_scc1 {L}_tail
        s_waitcnt vmcnt(6) lgkmcnt(0)
        s_barrier
        """)
        a(compute(3, 1, orient, extra=dma_extra(reads(0, 0))))
        a(f"""
        s_add_u32 s{sST}, s{sST}, 1
        s_branch {L}
        {L}_tail:
        s_cmp_ge_u32 s{sST}, 9
        s_cbranch_scc1 {L}_last
        s_cmp_ge_u32 s{sST}, 8
        s_cbranch_scc1 {L}_w0
        s_waitcnt vmcnt(6) lgkmcnt(0)
        s_barrier
        """)
        a(late_setup(orient))
        a(f"""
        buffer_load_dword v{vPoll}, v{vPollA}, s[{DBG}:{DBG+3}], 0 offen sc1
        s_branch {L}_go
        {L}_w0:
        s_waitcnt vmcnt(0) lgkmcnt(0)
        s_barrier
        s_mov_b32 s{sT1}, 0
        {L}_spin:
        v_readfirstlane_b32 s{sT0}, v{vPoll}
        s_add_u32 s{sT1}, s{sT1}, 1
        s_cmp_ge_u32 s{sT0}, {0 if E("NOSPARE") else NSTAT}
        s_cbranch_scc1 {L}_got
        s_cmp_ge_u32 s{sT1}, 0x40000
        s_cbranch_scc1 {L}_got
        s_sleep 2
        buffer_load_dword v{vPoll}, v{vPollA}, s[{DBG}:{DBG+3}], 0 offen sc1
        s_waitcnt vmcnt(0)
        s_branch {L}_spin
        {L}_got:
        s_lshl_b32 s{sT0}, s{sTB}, 10
        s_lshl_b32 s{sT1}, s{sWM}, 8
        s_add_u32 s{sT0}, s{sT0}, s{sT1}
        s_add_u32 s{sT0}, s{sT0}, {STA_OFF}
        s_add_u32 s{sT1}, s{sT0}, 8192
        """)
        if orient == 0:
            a(f"""
            v_lshlrev_b32 v30, 2, v192
            buffer_load_dword v{vAB}, v30, s[28:31], s{sT0} offen sc1
            buffer_load_dword v{vAB+1}, v30, s[28:31], s{sT1} offen sc1
            buffer_load_dword v{vAB+2}, v30, s[28:31], s{sT0} offen offset:128 sc1
            buffer_load_dword v{vAB+3}, v30, s[28:31], s{sT1} offen offset:128 sc1
            """)
        else:
            a("v_lshlrev_b32 v30, 4, v193")
            for tt in range(2):
                for i in range(4):
                    a(f"buffer_load_dwordx4 {vr(VST+32*tt+4*i,4)}, v30, s[28:31], s{sT0} offen offset:{tt*128+i*32} sc1")
                    a(f"buffer_load_dwordx4 {vr(VST+32*tt+16+4*i,4)}, v30, s[28:31], s{sT1} offen offset:{tt*128+i*32} sc1")
        a(f"{L}_go:")
        a(compute(3, 1, orient, rd=reads(0, 0)))
        a(f"""
        s_add_u32 s{sST}, s{sST}, 1
        s_branch {L}
        {L}_last:
        s_waitcnt lgkmcnt(0)
        """)
        a(compute(3, 1, orient))
        if orient == 0: a(f"s_branch L_{name}_stats")
    a(f"L_{name}_stats:")
    a(stamp(2))
    a(f"""
    v_add_f32 v{vCs}, v{vCs}, v{vCs+1}
    v_mov_b32 v{vTmp}, v{vCs}
    s_lshl_b32 s{sT0}, s{sWN}, 6
    s_lshl_b32 s{sT1}, s{sFA}, 5
    s_add_u32 s{sT0}, s{sT0}, s{sT1}
    v_mov_b32 v13, v{vCs}
    s_nop 1
    v_permlane32_swap_b32 v13, v{vTmp}
    v_add_u32 v30, s{sT0}, v192
    v_lshlrev_b32 v30, 2, v30
    v_add_u32 v30, {CSL}, v30
    v_add_f32 v13, v13, v{vTmp}
    s_mov_b64 exec, 0xffffffff
    ds_add_f32 v30, v13
    s_mov_b64 exec, -1
    s_lshl_b32 s{sT0}, s{sTB}, 3
    s_lshl_b32 s{sT1}, s{sWM}, 1
    s_add_u32 s{sST}, s{sT0}, s{sT1}
    s_waitcnt lgkmcnt(0)
    s_barrier
    """)
    a(stamp(3))
    a(f"""
    s_cmp_ge_u32 s{sCT}, 10
    s_cbranch_scc0 L_{name}_epiT
    s_cmp_lt_u32 s{sCT}, 15
    s_cbranch_scc1 L_{name}_epiV
    L_{name}_epiT:
    s_lshl_b32 s{sT0}, s{sWN}, 8
    v_lshlrev_b32 v30, 4, v193
    v_add_u32 v30, s{sT0}, v30
    v_add_u32 v30, {CSL}, v30
    s_lshl_b32 s{sT0}, s{sFA}, 7
    v_add_u32 v31, s{sT0}, v30
    s_xor_b32 s{sT0}, s{sT0}, 128
    v_add_u32 v30, s{sT0}, v30
    """)
    for i in range(4): a(f"ds_read_b128 {vr(32+4*i,4)}, v31 offset:{i*32}")
    for i in range(4): a(f"ds_read_b128 {vr(48+4*i,4)}, v30 offset:{i*32}")
    def norm_pair_tok(accreg, csreg, ab, tmp):
        return (f"v_pk_mul_f32 {vr(tmp,2)}, {vr(csreg,2)}, {vr(ab,2)} op_sel:[0,1] op_sel_hi:[1,1]\n"
                f"v_pk_fma_f32 {vr(accreg,2)}, {vr(accreg,2)}, {vr(ab,2)}, {vr(tmp,2)} op_sel:[0,0,0] op_sel_hi:[1,0,1]\n")
    a(f"""
    s_cmp_lt_u32 s{sCT}, 5
    s_cselect_b32 s{sScale}, {hexf(QSCALE)}, 1.0
    s_cselect_b32 s{sXG}, {QF_OFF}, {KF_OFF}
    s_cselect_b32 s3, 0, 5
    s_sub_u32 s3, s{sCT}, s3
    s_lshl_b32 s3, s3, 4
    s_lshl_b32 s{sT0}, s{sWN}, 3
    s_add_u32 s3, s3, s{sT0}
    s_mul_i32 s{sT0}, s{sST}, 80
    s_add_u32 s3, s3, s{sT0}
    s_lshl_b32 s3, s3, 9
    s_add_u32 s{sXG}, s{sXG}, s3
    v_lshlrev_b32 v{vEA}, 4, v192
    v_lshl_add_u32 v{vEA}, v193, 9, v{vEA}
    s_waitcnt vmcnt(0)
    """)
    for r in range(4): a(f"v_mul_f32 v{vAB+r}, s{sScale}, v{vAB+r}")
    a(f"""
    s_cmp_ge_u32 s{sCT}, 15
    s_cbranch_scc1 L_{name}_epiH
    s_waitcnt lgkmcnt(0)
    """)
    for ft in range(2):
        for tt in range(2):
            ab = vAB + 2*tt
            a(f"""
            s_xor_b32 s{sT0}, s{sFA}, {ft}
            s_lshl_b32 s{sT0}, s{sT0}, 11
            s_add_u32 s{sT0}, s{sT0}, s{sXG}
            """)
            if tt: a(f"s_add_u32 s{sT0}, s{sT0}, {80*512}")
            for half in range(2):
                A0 = ACC(ft,tt) + 8*half
                for i in range(2):
                    A = A0 + 4*i; C = 32 + ft*16 + 8*half + 4*i
                    a(norm_pair_tok(A, C, ab, 28)); a(norm_pair_tok(A+2, C+2, ab, 30))
                for p in range(4): a(f"v_cvt_pk_bf16_f32 v{A0+p}, v{A0+2*p}, v{A0+2*p+1}")
                a(f"s_nop 0\nv_permlane32_swap_b32 v{A0}, v{A0+2}\nv_permlane32_swap_b32 v{A0+1}, v{A0+3}")
                a(f"buffer_store_dwordx4 {vr(A0,4)}, v{vEA}, s[28:31], s{sT0} offen offset:{half*1024}{ST}")
    a(f"s_branch L_{name}_end")
    a(f"L_{name}_epiH:")
    a(f"""
    s_mul_i32 s{sT0}, s{sST}, 96
    s_sub_u32 s3, s{sCT}, 15
    s_lshl_b32 s3, s3, 3
    s_add_u32 s{sT0}, s{sT0}, s3
    s_lshl_b32 s3, s{sWN}, 2
    s_add_u32 s{sT0}, s{sT0}, s3
    s_lshl_b32 s{sT0}, s{sT0}, 10
    s_add_u32 s{sXG}, s{sT0}, {HF_OFF}
    v_lshlrev_b32 v4, 4, v{vLane}
    s_waitcnt lgkmcnt(0)
    """)
    for ft in range(2):
        for tt in range(2):
            ab = vAB + 2*tt
            a(f"""
            s_xor_b32 s{sT0}, s{sFA}, {ft}
            s_lshl_b32 s{sT0}, s{sT0}, 11
            s_add_u32 s{sT0}, s{sT0}, s{sXG}
            s_add_u32 s{sT0}, s{sT0}, {tt*96*1024}
            """)
            for half in range(2):
                A0 = ACC(ft,tt) + 8*half
                for i in range(2):
                    A = A0 + 4*i; C = 32 + ft*16 + 8*half + 4*i
                    a(norm_pair_tok(A, C, ab, 28)); a(norm_pair_tok(A+2, C+2, ab, 30))
                for p in range(4):
                    a(f"v_cvt_pk_bf16_f32 v{A0+p}, v{A0+2*p}, v{A0+2*p+1}")
                for p in range(4):
                    a(f"v_pk_max_i16 v{A0+p}, v{A0+p}, 0")
                a(f"buffer_store_dwordx4 {vr(A0,4)}, v4, s[28:31], s{sT0} offen offset:{half*1024}{ST}")
    a(f"s_branch L_{name}_end")
    a(f"L_{name}_epiV:")
    a(f"""
    s_lshl_b32 s{sT0}, s{sWN}, 6
    v_add_u32 v30, s{sT0}, v192
    v_lshlrev_b32 v30, 2, v30
    v_add_u32 v30, {CSL}, v30
    s_lshl_b32 s{sT1}, s{sFA}, 7
    v_add_u32 v31, s{sT1}, v30
    s_xor_b32 s{sT1}, s{sT1}, 128
    v_add_u32 v30, s{sT1}, v30
    ds_read_b32 v24, v31
    ds_read_b32 v26, v30
    s_mul_i32 s{sT0}, s{sST}, 1280
    s_add_u32 s{sXG}, s{sT0}, {VF_OFF}
    s_waitcnt vmcnt(0) lgkmcnt(0)
    """)
    for tt in range(2):
        if tt == 1: a(f"s_add_u32 s{sXG}, s{sXG}, 1280")
        for ft in range(2):
            cs = 24 + 2*ft
            A0 = ACC(ft,tt)
            for p in range(8):
                A = A0 + 2*p
                tmp = 28 + 2*(p & 1)
                a(f"v_pk_mul_f32 {vr(tmp,2)}, {vr(VST+32*tt+16+2*p,2)}, {vr(cs,2)} op_sel:[0,0] op_sel_hi:[1,0]")
                a(f"v_pk_fma_f32 {vr(A,2)}, {vr(A,2)}, {vr(VST+32*tt+2*p,2)}, {vr(tmp,2)}")
            for p in range(8): a(f"v_cvt_pk_bf16_f32 v{A0+p}, v{A0+2*p}, v{A0+2*p+1}")
            a(f"buffer_store_dwordx4 {vr(A0,4)}, v{vEA+ft}, s[28:31], s{sXG} offen{ST}")
            a(f"buffer_store_dwordx4 {vr(A0+4,4)}, v{vEA+ft}, s[28:31], s{sXG} offen offset:640{ST}")
    a(f"s_branch L_{name}_end")
    a(f"L_{name}_spare:")
    if E("NOSPARE"): a(f"s_branch L_{name}_exit")
    a(f"""
    s_and_b32 s{sT0}, s2, 7
    s_lshr_b32 s{sT1}, s2, 3
    s_cmp_ge_u32 s{sT1}, 28
    s_cbranch_scc1 L_{name}_sp1
    s_sub_u32 s{sT0}, s{sT0}, 6
    s_lshl_b32 s{sT0}, s{sT0}, 2
    s_add_u32 s{sT0}, s{sT0}, s{sT1}
    s_add_u32 s{sST}, s{sT0}, 8
    s_branch L_{name}_sp2
    L_{name}_sp1:
    s_lshl_b32 s{sT0}, s{sT0}, 2
    s_add_u32 s{sT0}, s{sT0}, s{sT1}
    s_sub_u32 s{sST}, s{sT0}, 28
    L_{name}_sp2:
    v_lshrrev_b32 v4, 4, v{vLane}
    v_and_b32 v5, 15, v{vLane}
    v_mul_u32_u24 v6, 1280, v4
    v_lshl_add_u32 v6, v5, 4, v6
    s_waitcnt lgkmcnt(0)
    """)
    a(srd(28, "s16", "s17", WS_SIZE))
    a(srd(DBG, "s18", "s19", 256))
    if fused:
        a(f"""
        s_cmp_lg_u32 s{sST}, 39
        s_cbranch_scc1 L_{name}_noinit
        s_cmp_ge_u32 s{sW}, 2
        s_cbranch_scc1 L_{name}_init1
        v_lshlrev_b32 v7, 8, v0
        v_mov_b32 v8, 0
        s_mov_b32 s3, {FLG_OFF}
        buffer_store_dword v8, v7, s[28:31], s3 offen sc0 sc1
        s_waitcnt vmcnt(0)
        L_{name}_init1:
        s_barrier
        s_cmp_lg_u32 s{sW}, 0
        s_cbranch_scc1 L_{name}_noinit
        v_lshlrev_b32 v7, 2, v{vLane}
        v_mov_b32 v8, 1
        s_mov_b64 exec, 0xff
        buffer_atomic_add v8, v7, s[{DBG}:{DBG+3}], 0 offen sc1
        s_mov_b64 exec, -1
        L_{name}_noinit:
        """)
    a(f"""
    s_cmp_ge_u32 s{sST}, 32
    s_cbranch_scc1 L_{name}_relay
    """)
    a(srd(20, "s4", "s5", S*D*2))
    a(f"""
    s_lshl_b32 s{sT0}, s{sST}, 6
    s_lshl_b32 s{sT1}, s{sW}, 3
    s_add_u32 s{sT0}, s{sT0}, s{sT1}
    s_mul_i32 s{sXG}, s{sT0}, 1280
    s_add_u32 s{sWG}, s{sXG}, {4*1280}
    """)
    SPF = E("SPF", "1") == "1"
    def pf():
        if not SPF: return ""
        return "global_load_dword v24, v[20:21], off\nv_add_co_u32 v20, vcc, v22, v20\ns_nop 1\nv_addc_co_u32 v21, vcc, 0, v21, vcc\n"
    if SPF:
        a(f"""
        s_and_b32 s3, s{sST}, 3
        s_lshl_b32 s3, s3, 3
        s_add_u32 s3, s3, s{sW}
        s_cmp_ge_u32 s3, 16
        s_cbranch_scc1 L_{name}_pfw
        v_lshl_add_u32 v20, s3, 6, v{vLane}
        s_and_b32 s3, s2, 1
        s_lshl_b32 s3, s3, 10
        v_add_u32 v20, s3, v20
        v_mul_u32_u24 v20, 1280, v20
        v_add_u32 v20, {3*128}, v20
        v_mov_b32 v22, 128
        v_mov_b32 v18, s4
        v_mov_b32 v21, s5
        s_branch L_{name}_pfa
        L_{name}_pfw:
        s_sub_u32 s3, s3, 16
        s_min_u32 s3, s3, 13
        v_lshl_add_u32 v16, s3, 6, v{vLane}
        v_mul_u32_u24 v17, 4682, v16
        v_lshrrev_b32 v17, 16, v17
        v_mul_u32_u24 v18, 14, v17
        v_sub_u32 v16, v16, v18
        s_bfe_u32 s3, s2, 0x20001
        s_mul_i32 s3, s3, 14
        v_add_u32 v16, s3, v16
        v_min_u32 v16, 53, v16
        v_lshlrev_b32 v16, 7, v16
        v_add_u32 v17, {3*64}, v17
        v_cmp_gt_u32 vcc, 3840, v16
        v_mul_u32_u24 v18, 3840, v17
        v_mul_u32_u24 v19, 3072, v17
        v_add_u32 v18, v18, v16
        v_add_u32 v19, v19, v16
        v_subrev_u32 v19, 3840, v19
        v_cndmask_b32 v20, v19, v18, vcc
        v_mov_b32 v18, s12
        v_mov_b32 v21, s13
        v_mov_b32 v16, s6
        v_mov_b32 v17, s7
        v_cndmask_b32 v18, v18, v16, vcc
        v_cndmask_b32 v21, v21, v17, vcc
        v_mov_b32 v22, {64*3072}
        v_mov_b32 v16, {64*3840}
        v_cndmask_b32 v22, v22, v16, vcc
        L_{name}_pfa:
        v_add_co_u32 v20, vcc, v18, v20
        s_nop 1
        v_addc_co_u32 v21, vcc, 0, v21, vcc
        """)
        a(pf() * int(E("NPF1", "1")))
    for g in range(2):
        for i in range(5):
            a(f"buffer_load_dwordx4 {vr(32+20*g+4*i,4)}, v6, s[20:23], s{sXG if g==0 else sWG} offen offset:{i*256}")
    for g in range(2):
        a(f"s_waitcnt vmcnt({5 if g == 0 else 0})")
        su, sq = 8 + 4*g, 10 + 4*g
        a(f"v_mov_b32 v{su}, 0\nv_mov_b32 v{su+1}, 0\nv_mov_b32 v{sq}, 0\nv_mov_b32 v{sq+1}, 0")
        for r in range(20):
            x = 32 + 20*g + r; t = 16 + 2*(r & 1)
            a(f"v_lshlrev_b32 v{t}, 16, v{x}\nv_and_b32 v{t+1}, 0xffff0000, v{x}")
            a(f"v_pk_add_f32 {vr(su,2)}, {vr(su,2)}, {vr(t,2)}\nv_pk_fma_f32 {vr(sq,2)}, {vr(t,2)}, {vr(t,2)}, {vr(sq,2)}")
        a(f"v_add_f32 v{su}, v{su}, v{su+1}\nv_add_f32 v{sq}, v{sq}, v{sq+1}")
    for sh in (8, 4, 2, 1):
        a("s_nop 1")
        for r in (8, 10, 12, 14):
            a(f"v_add_f32_dpp v{r}, v{r}, v{r} row_ror:{sh} row_mask:0xf bank_mask:0xf")
    a(f"s_mov_b32 s{sT1}, {hexf(1.0/640)}")
    for g in range(2):
        su, sq = 8 + 4*g, 10 + 4*g
        a(f"""
        v_mul_f32 v{su}, s{sT1}, v{su}
        v_mul_f32 v{sq}, s{sT1}, v{sq}
        v_fma_f32 v{sq}, -v{su}, v{su}, v{sq}
        v_max_f32 v{sq}, 0, v{sq}
        v_add_f32 v{sq}, {hexf(1e-5)}, v{sq}
        v_rsq_f32 v{sq}, v{sq}
        s_nop 0
        v_mul_f32 v{su}, v{su}, v{sq}
        v_sub_f32 v{su}, 0, v{su}
        """)
    a(f"""
    v_lshlrev_b32 v7, 2, v4
    s_lshl_b32 s{sT0}, s{sT0}, 2
    s_add_u32 s{sT0}, s{sT0}, {STA_OFF}
    s_add_u32 s{sT1}, s{sT0}, 8192
    s_mov_b32 s60, 0x00010001
    s_mov_b32 s61, 0x00010001
    s_mov_b64 exec, s[60:61]
    buffer_store_dword v10, v7, s[28:31], s{sT0} offen sc0 sc1
    buffer_store_dword v8, v7, s[28:31], s{sT1} offen sc0 sc1
    buffer_store_dword v14, v7, s[28:31], s{sT0} offen offset:16 sc0 sc1
    buffer_store_dword v12, v7, s[28:31], s{sT1} offen offset:16 sc0 sc1
    s_mov_b64 exec, -1
    s_waitcnt vmcnt(0)
    s_barrier
    """)
    a(pf() * (7 - int(E("NPF1", "1"))))
    a(f"""
    s_cmp_lg_u32 s{sW}, 0
    s_cbranch_scc1 L_{name}_relay
    s_lshr_b32 s{sT0}, s{sST}, 2
    s_lshl_b32 s{sT0}, s{sT0}, 2
    v_mov_b32 v7, s{sT0}
    v_mov_b32 v8, 1
    s_mov_b64 exec, 1
    buffer_atomic_add v8, v7, s[{DBG}:{DBG+3}], 0 offen sc1
    s_mov_b64 exec, -1
    L_{name}_relay:
    """)
    if not fused:
        a(f"""
        s_cmp_lg_u32 s{sST}, 39
        s_cbranch_scc1 L_{name}_nz
        v_and_b32 v7, 63, v0
        v_lshlrev_b32 v7, 8, v7
        v_mov_b32 v8, 0
        s_mov_b32 s{sT0}, {FLG_OFF}
        buffer_store_dword v8, v7, s[28:31], s{sT0} offen
        L_{name}_nz:
        """)
    a(f"""
    s_cmp_lt_u32 s{sST}, 8
    s_cbranch_scc1 {fused or ("L_" + name + "_exit")}
    s_sub_u32 s{sST}, s{sST}, 8
    v_lshlrev_b32 v2, 4, v{vLane}
    v_lshrrev_b32 v10, 5, v{vLane}
    v_and_b32 v5, 15, v{vLane}
    v_lshrrev_b32 v6, 2, v5
    v_and_b32 v5, 3, v5
    v_lshlrev_b32 v5, 3, v5
    v_bfe_u32 v11, v{vLane}, 4, 1
    v_lshl_add_u32 v11, v11, 5, v5
    s_lshl_b32 s{sT1}, s{sW}, 10
    s_cmp_ge_u32 s{sST}, 24
    s_cbranch_scc1 L_{name}_rwo
    """)
    a(srd(20, "s14", "s15", 1536*1280))
    a(f"s_mul_i32 s{sWG}, s{sST}, 81920")
    for j in range(10):
        a(f"""
        s_add_u32 s{sT0}, s{sT1}, {j*8192}
        s_mov_b32 m0, s{sT0}
        s_add_u32 s{sT0}, s{sT0}, s{sWG}
        buffer_load_dwordx4 v2, s[20:23], s{sT0} offen lds
        """)
    a(f"""
    v_lshl_add_u32 v4, v10, 2, v6
    v_mul_u32_u24 v4, 1280, v4
    v_add_u32 v4, v4, v11
    s_lshr_b32 s{sT0}, s{sW}, 1
    s_mul_i32 s{sT1}, s{sT0}, 20480
    s_and_b32 s{sFA}, s{sW}, 1
    s_mul_i32 s{sFA}, s{sFA}, 10
    s_lshl_b32 s{sLD}, s{sFA}, 6
    s_add_u32 s{sT1}, s{sT1}, s{sLD}
    v_add_u32 v4, s{sT1}, v4
    v_add_u32 v5, {8*1280}, v4
    s_lshl_b32 s3, s{sST}, 2
    s_add_u32 s3, s3, s{sT0}
    s_mul_i32 s3, s3, 20
    s_add_u32 s3, s3, s{sFA}
    s_lshl_b32 s3, s3, 10
    s_add_u32 s{sXG}, s3, {W2F_OFF}
    s_waitcnt vmcnt(0)
    s_barrier
    """)
    for j in range(10):
        a(f"ds_read_b64_tr_b16 {vr(32+4*j,2)}, v4 offset:{j*64}\nds_read_b64_tr_b16 {vr(34+4*j,2)}, v5 offset:{j*64}")
    a("s_waitcnt lgkmcnt(0)")
    for j in range(10):
        a(f"buffer_store_dwordx4 {vr(32+4*j,4)}, v2, s[28:31], s{sXG} offen{ST}")
        if j < 9: a(f"s_add_u32 s{sXG}, s{sXG}, 1024")
    a(f"s_branch {DONE}")
    a(f"L_{name}_rwo:")
    a(srd(20, "s8", "s9", 640*1280))
    a(f"s_sub_u32 s{sST}, s{sST}, 24\ns_mul_i32 s{sWG}, s{sST}, 102400")
    for j in range(13):
        if j == 12:
            a(f"s_cmp_ge_u32 s{sW}, 4\ns_cbranch_scc1 L_{name}_rwo1")
        a(f"""
        s_add_u32 s{sT0}, s{sT1}, {j*8192}
        s_mov_b32 m0, s{sT0}
        s_add_u32 s{sT0}, s{sT0}, s{sWG}
        buffer_load_dwordx4 v2, s[20:23], s{sT0} offen lds
        """)
    a(f"L_{name}_rwo1:")
    base0 = [0, 8, 20, 28, 16]; base1 = [4, 12, 24, 32, 36]
    a("s_waitcnt vmcnt(0)\ns_barrier")
    a(f"s_mov_b32 s{sDX}, 0")
    a(f"""
    L_{name}_rwl:
    s_lshl_b32 s{sT0}, s{sDX}, 3
    s_add_u32 s{sT0}, s{sT0}, s{sW}
    s_cmp_ge_u32 s{sT0}, 100
    s_cbranch_scc1 {DONE}
    s_mul_i32 s{sT1}, s{sT0}, 3277
    s_lshr_b32 s{sT1}, s{sT1}, 16
    s_mul_i32 s3, s{sT1}, 20
    s_sub_u32 s3, s{sT0}, s3
    s_mul_i32 s{sXG}, s{sST}, 100
    s_add_u32 s{sXG}, s{sXG}, s{sT0}
    s_lshl_b32 s{sXG}, s{sXG}, 10
    s_add_u32 s{sXG}, s{sXG}, {WOF_OFF}
    s_lshl_b32 s3, s3, 6
    s_lshl_b32 s{sT1}, s{sT1}, 1
    v_add_u32 v7, s{sT1}, v10
    v_mul_u32_u24 v8, 52429, v7
    v_lshrrev_b32 v8, 18, v8
    v_mul_u32_u24 v9, 5, v8
    v_sub_u32 v9, v7, v9
    v_mul_u32_u24 v8, 40, v8
    v_lshlrev_b32 v12, 3, v9
    v_cmp_lt_u32 vcc, 1, v9
    v_add_u32 v13, 4, v12
    s_nop 0
    v_cndmask_b32 v12, v12, v13, vcc
    v_cmp_eq_u32 vcc, 4, v9
    v_add_u32 v13, 4, v12
    v_mov_b32 v14, 36
    v_cndmask_b32 v12, v12, 16, vcc
    v_cndmask_b32 v13, v13, v14, vcc
    v_add3_u32 v12, v12, v8, v6
    v_add3_u32 v13, v13, v8, v6
    v_mul_u32_u24 v12, 1280, v12
    v_mul_u32_u24 v13, 1280, v13
    v_add3_u32 v12, v12, v11, s3
    v_add3_u32 v13, v13, v11, s3
    ds_read_b64_tr_b16 v[32:33], v12
    ds_read_b64_tr_b16 v[34:35], v13
    s_add_u32 s{sDX}, s{sDX}, 1
    s_waitcnt lgkmcnt(0)
    buffer_store_dwordx4 v[32:35], v2, s[28:31], s{sXG} offen{ST}
    s_nop 1
    s_branch L_{name}_rwl
    """)
    if fused:
        a(f"""
        {DONE}:
        s_waitcnt vmcnt(0)
        s_barrier
        s_cmp_lg_u32 s{sW}, 0
        s_cbranch_scc1 {fused}
        v_mov_b32 v7, 0
        s_mov_b32 s{sT1}, 0
        L_{name}_ipoll:
        buffer_load_dword v8, v7, s[{DBG}:{DBG+3}], 0 offen sc1
        s_add_u32 s{sT1}, s{sT1}, 1
        s_waitcnt vmcnt(0)
        v_readfirstlane_b32 s{sT0}, v8
        s_cmp_ge_u32 s{sT0}, {NSTAT}
        s_cbranch_scc1 L_{name}_igot
        s_cmp_ge_u32 s{sT1}, 0x40000
        s_cbranch_scc1 L_{name}_igot
        s_sleep 8
        s_branch L_{name}_ipoll
        L_{name}_igot:
        v_lshlrev_b32 v7, 8, v{vLane}
        v_mov_b32 v8, 1
        s_mov_b32 s3, {FLG_OFF + 88*256}
        s_mov_b64 exec, 0xff
        buffer_atomic_add v8, v7, s[28:31], s3 offen sc1
        s_mov_b64 exec, -1
        s_branch {fused}
        """)
    a(f"L_{name}_end:")
    if DIAG:
        a(stamp(4)); a("s_waitcnt vmcnt(0)"); a(stamp(5)); a(stamp_flush(0, 8, 28))
    if fused:
        a(f"""
        s_waitcnt vmcnt(0)
        s_barrier
        s_cmp_lg_u32 s{sW}, 0
        s_cbranch_scc1 {fused}
        s_add_u32 s{sT0}, s{sCT}, 64
        s_add_u32 s{sT1}, s{sTB}, 80
        s_cmp_ge_u32 s{sCT}, 15
        s_cselect_b32 s{sT0}, s{sT1}, s{sT0}
        s_lshl_b32 s{sT0}, s{sT0}, 8
        s_add_u32 s{sT0}, s{sT0}, {FLG_OFF}
        v_mov_b32 v7, 0
        v_mov_b32 v8, 1
        s_mov_b64 exec, 1
        buffer_atomic_add v8, v7, s[28:31], s{sT0} offen sc1
        s_mov_b64 exec, -1
        s_branch {fused}
        """)
    a(f"L_{name}_exit:\ns_endpgm")
    if not fused: a(kernel_desc(name, 200))
    return a.text()
```

```python
from common import *
from ffn_parts import *
SLOT = 22528
ONES = 3*SLOT
PART = ONES + 10240
K2_LDS = PART + 4*PBUF
ST = " sc0 sc1" if E("WT", "0") == "1" else ""
def k2(name, fused=None):
    a = Asm()
    SC = " sc1" if fused else ""
    if fused: a(f"{fused}:\ns_waitcnt vmcnt(0)")
    else: a(kernel_head(name))
    sW, sHead, sT, sF, sC, sT0, sT1, sSlot, sCQ, sOdd = 32, 33, 34, 35, 36, 37, 38, 39, 44, 45
    sMaskV = 40
    sOk = 42
    sKG, sK2G, sVG, sA, sB, sBW, sTF, sFQ, sPass = 46, 47, 48, 49, 50, 51, 52, 53, 54
    vLane, vL16 = 1, 2
    if not fused:
        a(f"""
        s_cmp_ge_u32 s2, 256
        s_cbranch_scc1 L_{name}_exit
        """)
    a(stamp(0))
    a(f"""
    s_load_dwordx2 s[4:5], s[0:1], 64
    s_load_dwordx2 s[6:7], s[0:1], 0
    s_load_dwordx4 s[12:15], s[0:1], 48
    v_lshrrev_b32 v2, 6, v0
    v_and_b32 v{vLane}, 63, v0
    v_readfirstlane_b32 s{sW}, v2
    s_and_b32 s{sT0}, s2, 7
    s_lshr_b32 s{sT1}, s2, 3
    s_lshl_b32 s{sHead}, s{sT0}, 2
    s_and_b32 s3, s{sT1}, 3
    s_add_u32 s{sHead}, s{sHead}, s3
    s_mul_i32 s{sF}, s{sHead}, 5
    s_add_u32 s{sF}, s{sF}, 1
    s_lshr_b32 s{sF}, s{sF}, 1
    s_and_b32 s{sOdd}, s{sHead}, 1
    s_cmp_eq_u32 s{sOdd}, 0
    s_cselect_b32 s3, 2, -1
    s_add_u32 s{sCQ}, s{sF}, s3
    s_lshl_b32 s{sF}, s{sF}, 9
    s_lshl_b32 s{sCQ}, s{sCQ}, 9
    s_lshl_b32 s{sOdd}, s{sOdd}, 3
    v_lshlrev_b32 v{vL16}, 4, v{vLane}
    v_and_b32 v3, 31, v{vLane}
    v_lshrrev_b32 v11, 5, v{vLane}
    s_cmp_ge_u32 s{sW}, 4
    s_cbranch_scc1 L_{name}_bg
    """)
    vK1, vK2, vV, vM01 = 4, 5, 6, 7
    Q1 = [12, 16]; Q2 = [20, 22]
    K1 = [24, 28]; K2 = [32, 34]; V1 = [36, 40]; V2 = [44, 48]; P1, P2 = 52, 56
    SS = [64, 80]; O = [96, 112]; CM = [128, 144]
    a(f"""
    s_lshr_b32 s{sT}, s{sT1}, 2
    s_lshl_b32 s{sT}, s{sT}, 3
    s_lshl_b32 s3, s{sW}, 1
    s_add_u32 s{sT}, s{sT}, s3
    v_lshlrev_b32 v{vK2}, 4, v3
    v_lshl_add_u32 v{vK1}, v11, 9, v{vK2}
    v_add_u32 v{vK2}, s{sOdd}, v{vK2}
    s_mul_i32 s3, s{sT}, 40960
    s_add_u32 s{sT0}, s3, s{sF}
    s_add_u32 s{sT1}, s3, s{sCQ}
    v_mov_b32 v{Q2[0]}, 0
    v_mov_b32 v{Q2[0]+1}, 0
    v_mov_b32 v{Q2[1]}, 0
    v_mov_b32 v{Q2[1]+1}, 0
    s_waitcnt lgkmcnt(0)
    """)
    a(srd(8, "s4", "s5", WS_SIZE))
    a(f"""
    s_add_u32 s{sA}, s{sT0}, 40960
    s_add_u32 s{sB}, s{sT1}, 40960
    {"s_barrier" if fused else ""}
    buffer_load_dwordx4 {vr(Q1[0],4)}, v{vK1}, s[8:11], s{sT0} offen{SC}
    buffer_load_dwordx4 {vr(Q1[1],4)}, v{vK1}, s[8:11], s{sA} offen{SC}
    s_mov_b64 exec, 0xffffffff
    buffer_load_dwordx2 {vr(Q2[0],2)}, v{vK2}, s[8:11], s{sT1} offen{SC}
    buffer_load_dwordx2 {vr(Q2[1],2)}, v{vK2}, s[8:11], s{sB} offen{SC}
    s_mov_b64 exec, -1
    s_setprio {E('APRIO', '2')}
    s_mov_b32 s{sMaskV}, 0x000fffff
    s_mov_b32 s{sMaskV+1}, 0x000fffff
    v_mul_u32_u24 v{vV}, 320, v11
    v_lshl_add_u32 v{vV}, v3, 4, v{vV}
    v_cmp_eq_u32 vcc, 20, v3
    v_mov_b32 v11, {ONES-12288+(0 if E('ONESALL') else 16)}
    v_mov_b32 v8, {ONES-12288}
    v_cndmask_b32 v11, v11, v8, vcc
    v_cmp_gt_u32 vcc, 20, v3
    v_mov_b32 v{vM01}, 0
    s_nop 0
    v_cndmask_b32 v{vV}, v11, v{vV}, vcc
    v_cndmask_b32 v{vM01}, v{vM01}, 1, vcc
    """)
    for r in range(4): a(f"v_mov_b32 v{V2[1]+r}, 0\nv_mov_b32 v{P2+r}, 0")
    for q in range(2):
        for r in range(16): a(f"v_mov_b32 v{O[q]+r}, 0")
    a(f"""
    s_mov_b32 s{sC}, 0
    s_mov_b32 s{sSlot}, 0
    s_waitcnt vmcnt(0)
    s_barrier
    """)
    a(stamp(1))
    def rd_k1(p, j): return f"ds_read_b128 {vr(K1[p],4)}, v{vK1} offset:{j*1024}\n"
    def rd_k2(p, j): return f"ds_read_b64 {vr(K2[p],2)}, v{vK2} offset:{8192+j*512}\n"
    def rd_v1(p, j): return f"ds_read_b128 {vr(V1[p],4)}, v{vV} offset:{12288+j*1280}\n"
    def rd_v2(p, j): return f"ds_read_b128 {vr(V2[p],4)}, v{vV} offset:{12288+j*1280+640}\n"
    a(rd_k1(0,0) + rd_k2(0,0) + rd_v1(0,0) + rd_v2(0,0))
    a("s_waitcnt lgkmcnt(2)")
    for q in range(2): a(mfma(SS[q], K1[0], Q1[q], "0"))
    for q in range(2): a(mfma8(SS[q], K2[0], Q2[q]))
    a("s_nop 10")
    for q in range(2):
        S0 = SS[q]; t = 3 if q == 0 else 11
        a(f"v_max3_f32 v{t}, v{S0}, v{S0+1}, v{S0+2}")
        for r in range(3, 15, 2): a(f"v_max3_f32 v{t}, v{t}, v{S0+r}, v{S0+r+1}")
        a(f"v_max_f32 v{t}, v{t}, v{S0+15}")
    a(f"""
    v_mov_b32 v{P1}, v3
    v_mov_b32 v{P1+1}, v11
    s_nop 1
    v_permlane32_swap_b32 v3, v{P1}
    v_permlane32_swap_b32 v11, v{P1+1}
    v_max_f32 v3, v3, v{P1}
    v_max_f32 v11, v11, v{P1+1}
    """)
    for r in range(16): a(f"v_sub_f32 v{CM[0]+r}, 0, v3")
    for r in range(16): a(f"v_sub_f32 v{CM[1]+r}, 0, v11")
    a("s_waitcnt lgkmcnt(0)\ns_nop 0")
    a(mfma(SS[0], K1[0], Q1[0], CM[0])); a(mfma8(SS[0], K2[0], Q2[0]))
    a("s_nop 11")
    a(stamp(2))
    L = f"L_{name}_loop"
    if E("INSTREAM"): a(f"s_mov_b32 s{sT1}, {HF_OFF}")
    al = E("ALIGN", "0")
    if al != "0": a(".p2align 6")
    if al == "3": a("s_nop 0")
    a(f"{L}:")
    for n in range(16):
        j, q = n >> 1, n & 1
        p, pn = j & 1, (j + 1) & 1
        Sc, qn = SS[q], 1 - q
        Sn = SS[qn]
        def e(r): return f"v_exp_f32 v{Sc+r}, v{Sc+r}\n"
        def c(P, i, r): return f"v_cvt_pk_bf16_f32 v{P+i}, v{Sc+r}, v{Sc+r+1}\n"
        nx = (j + 1) & 7
        if q == 1: a("s_waitcnt lgkmcnt(0)" + ("\ns_nop 0" if E("ALIGN") == "2" else ""))
        kq = p if q == 0 else pn
        INS = E("INSTREAM")
        def rds():
            if q != 0: return ""
            t = ""
            if j == 7:
                t += f"""
                s_barrier
                s_cmp_eq_u32 s{sSlot}, 2
                s_cselect_b32 s{sT0}, {(-2*SLOT) & 0xffffffff}, {SLOT}
                s_cselect_b32 s{sSlot}, -1, s{sSlot}
                s_add_u32 s{sSlot}, s{sSlot}, 1
                v_add_u32 v{vK1}, s{sT0}, v{vK1}
                v_add_u32 v{vK2}, s{sT0}, v{vK2}
                v_mad_i32_i24 v{vV}, v{vM01}, s{sT0}, v{vV}
                """
            return t + rd_k1(pn, nx) + rd_k2(pn, nx) + rd_v1(pn, nx) + rd_v2(pn, nx)
        if INS and n < 15:
            FA, FF_ = 160, 240
            f = n % 5
            a(mfma(Sn, K1[kq], Q1[qn], CM[qn]))
            a(e(0)+e(1)+e(2)+e(3))
            a(mfma(O[qn], V2[pn if q == 0 else p], P2))
            a(rds())
            a(e(4)+e(5)+e(6)+c(P1,0,0)+c(P1,1,2))
            a(mfma8(Sn, K2[kq], Q2[qn]))
            a(e(7)+e(8)+e(9)+c(P1,2,4)+c(P1,3,6))
            if f == 0 and INS != "2": a("s_waitcnt vmcnt(0)")
            a(mfma(FA + 16*f, FF_, FF_ + 4))
            if f == 0 and INS != "2":
                for k in range(6): a(f"buffer_load_dwordx4 {vr(248, 4)}, v{vL16}, s[8:11], s{sT1} offen offset:{(k%4)*1024}")
            a(e(10)+e(11)+e(12)+c(P2,0,8)+c(P2,1,10))
            a(mfma(O[q], V1[p], P1))
            a(e(13)+e(14)+e(15)+c(P2,2,12)+c(P2,3,14))
        else:
            a(mfma(Sn, K1[kq], Q1[qn], "0" if E("NOCM") else CM[qn]))
            a(e(0)+e(1)+e(2)+e(3)+c(P1,0,0)+c(P1,1,2))
            a(mfma(O[qn], V2[pn if q == 0 else p], P2))
            a(rds())
            a(e(4)+e(5)+e(6)+e(7)+c(P1,2,4)+c(P1,3,6))
            a(mfma8(Sn, K2[kq], Q2[qn]))
            a(e(8)+e(9)+e(10)+e(11)+c(P2,0,8)+c(P2,1,10))
            a(mfma(O[q], V1[p], P1))
            a(e(12)+e(13)+e(14)+e(15)+c(P2,2,12)+c(P2,3,14))
    a(f"""
    s_add_u32 s{sC}, s{sC}, 1
    s_cmp_lt_u32 s{sC}, 8
    s_cbranch_scc1 {L}
    s_nop 0
    """)
    a(mfma(O[1], V2[1], P2))
    a(stamp(3))
    a(f"""
    s_mov_b32 s{sPass}, 0
    s_lshr_b32 s{sA}, s{sHead}, 1
    s_mul_i32 s{sA}, s{sA}, 5
    s_mul_i32 s3, s{sT}, 80
    s_add_u32 s{sA}, s{sA}, s3
    s_lshl_b32 s{sA}, s{sA}, 9
    s_add_u32 s{sA}, s{sA}, {OF_OFF}
    s_add_u32 s{sB}, s{sA}, s{sOdd}
    s_lshl_b32 s3, s{sOdd}, 7
    s_add_u32 s{sA}, s{sA}, s3
    v_and_b32 v9, 31, v{vLane}
    v_lshrrev_b32 v8, 5, v{vLane}
    v_lshlrev_b32 v9, 4, v9
    v_lshl_add_u32 v8, v8, 9, v9
    s_waitcnt lgkmcnt(0)
    """)
    O0 = O[0]
    a(f"""
    L_{name}_norm:
    v_mov_b32 v3, v{O0+8}
    v_mov_b32 v11, v{O0+8}
    s_mov_b32 s{sT0}, {hexf(2.0**-40)}
    s_mov_b32 s{sT1}, {hexf(2.0**60)}
    v_permlane32_swap_b32 v3, v11
    v_pk_add_f32 v[60:61], {vr(O0,2)}, {vr(O0+2,2)}
    v_rcp_f32 v10, v11
    v_pk_add_f32 v[62:63], {vr(O0+4,2)}, {vr(O0+6,2)}
    v_med3_f32 v3, v11, s{sT0}, v11
    v_pk_add_f32 v[60:61], v[60:61], {vr(O0+8,2)}
    v_pk_add_f32 v[62:63], v[62:63], {vr(O0+10,2)}
    v_min_f32 v3, s{sT1}, v11
    v_max_f32 v3, s{sT0}, v3
    v_pk_add_f32 v[60:61], v[60:61], v[62:63]
    v_cmp_eq_f32 s[{sOk}:{sOk+1}], v3, v11
    v_add_f32 v60, v60, v61
    s_movk_i32 s3, 0x1f8
    v_cmp_class_f32 vcc, v60, s3
    s_and_b64 s[{sOk}:{sOk+1}], s[{sOk}:{sOk+1}], vcc
    s_cmp_eq_u64 s[{sOk}:{sOk+1}], -1
    {"s_nop 0" if E("NOSLOW") else "s_cbranch_scc0 L_"+name+"_slow"}
    L_{name}_fin:
    """)
    for p in range(6): a(f"v_pk_mul_f32 {vr(O0+2*p,2)}, {vr(O0+2*p,2)}, v[10:11] op_sel_hi:[1,0]")
    for p in range(6): a(f"v_cvt_pk_bf16_f32 v{O0+p}, v{O0+2*p}, v{O0+2*p+1}")
    a(f"""
    s_nop 0
    v_permlane32_swap_b32 v{O0}, v{O0+2}
    v_permlane32_swap_b32 v{O0+1}, v{O0+3}
    buffer_store_dwordx4 {vr(O0,4)}, v8, s[8:11], s{sA} offen sc0 sc1
    s_mov_b64 exec, 0xffffffff
    buffer_store_dwordx2 {vr(O0+4,2)}, v9, s[8:11], s{sB} offen offset:2048 sc0 sc1
    s_mov_b64 exec, -1
    s_cmp_lg_u32 s{sPass}, 0
    s_cbranch_scc1 L_{name}_aend
    s_mov_b32 s{sPass}, 1
    s_add_u32 s{sA}, s{sA}, 40960
    s_add_u32 s{sB}, s{sB}, 40960
    """)
    for r in range(12): a(f"v_mov_b32 v{O[0]+r}, v{O[1]+r}")
    for r in range(4): a(f"v_mov_b32 v{Q1[0]+r}, v{Q1[1]+r}")
    for r in range(2): a(f"v_mov_b32 v{Q2[0]+r}, v{Q2[1]+r}")
    a(f"s_branch L_{name}_norm")
    a(f"L_{name}_aend:")
    if DIAG: a(stamp(4))
    a(f"""
    s_lshl_b32 s{sT0}, s{sT}, 8
    s_add_u32 s{sT0}, s{sT0}, {FLG_OFF}
    s_add_u32 s{sT1}, s{sT0}, 256
    v_mov_b32 v8, 0
    v_mov_b32 v9, 1
    s_waitcnt vmcnt(0)
    s_mov_b64 exec, 1
    buffer_atomic_add v9, v8, s[8:11], s{sT0} offen sc1
    buffer_atomic_add v9, v8, s[8:11], s{sT1} offen sc1
    s_mov_b64 exec, -1
    """)
    if DIAG:
        a(stamp(5)); a(stamp_flush(1, 6, 8))
    a("s_endpgm")
    vM, vAl, vTm = 128, 129, 130
    a(f"""
    L_{name}_slow:
    v_and_b32 v10, 31, v{vLane}
    v_lshrrev_b32 v11, 5, v{vLane}
    v_lshlrev_b32 v{vK2}, 4, v10
    v_lshl_add_u32 v{vK1}, v11, 9, v{vK2}
    v_add_u32 v{vK2}, s{sOdd}, v{vK2}
    v_mul_u32_u24 v{vV}, 320, v11
    v_lshl_add_u32 v{vV}, v10, 4, v{vV}
    v_mov_b32 v{vM}, 0xff800000
    v_mov_b32 v3, 0x3f803f80
    """)
    for r in range(4): a(f"v_mov_b32 v{V1[0]+r}, v3\nv_mov_b32 v{V2[0]+r}, v3")
    for r in range(16): a(f"v_mov_b32 v{O0+r}, 0")
    S0 = SS[0]
    a(f"""
    s_mov_b32 s{sC}, 0
    s_add_u32 s{sKG}, s{sF}, {KF_OFF}
    s_add_u32 s{sK2G}, s{sCQ}, {KF_OFF}
    s_mul_i32 s{sVG}, s{sHead}, {128*640}
    s_add_u32 s{sVG}, s{sVG}, {VF_OFF}
    L_{name}_sl:
    buffer_load_dwordx4 {vr(K1[0],4)}, v{vK1}, s[8:11], s{sKG} offen{SC}
    buffer_load_dwordx2 {vr(K2[0],2)}, v{vK2}, s[8:11], s{sK2G} offen{SC}
    s_mov_b64 exec, s[{sMaskV}:{sMaskV+1}]
    buffer_load_dwordx4 {vr(V1[0],4)}, v{vV}, s[8:11], s{sVG} offen{SC}
    buffer_load_dwordx4 {vr(V2[0],4)}, v{vV}, s[8:11], s{sVG} offen offset:640{SC}
    s_mov_b64 exec, -1
    s_waitcnt vmcnt(2)
    """)
    a(mfma(S0, K1[0], Q1[0], "0")); a(mfma8(S0, K2[0], Q2[0]))
    a("s_nop 11")
    a(f"v_max3_f32 v{vTm}, v{S0}, v{S0+1}, v{S0+2}")
    for r in range(3, 15, 2): a(f"v_max3_f32 v{vTm}, v{vTm}, v{S0+r}, v{S0+r+1}")
    a(f"""
    v_max3_f32 v{vTm}, v{vTm}, v{S0+15}, v{vM}
    v_mov_b32 v3, v{vTm}
    s_nop 1
    v_permlane32_swap_b32 v{vTm}, v3
    v_max_f32 v{vTm}, v{vTm}, v3
    v_sub_f32 v{vAl}, v{vM}, v{vTm}
    v_exp_f32 v{vAl}, v{vAl}
    v_mov_b32 v{vM}, v{vTm}
    """)
    for r in range(16): a(f"v_sub_f32 v{S0+r}, v{S0+r}, v{vM}")
    for r in range(16): a(f"v_exp_f32 v{S0+r}, v{S0+r}")
    for r in range(16): a(f"v_mul_f32 v{O0+r}, v{O0+r}, v{vAl}")
    for i in range(4): a(f"v_cvt_pk_bf16_f32 v{P1+i}, v{S0+2*i}, v{S0+2*i+1}")
    for i in range(4): a(f"v_cvt_pk_bf16_f32 v{P2+i}, v{S0+8+2*i}, v{S0+8+2*i+1}")
    a("s_waitcnt vmcnt(0)\ns_nop 0")
    a(mfma(O0, V1[0], P1)); a(mfma(O0, V2[0], P2))
    a(f"""
    s_add_u32 s{sKG}, s{sKG}, 40960
    s_add_u32 s{sK2G}, s{sK2G}, 40960
    s_add_u32 s{sVG}, s{sVG}, 1280
    s_add_u32 s{sC}, s{sC}, 1
    s_cmp_lt_u32 s{sC}, 64
    s_nop 6
    s_cbranch_scc1 L_{name}_sl
    s_nop 3
    v_mov_b32 v3, v{O0+8}
    v_mov_b32 v11, v{O0+8}
    s_nop 1
    v_permlane32_swap_b32 v3, v11
    v_rcp_f32 v10, v11
    s_nop 0
    s_branch L_{name}_fin
    """)
    vK2D, vL16b = 3, 19
    ACC = [96 + 16*f for f in range(5)]
    FR = lambda b: 24 + 24*b
    a(f"""
    L_{name}_bg:
    s_sub_u32 s{sBW}, s{sW}, 4
    v_mul_u32_u24 v{vK2D}, 40960, v11
    v_and_b32 v4, 31, v{vLane}
    v_lshl_add_u32 v{vK2D}, v4, 4, v{vK2D}
    v_add_u32 v{vL16b}, 4096, v{vL16}
    s_mul_i32 s3, s{sBW}, {2*40960}
    s_add_u32 s3, s3, {KF_OFF}
    s_add_u32 s{sKG}, s3, s{sF}
    s_add_u32 s{sK2G}, s3, s{sCQ}
    s_mul_i32 s{sVG}, s{sHead}, {128*640}
    s_mul_i32 s3, s{sBW}, 2560
    s_add_u32 s{sVG}, s{sVG}, s3
    s_add_u32 s{sVG}, s{sVG}, {VF_OFF}
    s_and_b32 s{sFQ}, s2, 1
    s_lshl_b32 s{sFQ}, s{sFQ}, 1
    s_and_b32 s3, s{sT1}, 1
    s_add_u32 s{sFQ}, s{sFQ}, s3
    s_bfe_u32 s{sTF}, s2, 0x20001
    s_lshl_b32 s{sTF}, s{sTF}, 4
    s_lshr_b32 s3, s{sT1}, 1
    s_add_u32 s{sTF}, s{sTF}, s3
    s_waitcnt lgkmcnt(0)
    """)
    a(srd(8, "s4", "s5", WS_SIZE))
    def gate(label, setup, sleep):
        return setup + f"""
        s_mov_b32 s{sT1}, 0
        s_mov_b32 s{sT0}, {FLG_OFF}
        {label}:
        buffer_load_dword v9, v8, s[8:11], s{sT0} offen sc1
        s_add_u32 s{sT1}, s{sT1}, 1
        s_waitcnt vmcnt(0)
        v_cmp_ge_u32 vcc, v9, v10
        s_cmp_eq_u64 vcc, -1
        s_cbranch_scc1 {label}_ok
        s_cmp_ge_u32 s{sT1}, 0x40000
        s_cbranch_scc1 {label}_ok
        s_sleep {sleep}
        s_branch {label}
        {label}_ok:
        """
    if fused:
        a(f"s_cmp_lg_u32 s{sBW}, 0\ns_cbranch_scc1 L_{name}_gA")
        a(gate(f"L_{name}_pA", f"""
        s_lshr_b32 s{sT0}, s{sF}, 9
        s_lshr_b32 s{sT1}, s{sCQ}, 9
        s_min_u32 s3, s{sT0}, s{sT1}
        s_lshr_b32 s3, s3, 4
        s_add_u32 s{sT0}, s{sT0}, 1
        s_max_u32 s{sT0}, s{sT0}, s{sT1}
        s_lshr_b32 s{sT0}, s{sT0}, 4
        s_add_u32 s3, s3, 64
        s_add_u32 s{sT0}, s{sT0}, 64
        v_mov_b32 v8, s3
        v_writelane_b32 v8, s{sT0}, 1
        s_add_u32 s3, s3, 5
        s_add_u32 s{sT0}, s{sT0}, 5
        v_writelane_b32 v8, s3, 2
        v_writelane_b32 v8, s{sT0}, 3
        s_mul_i32 s3, s{sHead}, 20
        s_add_u32 s{sT0}, s3, 19
        s_lshr_b32 s3, s3, 7
        s_lshr_b32 s{sT0}, s{sT0}, 7
        s_add_u32 s3, s3, 74
        s_add_u32 s{sT0}, s{sT0}, 74
        v_writelane_b32 v8, s3, 4
        v_writelane_b32 v8, s{sT0}, 5
        v_mov_b32 v10, 8
        v_lshlrev_b32 v8, 8, v8
        """, 2))
        a(f"L_{name}_gA:\ns_barrier")
    vq = VmQ()
    def dma(c):
        sl = (c % 3) * SLOT
        t = f"""
        s_lshl_b32 s{sT0}, s{sBW}, 11
        s_add_u32 m0, s{sT0}, {sl}
        s_add_u32 s{sT1}, s{sKG}, 40960
        buffer_load_dwordx4 v{vL16}, s[8:11], s{sKG} offen{SC} lds
        s_add_u32 m0, s{sT0}, {sl+1024}
        s_lshl_b32 s{sT0}, s{sBW}, 10
        buffer_load_dwordx4 v{vL16}, s[8:11], s{sT1} offen{SC} lds
        s_add_u32 m0, s{sT0}, {sl+8192}
        s_mul_i32 s{sT0}, s{sBW}, 2560
        buffer_load_dwordx4 v{vK2D}, s[8:11], s{sK2G} offen{SC} lds
        s_add_u32 m0, s{sT0}, {sl+12288}
        s_add_u32 s{sT1}, s{sVG}, 1024
        buffer_load_dwordx4 v{vL16}, s[8:11], s{sVG} offen{SC} lds
        s_add_u32 m0, s{sT0}, {sl+12288+1024}
        s_add_u32 s{sKG}, s{sKG}, {8*40960}
        buffer_load_dwordx4 v{vL16}, s[8:11], s{sT1} offen{SC} lds
        s_add_u32 m0, s{sT0}, {sl+12288+2048}
        s_add_u32 s{sT1}, s{sVG}, 2048
        s_mov_b64 exec, 0xffffffff
        buffer_load_dwordx4 v{vL16}, s[8:11], s{sT1} offen{SC} lds
        s_mov_b64 exec, -1
        s_add_u32 s{sK2G}, s{sK2G}, {8*40960}
        s_add_u32 s{sVG}, s{sVG}, 10240
        """
        vq.issue(f"D{c}", 6)
        return t
    WP, AO, A4, GF, X = 24, 184, 200, 216, 236
    vOq = 4
    OL, X4L, W4L = 40960, 81920, 0
    sXO, sX4 = 55, 56
    a(dma(0))
    a(f"""
    s_mul_i32 s{sA}, s{sTF}, 96
    s_mul_i32 s3, s{sBW}, 24
    s_add_u32 s{sA}, s{sA}, s3
    s_lshl_b32 s{sA}, s{sA}, 10
    s_add_u32 s{sA}, s{sA}, {HF_OFF}
    s_mul_i32 s{sB}, s3, 20
    s_mul_i32 s3, s{sFQ}, 5
    s_add_u32 s{sB}, s{sB}, s3
    s_lshl_b32 s{sB}, s{sB}, 10
    s_add_u32 s{sB}, s{sB}, {W2F_OFF}
    v_lshrrev_b32 v4, 2, v{vLane}
    v_mul_u32_u24 v4, 640, v4
    v_and_b32 v5, 3, v{vLane}
    v_lshl_add_u32 v4, v5, 2, v4
    v_add_u32 v4, {ONES}, v4
    v_mov_b32 v5, 0x3f803f80
    v_mov_b32 v6, 0
    ds_write_b32 v4, v5
    ds_write_b32 v4, v6 offset:16
    """)
    a(dma(1)); a(dma(2))
    def ld(s):
        vq.issue(f"L{s}", 6)
        return gemm_loads(FR(s % 3), vL16, vL16b, 8, sA, sB, SC)
    a(vq.wait("D0")); a("s_waitcnt lgkmcnt(0)\ns_barrier")
    if fused:
        a(gate(f"L_{name}_pB", f"""
        s_lshr_b32 s3, s{sTF}, 3
        s_add_u32 s3, s3, 80
        s_and_b32 s{sT0}, s2, 7
        s_add_u32 s{sT0}, s{sT0}, 88
        v_mov_b32 v8, s3
        v_writelane_b32 v8, s{sT0}, 1
        v_mov_b32 v10, 12
        v_writelane_b32 v10, 32, 1
        v_lshlrev_b32 v8, 8, v8
        """, 4))
        vq.q = []
    if not E("NOFFN"):
        for s in range(3): a(ld(s))
    s = 0
    for c in range(8):
        if c <= 4 and not E("NOFFN"):
            for k in range(5 if c < 4 else 4):
                a(vq.wait(f"L{s}"))
                a(gemm_comp(FR(s % 3), ACC, s == 0))
                if s + 3 < 24: a(ld(s + 3))
                s += 1
        if c == 5:
            a(partial_write(ACC, vLane, sBW, sT0, PART))
            a("s_waitcnt lgkmcnt(0)")
        if c == 6:
            a(f"""
            v_and_b32 v4, 31, v{vLane}
            v_lshrrev_b32 v5, 5, v{vLane}
            """)
            a(srd(16, "s6", "s7", S*D*2))
            a(srd(20, "s12", "s13", S*D*2))
            a(f"""
            v_mul_u32_u24 v12, 1280, v4
            v_lshl_add_u32 v13, v5, 4, v12
            v_lshl_add_u32 v12, v5, 3, v12
            v_mul_u32_u24 v15, {PSTR}, v4
            v_lshl_add_u32 v15, v5, 4, v15
            s_mul_i32 s{sXO}, s{sTF}, {32*1280}
            s_mul_i32 s3, s{sFQ}, 320
            s_add_u32 s{sXO}, s{sXO}, s3
            s_lshl_b32 s3, s{sBW}, 4
            s_add_u32 s{sX4}, s{sXO}, s3
            s_add_u32 s{sX4}, s{sX4}, 256
            s_lshl_b32 s3, s{sBW}, 6
            s_add_u32 s{sXO}, s{sXO}, s3
            """)
            for i in range(4): a(f"buffer_load_dwordx2 {vr(X+2*i,2)}, v12, s[16:19], s{sXO} offen offset:{16*i}")
            a(f"buffer_load_dwordx2 {vr(X+8,2)}, v12, s[16:19], s{sX4} offen")
            vq.issue("X", 5)
        if c in (6, 7):
            for qd in ((0, 1) if c == 6 else (2, 3)):
                a(f"""
                s_add_u32 s3, s{sBW}, {qd}
                s_and_b32 s3, s3, 3
                s_mul_i32 s{sB}, s3, {10*20*1024}
                s_mul_i32 s{sT0}, s{sFQ}, 5
                s_add_u32 s{sT0}, s{sT0}, s{sBW}
                s_lshl_b32 s{sT0}, s{sT0}, 10
                s_add_u32 s{sB}, s{sB}, s{sT0}
                s_add_u32 s{sB}, s{sB}, {WOF_OFF}
                s_mul_i32 s3, s3, 10240
                s_add_u32 s3, s3, {OL}
                v_add_u32 v{vOq+qd}, s3, v{vL16}
                """)
                for j in range(10):
                    a(f"buffer_load_dwordx4 {vr(WP+4*(10*qd+j),4)}, v{vL16}, s[8:11], s{sB} offen{SC}")
                    if j < 9: a(f"s_add_u32 s{sB}, s{sB}, {20*1024}")
                vq.issue("W", 10)
        if c <= 6: a(vq.wait(f"D{c+1}"))
        a("s_barrier")
        if c + 3 <= 7: a(dma(c + 3))
    a(f"""
    s_mul_i32 s{sB}, s{sBW}, {10*20*1024}
    s_mul_i32 s{sT0}, s{sFQ}, 5
    s_add_u32 s{sT0}, s{sT0}, 4
    s_lshl_b32 s{sT0}, s{sT0}, 10
    s_add_u32 s{sB}, s{sB}, s{sT0}
    s_add_u32 s{sB}, s{sB}, {WOF_OFF}
    s_mul_i32 s{sT0}, s{sBW}, 10240
    s_add_u32 s{sT0}, s{sT0}, {W4L}
    v_add_u32 v14, s{sT0}, v{vL16}
    """)
    for j in range(10):
        a(f"s_add_u32 m0, s{sT0}, {j*1024}\ns_nop 0\nbuffer_load_dwordx4 v{vL16}, s[8:11], s{sB} offen{SC} lds")
        if j < 9: a(f"s_add_u32 s{sB}, s{sB}, {20*1024}")
    a(f"""
    s_lshl_b32 s{sT0}, s{sBW}, 7
    s_add_u32 s{sT0}, s{sT0}, {PART}
    v_add_u32 v16, s{sT0}, v15
    s_lshl_b32 s{sT0}, s{sBW}, 5
    s_add_u32 s{sT0}, s{sT0}, {PART+512}
    v_add_u32 v15, s{sT0}, v15
    """)
    TB = [184, 200]
    def grd(i):
        b = TB[i & 1]
        return "".join((f"ds_read_b128 {vr(b+4*w,4)}, v16 offset:{w*PBUF+32*i}\n" if i < 4 else f"ds_read_b128 {vr(b+4*w,4)}, v15 offset:{w*PBUF}\n") for w in range(4))
    a(grd(0))
    for i in range(5):
        b = TB[i & 1]; d = GF + 4*i
        if i < 4: a(grd(i + 1))
        a(f"s_waitcnt lgkmcnt({4 if i < 4 else 0})")
        for e in range(4): a(f"v_add_f32 v{b+e}, v{b+e}, v{b+4+e}\nv_add_f32 v{b+8+e}, v{b+8+e}, v{b+12+e}")
        for e in range(4): a(f"v_add_f32 v{d+e}, v{b+e}, v{b+8+e}")
    a(f"s_mov_b32 s{sT0}, {hexf(-1.4426950408889634)}")
    GT = 8
    for r in range(0, 20, 4):
        for e in range(4): a(f"v_mul_f32 v{GT+e}, s{sT0}, v{GF+r+e}")
        for e in range(4): a(f"v_exp_f32 v{GT+e}, v{GT+e}")
        for e in range(4): a(f"v_add_f32 v{GT+e}, 1.0, v{GT+e}")
        for e in range(4): a(f"v_rcp_f32 v{GT+e}, v{GT+e}")
        for e in range(4): a(f"v_mul_f32 v{GF+r+e}, v{GF+r+e}, v{GT+e}")
    a(f"""
    s_cmp_lg_u32 s{sBW}, 0
    s_cbranch_scc1 L_{name}_ready
    s_lshl_b32 s{sT0}, s{sTF}, 8
    s_add_u32 s{sT0}, s{sT0}, {FLG_OFF}
    v_mov_b32 v8, 0
    s_mov_b32 s{sT1}, 0
    L_{name}_poll:
    buffer_load_dword v9, v8, s[8:11], s{sT0} offen sc1
    s_add_u32 s{sT1}, s{sT1}, 1
    s_waitcnt vmcnt(0)
    v_readfirstlane_b32 s3, v9
    s_cmp_ge_u32 s3, 32
    s_cbranch_scc1 L_{name}_ready
    s_cmp_ge_u32 s{sT1}, 0x40000
    s_cbranch_scc1 L_{name}_ready
    s_sleep {E('SLP', '2')}
    s_branch L_{name}_poll
    L_{name}_ready:
    s_waitcnt vmcnt(0) lgkmcnt(0)
    s_barrier
    """)
    if DIAG: a(stamp(1))
    a(f"""
    s_mul_i32 s{sA}, s{sTF}, 40
    s_mul_i32 s3, s{sBW}, 10
    s_add_u32 s{sA}, s{sA}, s3
    s_lshl_b32 s{sA}, s{sA}, 10
    s_add_u32 s{sA}, s{sA}, {OF_OFF}
    s_mul_i32 s{sT0}, s{sBW}, 10240
    s_add_u32 s{sT0}, s{sT0}, {OL}
    """)
    for j in range(10):
        a(f"s_add_u32 m0, s{sT0}, {j*1024}\ns_nop 0\nbuffer_load_dwordx4 v{vL16}, s[8:11], s{sA} offen sc1 lds")
        if j < 9: a(f"s_add_u32 s{sA}, s{sA}, 1024")
    OB = [246, 250]; W4 = [8, 16]
    def rdo(u): return f"ds_read_b128 {vr(OB[u & 1],4)}, v{vOq + u//10} offset:{(u % 10)*1024}\n"
    def rdw(u): return f"ds_read_b128 {vr(W4[u & 1],4)}, v14 offset:{u*1024}\n"
    a("s_waitcnt vmcnt(8)")
    a(rdo(0) + rdw(0))
    for u in range(40):
        nxt = ""
        if u + 1 < 10 and (u + 1) % 2 == 0: a(f"s_waitcnt vmcnt({max(0, 10 - (u + 1) - 2)})")
        if u + 1 == 10: a("s_waitcnt vmcnt(0)\ns_barrier")
        if u + 1 < 40: nxt = rdo(u + 1) + (rdw(u + 1) if u + 1 < 10 else "")
        a(nxt)
        cnt = (1 if u + 1 < 40 else 0) + (1 if u + 1 < 10 else 0)
        a(f"s_waitcnt lgkmcnt({cnt})")
        a(mfma(AO, WP + 4*u, OB[u & 1], "0" if u == 0 else None))
        if u < 10: a(mfma(A4, W4[u & 1], OB[u & 1], "0" if u == 0 else None))
    if DIAG: a(stamp(2))
    a(f"""
    s_lshl_b32 s{sT0}, s{sBW}, 12
    s_add_u32 s{sT0}, s{sT0}, {X4L}
    v_add_u32 v14, s{sT0}, v{vL16}
    s_lshl_b32 s{sT0}, s{sBW}, 10
    s_add_u32 s{sT0}, s{sT0}, {X4L}
    v_add_u32 v15, s{sT0}, v{vL16}
    """)
    for i in range(4): a(f"ds_write_b128 v14, {vr(A4+4*i,4)} offset:{i*1024}")
    a("s_waitcnt lgkmcnt(0)\ns_barrier")
    for w in range(4): a(f"ds_read_b128 {vr(24+4*w,4)}, v15 offset:{w*4096}")
    def fin(sreg, g, x, d):
        t = f"""
        v_lshlrev_b32 v40, 16, v{x}
        v_and_b32 v41, 0xffff0000, v{x}
        v_lshlrev_b32 v42, 16, v{x+1}
        v_and_b32 v43, 0xffff0000, v{x+1}
        """
        for e in range(4): t += f"v_fma_f32 v{40+e}, v{sreg+e}, v{g+e}, v{40+e}\n"
        t += f"v_cvt_pk_bf16_f32 v{d}, v40, v41\nv_cvt_pk_bf16_f32 v{d+1}, v42, v43\n"
        return t
    for i in range(4): a(fin(AO+4*i, GF+4*i, X+2*i, 48+2*i))
    a(f"""
    v_permlane32_swap_b32 v48, v50
    v_permlane32_swap_b32 v49, v51
    v_permlane32_swap_b32 v52, v54
    v_permlane32_swap_b32 v53, v55
    buffer_store_dwordx4 v[48:51], v13, s[20:23], s{sXO} offen
    buffer_store_dwordx4 v[52:55], v13, s[20:23], s{sXO} offen offset:32
    s_waitcnt lgkmcnt(0)
    """)
    for e in range(4): a(f"v_add_f32 v{24+e}, v{24+e}, v{28+e}\nv_add_f32 v{32+e}, v{32+e}, v{36+e}")
    for e in range(4): a(f"v_add_f32 v{24+e}, v{24+e}, v{32+e}")
    a(fin(24, GF+16, X+8, 56))
    a(f"buffer_store_dwordx2 v[56:57], v12, s[20:23], s{sX4} offen")
    if DIAG: a(stamp(3))
    a(f"L_{name}_end:")
    a(d2_end())
    if DIAG:
        a(stamp(4)); a("s_waitcnt vmcnt(0)"); a(stamp(5)); a(stamp_flush(1, 6, 8))
    a(f"L_{name}_exit:\ns_endpgm")
    if not fused: a(kernel_desc(name, 254))
    return a.text()
```

```python
import sys, os
sys.path.insert(0, os.path.dirname(os.path.abspath(__file__)))
from common import *
import k1, k2, k3
HEADER = """; Kernarg layout for this problem (72 bytes, ptrs only, base s[0:1]):
;
"""
def build_fused(out):
    sym = NAME + "_kernel"
    txt = HEADER + f"; @launch grid=(256,1,1) block=(512,1,1) lds={k2.K2_LDS}\n"
    txt += '.amdgcn_target "amdgcn-amd-amdhsa--gfx950"\n'
    txt += k1.k1("p1", fused="L_p2_entry", sym=sym) + k2.k2("p2", fused="L_p2_entry") + "CODE_END:\n" + kernel_desc(sym, 254) + "\n"
    open(out, "w").write(txt)
def build(out):
    if E("FUSED", "1") == "1": return build_fused(out)
    launches = [("k1_gemm_kernel", 256, 512, k1.K1_LDS), ("k2_attn_kernel", 256, 512, k2.K2_LDS)]
    txt = HEADER
    for n, g, b, l in launches: txt += f"; @launch kernel={n} grid=({g},1,1) block=({b},1,1) lds={l}\n"
    txt += '.amdgcn_target "amdgcn-amd-amdhsa--gfx950"\n'
    txt += k1.k1("k1_gemm_kernel") + k2.k2("k2_attn_kernel")
    open(out, "w").write(txt)
if __name__ == "__main__":
    out = sys.argv[1] if len(sys.argv) > 1 else f"cdna_kernels/{NAME}.s"
    build(out)
    print("wrote", out)
```

```python
from common import *
CSL = 147456
K1_LDS = CSL + 512
XS, WS0 = 32768, 98304
ST = {"0": "", "1": " sc0 sc1", "2": " nt", "3": " sc1", "4": " sc0 sc1 nt"}[E("WT", "1")]
def k1(name, fused=None, sym=None):
    a = Asm()
    a(kernel_head(sym or name))
    NSTAT = 5 if fused else 4
    DONE = f"L_{name}_rdone" if fused else f"L_{name}_exit"
    sW, sTB, sCT, sLD, sXB, sWB, sM0X, sKS, sST, sT0, sT1, sCur = 32,33,34,35,36,37,38,39,40,41,42,43
    sScale, sWM, sWN, sFA, sDX, sDW, sXG, sWG, sP, sLD6, sMX, sMW = 45,46,47,48,49,50,51,52,53,54,60,61
    DBG = 56
    vLane = 1
    vXD, vWD = 194, 198
    vXA, vWA = 4, 8
    vCs, vTmp = 12, 14
    vEA = 16
    vAB = 24
    vPoll, vPollA = 28, 29
    FR = [32, 48]
    ACC = lambda ft, tt: 64 + (ft*2+tt)*16
    VST = 128
    a(f"""
    s_cmp_ge_u32 s2, 256
    s_cbranch_scc1 L_{name}_exit
    """)
    a(stamp(0))
    a(f"""
    s_load_dwordx4 s[4:7], s[0:1], 0
    s_load_dwordx2 s[8:9], s[0:1], 16
    s_load_dwordx4 s[12:15], s[0:1], 32
    s_load_dwordx2 s[16:17], s[0:1], 64
    s_load_dwordx2 s[18:19], s[0:1], 56
    v_lshrrev_b32 v2, 6, v0
    v_and_b32 v{vLane}, 63, v0
    v_readfirstlane_b32 s{sW}, v2
    s_and_b32 s{sT0}, s2, 7
    s_lshr_b32 s{sT1}, s2, 3
    s_and_b32 s{sKS}, s{sT1}, 3
    s_and_b32 s3, s{sT0}, 1
    s_lshl_b32 s3, s3, 2
    s_add_u32 s{sTB}, s{sKS}, s3
    s_lshr_b32 s{sCT}, s{sT0}, 1
    s_mul_i32 s{sCT}, s{sCT}, 7
    s_lshr_b32 s3, s{sT1}, 2
    s_add_u32 s{sCT}, s{sCT}, s3
    s_cmp_ge_u32 s3, 7
    s_cbranch_scc1 L_{name}_spare
    s_cmp_ge_u32 s{sCT}, 27
    s_cbranch_scc1 L_{name}_spare
    """)
    rot = E("ROT", "0")
    if rot == "1":
        a(f"""
        s_mul_i32 s3, s3, 3
        s_mul_i32 s{sKS}, s{sKS}, 5
        s_lshr_b32 s{sKS}, s{sKS}, 1
        s_add_u32 s{sKS}, s{sKS}, s3
        s_cmp_ge_u32 s{sKS}, 20
        s_cselect_b32 s3, 20, 0
        s_sub_u32 s{sKS}, s{sKS}, s3
        s_cmp_ge_u32 s{sKS}, 10
        s_cselect_b32 s3, 10, 0
        s_sub_u32 s{sKS}, s{sKS}, s3
        """)
    elif rot == "2":
        a(f"""
        s_add_u32 s3, s3, s{sKS}
        s_and_b32 s3, s3, 1
        s_mul_i32 s{sKS}, s3, 5
        """)
    else:
        a(f"s_mov_b32 s{sKS}, 0")
    a(f"""
    s_cmp_ge_u32 s{sCT}, 15
    s_cselect_b32 s{sLD}, 3072, 3840
    s_cselect_b32 s3, 15, 0
    s_sub_u32 s3, s{sCT}, s3
    s_lshl_b32 s{sWB}, s3, 8
    s_mul_i32 s{sXB}, s{sTB}, {256*1280}
    s_lshl_b32 s{sM0X}, s{sW}, 10
    s_lshl_b32 s{sLD6}, s{sLD}, 6
    s_and_b32 s{sWM}, s{sW}, 3
    s_lshr_b32 s{sWN}, s{sW}, 2
    s_and_b32 s{sFA}, s{sW}, 1
    s_lshr_b32 s{sP}, s{sWM}, 1
    v_lshrrev_b32 v12, 4, v{vLane}
    s_lshl_b32 s3, s{sW}, 2
    v_add_u32 v13, s3, v12
    v_xor_b32 v5, v13, v{vLane}
    v_and_b32 v5, 7, v5
    v_lshrrev_b32 v4, 3, v{vLane}
    v_lshl_add_u32 v4, s{sW}, 3, v4
    v_mul_u32_u24 v4, 1280, v4
    v_lshl_add_u32 v{vXD}, v5, 4, v4
    v_add_u32 v{vXD+1}, {64*1280}, v{vXD}
    v_add_u32 v{vXD+2}, {128*1280}, v{vXD}
    v_add_u32 v{vXD+3}, {192*1280}, v{vXD}
    v_lshlrev_b32 v5, 2, v12
    v_xor_b32 v5, v5, v{vLane}
    v_and_b32 v5, 15, v5
    v_mul_u32_u24 v4, s{sLD}, v13
    v_lshl_add_u32 v{vWD}, v5, 4, v4
    s_lshl_b32 s3, s{sLD}, 5
    v_add_u32 v{vWD+1}, s3, v{vWD}
    v_and_b32 v192, 31, v{vLane}
    v_lshrrev_b32 v193, 5, v{vLane}
    v_bfe_u32 v14, v{vLane}, 1, 3
    s_lshl_b32 s3, s{sP}, 1
    v_add_u32 v15, s3, v193
    v_xor_b32 v14, v14, v15
    v_lshl_add_u32 v15, s{sWM}, 6, v192
    v_lshlrev_b32 v15, 7, v15
    v_lshl_add_u32 v{vXA}, v14, 4, v15
    v_xor_b32 v{vXA+1}, 32, v{vXA}
    v_xor_b32 v{vXA+2}, 64, v{vXA}
    v_xor_b32 v{vXA+3}, 0x60, v{vXA}
    v_bfe_u32 v14, v{vLane}, 2, 2
    v_lshl_add_u32 v15, v193, 3, v14
    s_lshl_b32 s{sT0}, s{sP}, 4
    v_add_u32 v15, s{sT0}, v15
    s_lshl_b32 s3, s{sWN}, 1
    s_add_u32 s3, s3, s{sFA}
    v_xor_b32 v14, s3, v14
    v_lshlrev_b32 v14, 6, v14
    v_lshl_add_u32 v15, v15, 8, v14
    v_and_b32 v14, 1, v12
    v_lshl_add_u32 v15, v14, 5, v15
    v_and_b32 v14, 3, v{vLane}
    v_lshl_add_u32 v15, v14, 3, v15
    v_add_u32 v{vWA}, {WS0}, v15
    v_xor_b32 v{vWA+1}, 0x1000, v{vWA}
    v_xor_b32 v{vWA+2}, 64, v{vWA}
    v_xor_b32 v{vWA+3}, 0x1040, v{vWA}
    v_and_b32 v14, 127, v0
    v_lshlrev_b32 v14, 2, v14
    v_add_u32 v14, {CSL}, v14
    v_mov_b32 v{vCs}, 0
    v_mov_b32 v{vCs+1}, 0
    ds_write_b32 v14, v{vCs}
    s_mov_b32 s{sST}, 0
    s_mov_b32 s{sCur}, 0
    s_mov_b32 s{sScale}, 0xffff0000
    s_waitcnt lgkmcnt(0)
    """)
    a(stamp(6))
    a(srd(20, "s4", "s5", S*D*2))
    a(f"""
    s_cmp_ge_u32 s{sCT}, 15
    s_cselect_b32 s24, s12, s6
    s_cselect_b32 s25, s13, s7
    s_cselect_b32 s26, {640*3072}, {640*3840}
    s_mov_b32 s27, 0x00020000
    v_mov_b32 v{vPollA}, 0
    v_mov_b32 v{vEA}, 0
    v_mov_b32 v{vEA+1}, 0
    """)
    a(srd(28, "s16", "s17", WS_SIZE))
    a(srd(DBG, "s18", "s19", 256))
    def issue_pre():
        t = f"s_lshl_b32 s{sXG}, s{sKS}, 7\ns_add_u32 s{sXG}, s{sXG}, s{sXB}\n"
        t += f"s_mul_i32 s{sWG}, s{sLD6}, s{sKS}\ns_add_u32 s{sWG}, s{sWG}, s{sWB}\n"
        t += f"s_add_u32 s{sKS}, s{sKS}, 1\ns_cmp_ge_u32 s{sKS}, 10\ns_cselect_b32 s{sKS}, 0, s{sKS}\n"
        return t
    def dma_m0(i): return f"s_add_u32 m0, s{sMX}, {i*8192}\n" if i < 4 else f"s_add_u32 m0, s{sMW}, {(i-4)*8192}\n"
    def dma_ld(i):
        if i < 4: return f"buffer_load_dwordx4 v{vXD+i}, s[20:23], s{sXG} offen lds\n"
        return f"buffer_load_dwordx4 v{vWD+i-4}, s[24:27], s{sWG} offen lds\n"
    def issue():
        t = issue_pre()
        for i in range(6): t += dma_m0(i) + "s_nop 0\n" + dma_ld(i)
        return t
    def slot_m0(slot_sgpr=None, slot=None):
        if slot is not None:
            return f"s_add_u32 s{sMX}, s{sM0X}, {slot*XS}\ns_add_u32 s{sMW}, s{sM0X}, {WS0+slot*16384}\n"
        return (f"s_lshl_b32 s{sMX}, s{slot_sgpr}, 15\ns_add_u32 s{sMX}, s{sMX}, s{sM0X}\n"
                f"s_lshl_b32 s{sMW}, s{slot_sgpr}, 14\ns_add_u32 s{sMW}, s{sMW}, s{sM0X}\ns_add_u32 s{sMW}, s{sMW}, {WS0}\n")
    if E("PF", "0") != "0":
        PF0 = int(E("PF0", "3"))
        a(f"""
        s_add_u32 s{sT0}, s{sW}, {PF0}
        s_cmp_ge_u32 s{sT0}, 10
        s_cbranch_scc1 L_{name}_nopf
        s_lshr_b32 s{sT1}, s2, 3
        s_mul_i32 s3, s{sT1}, 37
        v_add_u32 v14, s3, v{vLane}
        v_min_u32 v14, 0x3ff, v14
        s_and_b32 s3, s2, 1
        s_lshl_b32 s3, s3, 10
        v_add_u32 v14, s3, v14
        v_mul_u32_u24 v14, 1280, v14
        s_lshl_b32 s3, s{sT0}, 7
        s_mov_b32 exec_hi, 0x1f
        buffer_load_dword v30, v14, s[20:23], s3 offen
        s_mov_b64 exec, 0xffffffff
        s_lshl_b32 s3, s{sT1}, 5
        v_add_u32 v14, s3, v{vLane}
        v_mul_u32_u24 v15, 4682, v14
        v_lshrrev_b32 v15, 16, v15
        v_mul_u32_u24 v18, 14, v15
        v_sub_u32 v14, v14, v18
        s_lshl_b32 s3, s{sT0}, 6
        v_add_u32 v15, s3, v15
        s_bfe_u32 s3, s2, 0x20001
        s_mul_i32 s3, s3, 14
        v_add_u32 v14, s3, v14
        v_min_u32 v14, 53, v14
        v_lshlrev_b32 v14, 7, v14
        v_cmp_gt_u32 vcc, 3840, v14
        v_mul_u32_u24 v18, 3840, v15
        v_mul_u32_u24 v19, 3072, v15
        v_add_u32 v18, v18, v14
        v_add_u32 v19, v19, v14
        v_subrev_u32 v19, 3840, v19
        v_cndmask_b32 v18, v19, v18, vcc
        v_mov_b32 v20, s12
        v_mov_b32 v21, s13
        v_mov_b32 v22, s6
        v_mov_b32 v23, s7
        v_cndmask_b32 v20, v20, v22, vcc
        v_cndmask_b32 v21, v21, v23, vcc
        v_add_co_u32 v20, vcc, v20, v18
        s_nop 1
        v_addc_co_u32 v21, vcc, 0, v21, vcc
        global_load_dword v31, v[20:21], off
        s_mov_b64 exec, -1
        L_{name}_nopf:
        """)
    NPRE = int(E("NPRE", "2"))
    a(f"L_{name}_pre:")
    a(slot_m0(slot_sgpr=sCur)); a(issue())
    a(f"""
    s_add_u32 s{sCur}, s{sCur}, 1
    s_cmp_lt_u32 s{sCur}, {NPRE}
    {"s_barrier" if E("PBAR", "1") == "1" else "s_nop 0"}
    s_cbranch_scc1 L_{name}_pre
    """)
    if NPRE == 2: a(slot_m0(slot_sgpr=sCur) + issue_pre())
    a(f"s_mov_b32 s{sCur}, 0")
    a(stamp(7))
    def late_setup(orient):
        t = f"""
        s_lshl_b32 s{sT0}, s{sTB}, 2
        v_mov_b32 v{vPollA}, s{sT0}
        """
        if orient == 1:
            t += f"""
            s_mov_b32 s{sT1}, 52429
            s_sub_u32 s3, s{sCT}, 10
            s_lshl_b32 s3, s3, 7
            s_lshl_b32 s{sT0}, s{sWN}, 6
            s_add_u32 s3, s3, s{sT0}
            v_mul_u32_u24 v24, 320, v193
            """
            for ft in range(2):
                t += f"""
                s_xor_b32 s{sT0}, s{sFA}, {ft}
                s_lshl_b32 s{sT0}, s{sT0}, 5
                s_add_u32 s{sT0}, s{sT0}, s3
                v_add_u32 v30, s{sT0}, v192
                v_mul_u32_u24 v31, s{sT1}, v30
                v_lshrrev_b32 v31, 20, v31
                v_mul_u32_u24 v25, 20, v31
                v_sub_u32 v25, v30, v25
                v_mul_u32_u24 v31, {128*640}, v31
                v_lshl_add_u32 v31, v25, 4, v31
                v_add_u32 v{vEA+ft}, v31, v24
                """
        return t
    def reads(s, fs):
        if E("NOREAD"): return [""] * 6
        b = FR[fs]
        t = [f"ds_read_b128 {vr(b,4)}, v{vXA+s}\n", f"ds_read_b128 {vr(b+4,4)}, v{vXA+s} offset:4096\n"]
        for ft in range(2):
            o = (s >> 1) * 8192
            t.append(f"ds_read_b64_tr_b16 {vr(b+8+ft*4,2)}, v{vWA+ft*2+(s&1)} offset:{o}\n")
            t.append(f"ds_read_b64_tr_b16 {vr(b+10+ft*4,2)}, v{vWA+ft*2+(s&1)} offset:{o+1024}\n")
        return t
    def compute(s, fs, orient, zero=False, rd=None, extra=None):
        b = FR[fs]; X = [b, b+4]; W = [b+8, b+12]
        t = ""; k = 0
        for ft in range(2):
            for tt in range(2):
                c = "0" if zero else None
                if orient == 0: t += mfma(ACC(ft,tt), W[ft], X[tt], c) + "\n"
                else: t += mfma(ACC(ft,tt), X[tt], W[ft], c) + "\n"
                if extra: t += extra[k]
                elif rd and k < 3: t += rd[2*k] + rd[2*k+1]
                if (s & 1) == 0 and not E("NOCS"):
                    t += f"v_lshlrev_b32 v{vTmp}, 16, v{W[0]+k}\nv_and_b32 v{vTmp+1}, s{sScale}, v{W[0]+k}\n"
                    t += f"v_add_f32 v{vCs}, v{vCs}, v{vTmp}\nv_add_f32 v{vCs+1}, v{vCs+1}, v{vTmp+1}\n"
                k += 1
        return t
    def dma_extra(rd):
        return [dma_m0(0) + rd[0] + dma_ld(0) + dma_m0(1) + rd[1] + dma_ld(1),
                dma_m0(2) + rd[2] + dma_ld(2) + dma_m0(3) + rd[3] + dma_ld(3),
                dma_m0(4) + rd[4] + dma_ld(4) + dma_m0(5) + rd[5] + dma_ld(5), ""]
    a(f"""
    s_waitcnt vmcnt({6*(NPRE-1)})
    s_barrier
    """)
    a(stamp(1))
    a("".join(reads(0, 0)))
    a(f"""
    s_cmp_ge_u32 s{sCT}, 10
    s_cbranch_scc0 L_{name}_ent0
    s_cmp_lt_u32 s{sCT}, 15
    s_cbranch_scc1 L_{name}_ent1
    """)
    def rotate_s():
        return f"""s_cmp_eq_u32 s{sCur}, 2
        s_cselect_b32 s{sDX}, {-2*XS & 0xffffffff}, {XS}
        s_cselect_b32 s{sDW}, {-2*16384 & 0xffffffff}, 16384
        s_cselect_b32 s{sCur}, -1, s{sCur}
        s_add_u32 s{sCur}, s{sCur}, 1
        """
    def rotate_v(lo, hi):
        t = ""
        for r in range(lo, hi):
            t += f"v_add_u32 v{vXA+r}, s{sDX}, v{vXA+r}\nv_add_u32 v{vWA+r}, s{sDW}, v{vWA+r}\n"
        return t
    for orient in range(2):
        L = f"L_{name}_loop{orient}"
        a(f"L_{name}_ent{orient}:")
        a("s_waitcnt lgkmcnt(0)")
        if NPRE == 2: a(compute(0, 0, orient, zero=True, extra=dma_extra(reads(1, 1))))
        else: a(compute(0, 0, orient, zero=True, rd=reads(1, 1)))
        a(f"s_branch {L}_k1")
        a(f"{L}:")
        a("s_waitcnt lgkmcnt(0)")
        a(compute(0, 0, orient, rd=reads(1, 1)))
        a(f"{L}_k1:")
        a("s_waitcnt lgkmcnt(0)")
        r2 = reads(2, 0)
        a(compute(1, 1, orient, extra=[r2[0] + r2[1] + slot_m0(slot_sgpr=sCur), r2[2] + r2[3] + issue_pre(), r2[4] + r2[5] + rotate_s(), ""]))
        a("s_waitcnt lgkmcnt(0)")
        r3 = reads(3, 1)
        a(compute(2, 0, orient, extra=[r3[0] + r3[1], r3[2] + r3[3], r3[4] + r3[5], rotate_v(0, 4)]))
        a(f"""
        s_cmp_ge_u32 s{sST}, 7
        s_cbranch_scc1 {L}_tail
        s_waitcnt vmcnt(6) lgkmcnt(0)
        s_barrier
        """)
        a(compute(3, 1, orient, extra=dma_extra(reads(0, 0))))
        a(f"""
        s_add_u32 s{sST}, s{sST}, 1
        s_branch {L}
        {L}_tail:
        s_cmp_ge_u32 s{sST}, 9
        s_cbranch_scc1 {L}_last
        s_cmp_ge_u32 s{sST}, 8
        s_cbranch_scc1 {L}_w0
        s_waitcnt vmcnt(6) lgkmcnt(0)
        s_barrier
        """)
        a(late_setup(orient))
        a(f"""
        buffer_load_dword v{vPoll}, v{vPollA}, s[{DBG}:{DBG+3}], 0 offen sc1
        s_branch {L}_go
        {L}_w0:
        s_waitcnt vmcnt(0) lgkmcnt(0)
        s_barrier
        s_mov_b32 s{sT1}, 0
        {L}_spin:
        v_readfirstlane_b32 s{sT0}, v{vPoll}
        s_add_u32 s{sT1}, s{sT1}, 1
        s_cmp_ge_u32 s{sT0}, {0 if E("NOSPARE") else NSTAT}
        s_cbranch_scc1 {L}_got
        s_cmp_ge_u32 s{sT1}, 0x40000
        s_cbranch_scc1 {L}_got
        s_sleep 2
        buffer_load_dword v{vPoll}, v{vPollA}, s[{DBG}:{DBG+3}], 0 offen sc1
        s_waitcnt vmcnt(0)
        s_branch {L}_spin
        {L}_got:
        s_lshl_b32 s{sT0}, s{sTB}, 10
        s_lshl_b32 s{sT1}, s{sWM}, 8
        s_add_u32 s{sT0}, s{sT0}, s{sT1}
        s_add_u32 s{sT0}, s{sT0}, {STA_OFF}
        s_add_u32 s{sT1}, s{sT0}, 8192
        """)
        if orient == 0:
            a(f"""
            v_lshlrev_b32 v30, 2, v192
            buffer_load_dword v{vAB}, v30, s[28:31], s{sT0} offen sc1
            buffer_load_dword v{vAB+1}, v30, s[28:31], s{sT1} offen sc1
            buffer_load_dword v{vAB+2}, v30, s[28:31], s{sT0} offen offset:128 sc1
            buffer_load_dword v{vAB+3}, v30, s[28:31], s{sT1} offen offset:128 sc1
            """)
        else:
            a("v_lshlrev_b32 v30, 4, v193")
            for tt in range(2):
                for i in range(4):
                    a(f"buffer_load_dwordx4 {vr(VST+32*tt+4*i,4)}, v30, s[28:31], s{sT0} offen offset:{tt*128+i*32} sc1")
                    a(f"buffer_load_dwordx4 {vr(VST+32*tt+16+4*i,4)}, v30, s[28:31], s{sT1} offen offset:{tt*128+i*32} sc1")
        a(f"{L}_go:")
        a(compute(3, 1, orient, rd=reads(0, 0)))
        a(f"""
        s_add_u32 s{sST}, s{sST}, 1
        s_branch {L}
        {L}_last:
        s_waitcnt lgkmcnt(0)
        """)
        a(compute(3, 1, orient))
        if orient == 0: a(f"s_branch L_{name}_stats")
    a(f"L_{name}_stats:")
    a(stamp(2))
    a(f"""
    v_add_f32 v{vCs}, v{vCs}, v{vCs+1}
    v_mov_b32 v{vTmp}, v{vCs}
    s_lshl_b32 s{sT0}, s{sWN}, 6
    s_lshl_b32 s{sT1}, s{sFA}, 5
    s_add_u32 s{sT0}, s{sT0}, s{sT1}
    v_mov_b32 v13, v{vCs}
    s_nop 1
    v_permlane32_swap_b32 v13, v{vTmp}
    v_add_u32 v30, s{sT0}, v192
    v_lshlrev_b32 v30, 2, v30
    v_add_u32 v30, {CSL}, v30
    v_add_f32 v13, v13, v{vTmp}
    s_mov_b64 exec, 0xffffffff
    ds_add_f32 v30, v13
    s_mov_b64 exec, -1
    s_lshl_b32 s{sT0}, s{sTB}, 3
    s_lshl_b32 s{sT1}, s{sWM}, 1
    s_add_u32 s{sST}, s{sT0}, s{sT1}
    s_waitcnt lgkmcnt(0)
    s_barrier
    """)
    a(stamp(3))
    a(f"""
    s_cmp_ge_u32 s{sCT}, 10
    s_cbranch_scc0 L_{name}_epiT
    s_cmp_lt_u32 s{sCT}, 15
    s_cbranch_scc1 L_{name}_epiV
    L_{name}_epiT:
    s_lshl_b32 s{sT0}, s{sWN}, 8
    v_lshlrev_b32 v30, 4, v193
    v_add_u32 v30, s{sT0}, v30
    v_add_u32 v30, {CSL}, v30
    s_lshl_b32 s{sT0}, s{sFA}, 7
    v_add_u32 v31, s{sT0}, v30
    s_xor_b32 s{sT0}, s{sT0}, 128
    v_add_u32 v30, s{sT0}, v30
    """)
    for i in range(4): a(f"ds_read_b128 {vr(32+4*i,4)}, v31 offset:{i*32}")
    for i in range(4): a(f"ds_read_b128 {vr(48+4*i,4)}, v30 offset:{i*32}")
    def norm_pair_tok(accreg, csreg, ab, tmp):
        return (f"v_pk_mul_f32 {vr(tmp,2)}, {vr(csreg,2)}, {vr(ab,2)} op_sel:[0,1] op_sel_hi:[1,1]\n"
                f"v_pk_fma_f32 {vr(accreg,2)}, {vr(accreg,2)}, {vr(ab,2)}, {vr(tmp,2)} op_sel:[0,0,0] op_sel_hi:[1,0,1]\n")
    a(f"""
    s_cmp_lt_u32 s{sCT}, 5
    s_cselect_b32 s{sScale}, {hexf(QSCALE)}, 1.0
    s_cselect_b32 s{sXG}, {QF_OFF}, {KF_OFF}
    s_cselect_b32 s3, 0, 5
    s_sub_u32 s3, s{sCT}, s3
    s_lshl_b32 s3, s3, 4
    s_lshl_b32 s{sT0}, s{sWN}, 3
    s_add_u32 s3, s3, s{sT0}
    s_mul_i32 s{sT0}, s{sST}, 80
    s_add_u32 s3, s3, s{sT0}
    s_lshl_b32 s3, s3, 9
    s_add_u32 s{sXG}, s{sXG}, s3
    v_lshlrev_b32 v{vEA}, 4, v192
    v_lshl_add_u32 v{vEA}, v193, 9, v{vEA}
    s_waitcnt vmcnt(0)
    """)
    for r in range(4): a(f"v_mul_f32 v{vAB+r}, s{sScale}, v{vAB+r}")
    a(f"""
    s_cmp_ge_u32 s{sCT}, 15
    s_cbranch_scc1 L_{name}_epiH
    s_waitcnt lgkmcnt(0)
    """)
    for ft in range(2):
        for tt in range(2):
            ab = vAB + 2*tt
            a(f"""
            s_xor_b32 s{sT0}, s{sFA}, {ft}
            s_lshl_b32 s{sT0}, s{sT0}, 11
            s_add_u32 s{sT0}, s{sT0}, s{sXG}
            """)
            if tt: a(f"s_add_u32 s{sT0}, s{sT0}, {80*512}")
            for half in range(2):
                A0 = ACC(ft,tt) + 8*half
                for i in range(2):
                    A = A0 + 4*i; C = 32 + ft*16 + 8*half + 4*i
                    a(norm_pair_tok(A, C, ab, 28)); a(norm_pair_tok(A+2, C+2, ab, 30))
                for p in range(4): a(f"v_cvt_pk_bf16_f32 v{A0+p}, v{A0+2*p}, v{A0+2*p+1}")
                a(f"s_nop 0\nv_permlane32_swap_b32 v{A0}, v{A0+2}\nv_permlane32_swap_b32 v{A0+1}, v{A0+3}")
                a(f"buffer_store_dwordx4 {vr(A0,4)}, v{vEA}, s[28:31], s{sT0} offen offset:{half*1024}{ST}")
    a(f"s_branch L_{name}_end")
    a(f"L_{name}_epiH:")
    a(f"""
    s_mul_i32 s{sT0}, s{sST}, 96
    s_sub_u32 s3, s{sCT}, 15
    s_lshl_b32 s3, s3, 3
    s_add_u32 s{sT0}, s{sT0}, s3
    s_lshl_b32 s3, s{sWN}, 2
    s_add_u32 s{sT0}, s{sT0}, s3
    s_lshl_b32 s{sT0}, s{sT0}, 10
    s_add_u32 s{sXG}, s{sT0}, {HF_OFF}
    v_lshlrev_b32 v4, 4, v{vLane}
    s_waitcnt lgkmcnt(0)
    """)
    for ft in range(2):
        for tt in range(2):
            ab = vAB + 2*tt
            a(f"""
            s_xor_b32 s{sT0}, s{sFA}, {ft}
            s_lshl_b32 s{sT0}, s{sT0}, 11
            s_add_u32 s{sT0}, s{sT0}, s{sXG}
            s_add_u32 s{sT0}, s{sT0}, {tt*96*1024}
            """)
            for half in range(2):
                A0 = ACC(ft,tt) + 8*half
                for i in range(2):
                    A = A0 + 4*i; C = 32 + ft*16 + 8*half + 4*i
                    a(norm_pair_tok(A, C, ab, 28)); a(norm_pair_tok(A+2, C+2, ab, 30))
                for p in range(4):
                    a(f"v_cvt_pk_bf16_f32 v{A0+p}, v{A0+2*p}, v{A0+2*p+1}")
                for p in range(4):
                    a(f"v_pk_max_i16 v{A0+p}, v{A0+p}, 0")
                a(f"buffer_store_dwordx4 {vr(A0,4)}, v4, s[28:31], s{sT0} offen offset:{half*1024}{ST}")
    a(f"s_branch L_{name}_end")
    a(f"L_{name}_epiV:")
    a(f"""
    s_lshl_b32 s{sT0}, s{sWN}, 6
    v_add_u32 v30, s{sT0}, v192
    v_lshlrev_b32 v30, 2, v30
    v_add_u32 v30, {CSL}, v30
    s_lshl_b32 s{sT1}, s{sFA}, 7
    v_add_u32 v31, s{sT1}, v30
    s_xor_b32 s{sT1}, s{sT1}, 128
    v_add_u32 v30, s{sT1}, v30
    ds_read_b32 v24, v31
    ds_read_b32 v26, v30
    s_mul_i32 s{sT0}, s{sST}, 1280
    s_add_u32 s{sXG}, s{sT0}, {VF_OFF}
    s_waitcnt vmcnt(0) lgkmcnt(0)
    """)
    for tt in range(2):
        if tt == 1: a(f"s_add_u32 s{sXG}, s{sXG}, 1280")
        for ft in range(2):
            cs = 24 + 2*ft
            A0 = ACC(ft,tt)
            for p in range(8):
                A = A0 + 2*p
                tmp = 28 + 2*(p & 1)
                a(f"v_pk_mul_f32 {vr(tmp,2)}, {vr(VST+32*tt+16+2*p,2)}, {vr(cs,2)} op_sel:[0,0] op_sel_hi:[1,0]")
                a(f"v_pk_fma_f32 {vr(A,2)}, {vr(A,2)}, {vr(VST+32*tt+2*p,2)}, {vr(tmp,2)}")
            for p in range(8): a(f"v_cvt_pk_bf16_f32 v{A0+p}, v{A0+2*p}, v{A0+2*p+1}")
            a(f"buffer_store_dwordx4 {vr(A0,4)}, v{vEA+ft}, s[28:31], s{sXG} offen{ST}")
            a(f"buffer_store_dwordx4 {vr(A0+4,4)}, v{vEA+ft}, s[28:31], s{sXG} offen offset:640{ST}")
    a(f"s_branch L_{name}_end")
    a(f"L_{name}_spare:")
    if E("NOSPARE"): a(f"s_branch L_{name}_exit")
    a(f"""
    s_and_b32 s{sT0}, s2, 7
    s_lshr_b32 s{sT1}, s2, 3
    s_cmp_ge_u32 s{sT1}, 28
    s_cbranch_scc1 L_{name}_sp1
    s_sub_u32 s{sT0}, s{sT0}, 6
    s_lshl_b32 s{sT0}, s{sT0}, 2
    s_add_u32 s{sT0}, s{sT0}, s{sT1}
    s_add_u32 s{sST}, s{sT0}, 8
    s_branch L_{name}_sp2
    L_{name}_sp1:
    s_lshl_b32 s{sT0}, s{sT0}, 2
    s_add_u32 s{sT0}, s{sT0}, s{sT1}
    s_sub_u32 s{sST}, s{sT0}, 28
    L_{name}_sp2:
    v_lshrrev_b32 v4, 4, v{vLane}
    v_and_b32 v5, 15, v{vLane}
    v_mul_u32_u24 v6, 1280, v4
    v_lshl_add_u32 v6, v5, 4, v6
    s_waitcnt lgkmcnt(0)
    """)
    a(srd(28, "s16", "s17", WS_SIZE))
    a(srd(DBG, "s18", "s19", 256))
    if E("TLBW", "0") == "1":
        a(f"""
        s_load_dwordx2 s[62:63], s[0:1], 48
        v_and_b32 v7, 15, v{vLane}
        v_lshlrev_b32 v7, 21, v7
        v_min_u32 v7, {WS_SIZE-4}, v7
        buffer_load_dword v25, v7, s[28:31], 0 offen
        s_waitcnt lgkmcnt(0)
        """)
        a(srd(20, "s62", "s63", S*D*2))
        a(f"""
        v_and_b32 v7, 1, v{vLane}
        v_lshlrev_b32 v7, 21, v7
        buffer_load_dword v26, v7, s[20:23], 0 offen
        """)
    if fused:
        a(f"""
        s_cmp_lg_u32 s{sST}, 39
        s_cbranch_scc1 L_{name}_noinit
        s_cmp_ge_u32 s{sW}, 2
        s_cbranch_scc1 L_{name}_init1
        v_lshlrev_b32 v7, 8, v0
        v_mov_b32 v8, 0
        s_mov_b32 s3, {FLG_OFF}
        buffer_store_dword v8, v7, s[28:31], s3 offen sc0 sc1
        s_waitcnt vmcnt(0)
        L_{name}_init1:
        s_barrier
        s_cmp_lg_u32 s{sW}, 0
        s_cbranch_scc1 L_{name}_noinit
        v_lshlrev_b32 v7, 2, v{vLane}
        v_mov_b32 v8, 1
        s_mov_b64 exec, 0xff
        buffer_atomic_add v8, v7, s[{DBG}:{DBG+3}], 0 offen sc1
        s_mov_b64 exec, -1
        L_{name}_noinit:
        """)
    a(f"""
    s_cmp_ge_u32 s{sST}, 32
    s_cbranch_scc1 L_{name}_relay
    """)
    a(srd(20, "s4", "s5", S*D*2))
    a(f"""
    s_lshl_b32 s{sT0}, s{sST}, 6
    s_lshl_b32 s{sT1}, s{sW}, 3
    s_add_u32 s{sT0}, s{sT0}, s{sT1}
    s_mul_i32 s{sXG}, s{sT0}, 1280
    s_add_u32 s{sWG}, s{sXG}, {4*1280}
    """)
    SPF = E("SPF", "1") == "1"
    def pf():
        if not SPF: return ""
        return "global_load_dword v24, v[20:21], off\nv_add_co_u32 v20, vcc, v22, v20\ns_nop 1\nv_addc_co_u32 v21, vcc, 0, v21, vcc\n"
    if SPF:
        a(f"""
        s_and_b32 s3, s{sST}, 3
        s_lshl_b32 s3, s3, 3
        s_add_u32 s3, s3, s{sW}
        s_cmp_ge_u32 s3, 16
        s_cbranch_scc1 L_{name}_pfw
        v_lshl_add_u32 v20, s3, 6, v{vLane}
        s_and_b32 s3, s2, 1
        s_lshl_b32 s3, s3, 10
        v_add_u32 v20, s3, v20
        v_mul_u32_u24 v20, 1280, v20
        v_add_u32 v20, {3*128}, v20
        v_mov_b32 v22, 128
        v_mov_b32 v18, s4
        v_mov_b32 v21, s5
        s_branch L_{name}_pfa
        L_{name}_pfw:
        s_sub_u32 s3, s3, 16
        s_min_u32 s3, s3, 13
        v_lshl_add_u32 v16, s3, 6, v{vLane}
        v_mul_u32_u24 v17, 4682, v16
        v_lshrrev_b32 v17, 16, v17
        v_mul_u32_u24 v18, 14, v17
        v_sub_u32 v16, v16, v18
        s_bfe_u32 s3, s2, 0x20001
        s_mul_i32 s3, s3, 14
        v_add_u32 v16, s3, v16
        v_min_u32 v16, 53, v16
        v_lshlrev_b32 v16, 7, v16
        v_add_u32 v17, {3*64}, v17
        v_cmp_gt_u32 vcc, 3840, v16
        v_mul_u32_u24 v18, 3840, v17
        v_mul_u32_u24 v19, 3072, v17
        v_add_u32 v18, v18, v16
        v_add_u32 v19, v19, v16
        v_subrev_u32 v19, 3840, v19
        v_cndmask_b32 v20, v19, v18, vcc
        v_mov_b32 v18, s12
        v_mov_b32 v21, s13
        v_mov_b32 v16, s6
        v_mov_b32 v17, s7
        v_cndmask_b32 v18, v18, v16, vcc
        v_cndmask_b32 v21, v21, v17, vcc
        v_mov_b32 v22, {64*3072}
        v_mov_b32 v16, {64*3840}
        v_cndmask_b32 v22, v22, v16, vcc
        L_{name}_pfa:
        v_add_co_u32 v20, vcc, v18, v20
        s_nop 1
        v_addc_co_u32 v21, vcc, 0, v21, vcc
        """)
        a(pf() * int(E("NPF1", "1")))
    for g in range(2):
        for i in range(5):
            a(f"buffer_load_dwordx4 {vr(32+20*g+4*i,4)}, v6, s[20:23], s{sXG if g==0 else sWG} offen offset:{i*256}")
    EARLY = E("EARLY", "1") == "1"
    if EARLY:
        a(f"""
        s_cmp_lt_u32 s{sST}, 8
        s_cbranch_scc1 L_{name}_noearly
        v_lshlrev_b32 v2, 4, v{vLane}
        s_lshl_b32 s{sM0X}, s{sW}, 10
        s_sub_u32 s3, s{sST}, 8
        s_mul_i32 s{sWB}, s3, 81920
        """)
        a(srd(24, "s14", "s15", 1536*1280))
        for j in range(10):
            a(f"""
            s_add_u32 s3, s{sM0X}, {j*8192}
            s_mov_b32 m0, s3
            s_add_u32 s3, s3, s{sWB}
            buffer_load_dwordx4 v2, s[24:27], s3 offen lds
            """)
        a(f"""
        s_waitcnt vmcnt(10)
        s_branch L_{name}_early1
        L_{name}_noearly:
        s_waitcnt vmcnt(0)
        L_{name}_early1:
        """)
    for g in range(2):
        if not EARLY: a(f"s_waitcnt vmcnt({5 if g == 0 else 0})")
        su, sq = 8 + 4*g, 10 + 4*g
        a(f"v_mov_b32 v{su}, 0\nv_mov_b32 v{su+1}, 0\nv_mov_b32 v{sq}, 0\nv_mov_b32 v{sq+1}, 0")
        for r in range(20):
            x = 32 + 20*g + r; t = 16 + 2*(r & 1)
            a(f"v_lshlrev_b32 v{t}, 16, v{x}\nv_and_b32 v{t+1}, 0xffff0000, v{x}")
            a(f"v_pk_add_f32 {vr(su,2)}, {vr(su,2)}, {vr(t,2)}\nv_pk_fma_f32 {vr(sq,2)}, {vr(t,2)}, {vr(t,2)}, {vr(sq,2)}")
        a(f"v_add_f32 v{su}, v{su}, v{su+1}\nv_add_f32 v{sq}, v{sq}, v{sq+1}")
    for sh in (8, 4, 2, 1):
        a("s_nop 1")
        for r in (8, 10, 12, 14):
            a(f"v_add_f32_dpp v{r}, v{r}, v{r} row_ror:{sh} row_mask:0xf bank_mask:0xf")
    a(f"s_mov_b32 s{sT1}, {hexf(1.0/640)}")
    for g in range(2):
        su, sq = 8 + 4*g, 10 + 4*g
        a(f"""
        v_mul_f32 v{su}, s{sT1}, v{su}
        v_mul_f32 v{sq}, s{sT1}, v{sq}
        v_fma_f32 v{sq}, -v{su}, v{su}, v{sq}
        v_max_f32 v{sq}, 0, v{sq}
        v_add_f32 v{sq}, {hexf(1e-5)}, v{sq}
        v_rsq_f32 v{sq}, v{sq}
        s_nop 0
        v_mul_f32 v{su}, v{su}, v{sq}
        v_sub_f32 v{su}, 0, v{su}
        """)
    a(f"""
    v_lshlrev_b32 v7, 2, v4
    s_lshl_b32 s{sT0}, s{sT0}, 2
    s_add_u32 s{sT0}, s{sT0}, {STA_OFF}
    s_add_u32 s{sT1}, s{sT0}, 8192
    s_mov_b32 s60, 0x00010001
    s_mov_b32 s61, 0x00010001
    s_mov_b64 exec, s[60:61]
    buffer_store_dword v10, v7, s[28:31], s{sT0} offen sc0 sc1
    buffer_store_dword v8, v7, s[28:31], s{sT1} offen sc0 sc1
    buffer_store_dword v14, v7, s[28:31], s{sT0} offen offset:16 sc0 sc1
    buffer_store_dword v12, v7, s[28:31], s{sT1} offen offset:16 sc0 sc1
    s_mov_b64 exec, -1
    s_waitcnt vmcnt(0)
    s_barrier
    """)
    a(f"""
    s_cmp_lg_u32 s{sW}, 0
    s_cbranch_scc1 L_{name}_relay
    s_lshr_b32 s{sT0}, s{sST}, 2
    s_lshl_b32 s{sT0}, s{sT0}, 2
    v_mov_b32 v7, s{sT0}
    v_mov_b32 v8, 1
    s_mov_b64 exec, 1
    buffer_atomic_add v8, v7, s[{DBG}:{DBG+3}], 0 offen sc1
    s_mov_b64 exec, -1
    L_{name}_relay:
    """)
    if not fused:
        a(f"""
        s_cmp_lg_u32 s{sST}, 39
        s_cbranch_scc1 L_{name}_nz
        v_and_b32 v7, 63, v0
        v_lshlrev_b32 v7, 8, v7
        v_mov_b32 v8, 0
        s_mov_b32 s{sT0}, {FLG_OFF}
        buffer_store_dword v8, v7, s[28:31], s{sT0} offen
        L_{name}_nz:
        """)
    NP2 = (7 - int(E("NPF1", "1"))) if SPF else 0
    a(f"""
    s_cmp_ge_u32 s{sST}, 8
    s_cbranch_scc1 L_{name}_rjob
    """)
    a(pf() * NP2)
    a(f"""
    s_branch {fused or ("L_" + name + "_exit")}
    L_{name}_rjob:
    s_sub_u32 s{sST}, s{sST}, 8
    v_lshlrev_b32 v2, 4, v{vLane}
    v_lshrrev_b32 v10, 5, v{vLane}
    v_and_b32 v5, 15, v{vLane}
    v_lshrrev_b32 v6, 2, v5
    v_and_b32 v5, 3, v5
    v_lshlrev_b32 v5, 3, v5
    v_bfe_u32 v11, v{vLane}, 4, 1
    v_lshl_add_u32 v11, v11, 5, v5
    s_lshl_b32 s{sT1}, s{sW}, 10
    s_cmp_ge_u32 s{sST}, 24
    s_cbranch_scc1 L_{name}_rwo
    """)
    if not EARLY:
        a(srd(20, "s14", "s15", 1536*1280))
        a(f"s_mul_i32 s{sWG}, s{sST}, 81920")
        for j in range(10):
            a(f"""
            s_add_u32 s{sT0}, s{sT1}, {j*8192}
            s_mov_b32 m0, s{sT0}
            s_add_u32 s{sT0}, s{sT0}, s{sWG}
            buffer_load_dwordx4 v2, s[20:23], s{sT0} offen lds
            """)
    a(pf() * NP2)
    a(f"""
    v_lshl_add_u32 v4, v10, 2, v6
    v_mul_u32_u24 v4, 1280, v4
    v_add_u32 v4, v4, v11
    s_lshr_b32 s{sT0}, s{sW}, 1
    s_mul_i32 s{sT1}, s{sT0}, 20480
    s_and_b32 s{sFA}, s{sW}, 1
    s_mul_i32 s{sFA}, s{sFA}, 10
    s_lshl_b32 s{sLD}, s{sFA}, 6
    s_add_u32 s{sT1}, s{sT1}, s{sLD}
    v_add_u32 v4, s{sT1}, v4
    v_add_u32 v5, {8*1280}, v4
    s_lshl_b32 s3, s{sST}, 2
    s_add_u32 s3, s3, s{sT0}
    s_mul_i32 s3, s3, 20
    s_add_u32 s3, s3, s{sFA}
    s_lshl_b32 s3, s3, 10
    s_add_u32 s{sXG}, s3, {W2F_OFF}
    {"s_nop 0" if EARLY else "s_waitcnt vmcnt(" + str(NP2) + ")"}
    {"s_nop 0" if EARLY else "s_barrier"}
    """)
    for j in range(10):
        a(f"ds_read_b64_tr_b16 {vr(32+4*j,2)}, v4 offset:{j*64}\nds_read_b64_tr_b16 {vr(34+4*j,2)}, v5 offset:{j*64}")
    a("s_waitcnt lgkmcnt(0)")
    for j in range(10):
        a(f"buffer_store_dwordx4 {vr(32+4*j,4)}, v2, s[28:31], s{sXG} offen{ST}")
        if j < 9: a(f"s_add_u32 s{sXG}, s{sXG}, 1024")
    a(f"s_branch {DONE}")
    a(f"L_{name}_rwo:")
    a(srd(20, "s8", "s9", 640*1280))
    a(f"s_sub_u32 s{sST}, s{sST}, 24\ns_mul_i32 s{sWG}, s{sST}, 102400")
    for j in range(13):
        if j == 12:
            a(f"s_cmp_ge_u32 s{sW}, 4\ns_cbranch_scc1 L_{name}_rwo1")
        a(f"""
        s_add_u32 s{sT0}, s{sT1}, {j*8192}
        s_mov_b32 m0, s{sT0}
        s_add_u32 s{sT0}, s{sT0}, s{sWG}
        buffer_load_dwordx4 v2, s[20:23], s{sT0} offen lds
        """)
    a(f"L_{name}_rwo1:")
    base0 = [0, 8, 20, 28, 16]; base1 = [4, 12, 24, 32, 36]
    a("s_waitcnt vmcnt(0)\ns_barrier")
    a(f"s_mov_b32 s{sDX}, 0")
    a(f"""
    L_{name}_rwl:
    s_lshl_b32 s{sT0}, s{sDX}, 3
    s_add_u32 s{sT0}, s{sT0}, s{sW}
    s_cmp_ge_u32 s{sT0}, 100
    s_cbranch_scc1 {DONE}
    s_mul_i32 s{sT1}, s{sT0}, 3277
    s_lshr_b32 s{sT1}, s{sT1}, 16
    s_mul_i32 s3, s{sT1}, 20
    s_sub_u32 s3, s{sT0}, s3
    s_mul_i32 s{sXG}, s{sST}, 100
    s_add_u32 s{sXG}, s{sXG}, s{sT0}
    s_lshl_b32 s{sXG}, s{sXG}, 10
    s_add_u32 s{sXG}, s{sXG}, {WOF_OFF}
    s_lshl_b32 s3, s3, 6
    s_lshl_b32 s{sT1}, s{sT1}, 1
    v_add_u32 v7, s{sT1}, v10
    v_mul_u32_u24 v8, 52429, v7
    v_lshrrev_b32 v8, 18, v8
    v_mul_u32_u24 v9, 5, v8
    v_sub_u32 v9, v7, v9
    v_mul_u32_u24 v8, 40, v8
    v_lshlrev_b32 v12, 3, v9
    v_cmp_lt_u32 vcc, 1, v9
    v_add_u32 v13, 4, v12
    s_nop 0
    v_cndmask_b32 v12, v12, v13, vcc
    v_cmp_eq_u32 vcc, 4, v9
    v_add_u32 v13, 4, v12
    v_mov_b32 v14, 36
    v_cndmask_b32 v12, v12, 16, vcc
    v_cndmask_b32 v13, v13, v14, vcc
    v_add3_u32 v12, v12, v8, v6
    v_add3_u32 v13, v13, v8, v6
    v_mul_u32_u24 v12, 1280, v12
    v_mul_u32_u24 v13, 1280, v13
    v_add3_u32 v12, v12, v11, s3
    v_add3_u32 v13, v13, v11, s3
    ds_read_b64_tr_b16 v[32:33], v12
    ds_read_b64_tr_b16 v[34:35], v13
    s_add_u32 s{sDX}, s{sDX}, 1
    s_waitcnt lgkmcnt(0)
    buffer_store_dwordx4 v[32:35], v2, s[28:31], s{sXG} offen{ST}
    s_nop 1
    s_branch L_{name}_rwl
    """)
    if fused:
        a(f"""
        {DONE}:
        s_waitcnt vmcnt(0)
        s_barrier
        s_cmp_lg_u32 s{sW}, 0
        s_cbranch_scc1 {fused}
        v_mov_b32 v7, 0
        s_mov_b32 s{sT1}, 0
        L_{name}_ipoll:
        buffer_load_dword v8, v7, s[{DBG}:{DBG+3}], 0 offen sc1
        s_add_u32 s{sT1}, s{sT1}, 1
        s_waitcnt vmcnt(0)
        v_readfirstlane_b32 s{sT0}, v8
        s_cmp_ge_u32 s{sT0}, {NSTAT}
        s_cbranch_scc1 L_{name}_igot
        s_cmp_ge_u32 s{sT1}, 0x40000
        s_cbranch_scc1 L_{name}_igot
        s_sleep 8
        s_branch L_{name}_ipoll
        L_{name}_igot:
        v_lshlrev_b32 v7, 8, v{vLane}
        v_mov_b32 v8, 1
        s_mov_b32 s3, {FLG_OFF + 88*256}
        s_mov_b64 exec, 0xff
        buffer_atomic_add v8, v7, s[28:31], s3 offen sc1
        s_mov_b64 exec, -1
        s_branch {fused}
        """)
    a(f"L_{name}_end:")
    if DIAG:
        a(stamp(4)); a("s_waitcnt vmcnt(0)"); a(stamp(5)); a(stamp_flush(0, 8, 28))
    if fused:
        a(f"""
        s_waitcnt vmcnt(0)
        s_barrier
        s_cmp_lg_u32 s{sW}, 0
        s_cbranch_scc1 {fused}
        s_add_u32 s{sT0}, s{sCT}, 64
        s_add_u32 s{sT1}, s{sTB}, 80
        s_cmp_ge_u32 s{sCT}, 15
        s_cselect_b32 s{sT0}, s{sT1}, s{sT0}
        s_lshl_b32 s{sT0}, s{sT0}, 8
        s_add_u32 s{sT0}, s{sT0}, {FLG_OFF}
        v_mov_b32 v7, 0
        v_mov_b32 v8, 1
        s_mov_b64 exec, 1
        buffer_atomic_add v8, v7, s[28:31], s{sT0} offen sc1
        s_mov_b64 exec, -1
        s_branch {fused}
        """)
    a(f"L_{name}_exit:\ns_endpgm")
    if not fused: a(kernel_desc(name, 200))
    return a.text()
```

```python
from common import *
CSL = 147456
K1_LDS = CSL + 512
XS, WS0 = 32768, 98304
ST = {"0": "", "1": " sc0 sc1", "2": " nt", "3": " sc1", "4": " sc0 sc1 nt"}[E("WT", "1")]
def k1(name, fused=None, sym=None):
    a = Asm()
    a(kernel_head(sym or name))
    NSTAT = 5 if fused else 4
    DONE = f"L_{name}_rdone" if fused else f"L_{name}_exit"
    sW, sTB, sCT, sLD, sXB, sWB, sM0X, sKS, sST, sT0, sT1, sCur = 32,33,34,35,36,37,38,39,40,41,42,43
    sScale, sWM, sWN, sFA, sDX, sDW, sXG, sWG, sP, sLD6, sMX, sMW = 45,46,47,48,49,50,51,52,53,54,60,61
    DBG = 56
    vLane = 1
    vXD, vWD = 194, 198
    vXA, vWA = 4, 8
    vCs, vTmp = 12, 14
    vEA = 16
    vAB = 24
    vPoll, vPollA = 28, 29
    FR = [32, 48]
    ACC = lambda ft, tt: 64 + (ft*2+tt)*16
    VST = 128
    a(f"""
    s_cmp_ge_u32 s2, 256
    s_cbranch_scc1 L_{name}_exit
    """)
    a(stamp(0))
    a(d2_start())
    a(f"""
    s_load_dwordx4 s[4:7], s[0:1], 0
    s_load_dwordx2 s[8:9], s[0:1], 16
    s_load_dwordx4 s[12:15], s[0:1], 32
    s_load_dwordx2 s[16:17], s[0:1], 64
    s_load_dwordx2 s[18:19], s[0:1], 56
    v_lshrrev_b32 v2, 6, v0
    v_and_b32 v{vLane}, 63, v0
    v_readfirstlane_b32 s{sW}, v2
    s_and_b32 s{sT0}, s2, 7
    s_lshr_b32 s{sT1}, s2, 3
    s_and_b32 s{sKS}, s{sT1}, 3
    s_and_b32 s3, s{sT0}, 1
    s_lshl_b32 s3, s3, 2
    s_add_u32 s{sTB}, s{sKS}, s3
    s_lshr_b32 s{sCT}, s{sT0}, 1
    s_mul_i32 s{sCT}, s{sCT}, 7
    s_lshr_b32 s3, s{sT1}, 2
    s_add_u32 s{sCT}, s{sCT}, s3
    s_cmp_ge_u32 s3, 7
    s_cbranch_scc1 L_{name}_spare
    s_cmp_ge_u32 s{sCT}, 27
    s_cbranch_scc1 L_{name}_spare
    """)
    rot = E("ROT", "0")
    if rot == "1":
        a(f"""
        s_mul_i32 s3, s3, 3
        s_mul_i32 s{sKS}, s{sKS}, 5
        s_lshr_b32 s{sKS}, s{sKS}, 1
        s_add_u32 s{sKS}, s{sKS}, s3
        s_cmp_ge_u32 s{sKS}, 20
        s_cselect_b32 s3, 20, 0
        s_sub_u32 s{sKS}, s{sKS}, s3
        s_cmp_ge_u32 s{sKS}, 10
        s_cselect_b32 s3, 10, 0
        s_sub_u32 s{sKS}, s{sKS}, s3
        """)
    elif rot == "2":
        a(f"""
        s_add_u32 s3, s3, s{sKS}
        s_and_b32 s3, s3, 1
        s_mul_i32 s{sKS}, s3, 5
        """)
    else:
        a(f"s_mov_b32 s{sKS}, 0")
    a(f"""
    s_cmp_ge_u32 s{sCT}, 15
    s_cselect_b32 s{sLD}, 3072, 3840
    s_cselect_b32 s3, 15, 0
    s_sub_u32 s3, s{sCT}, s3
    s_lshl_b32 s{sWB}, s3, 8
    s_mul_i32 s{sXB}, s{sTB}, {256*1280}
    s_lshl_b32 s{sM0X}, s{sW}, 10
    s_lshl_b32 s{sLD6}, s{sLD}, 6
    s_and_b32 s{sWM}, s{sW}, 3
    s_lshr_b32 s{sWN}, s{sW}, 2
    s_and_b32 s{sFA}, s{sW}, 1
    s_lshr_b32 s{sP}, s{sWM}, 1
    v_lshrrev_b32 v12, 4, v{vLane}
    s_lshl_b32 s3, s{sW}, 2
    v_add_u32 v13, s3, v12
    v_xor_b32 v5, v13, v{vLane}
    v_and_b32 v5, 7, v5
    v_lshrrev_b32 v4, 3, v{vLane}
    v_lshl_add_u32 v4, s{sW}, 3, v4
    v_mul_u32_u24 v4, 1280, v4
    v_lshl_add_u32 v{vXD}, v5, 4, v4
    v_add_u32 v{vXD+1}, {64*1280}, v{vXD}
    v_add_u32 v{vXD+2}, {128*1280}, v{vXD}
    v_add_u32 v{vXD+3}, {192*1280}, v{vXD}
    v_lshlrev_b32 v5, 2, v12
    v_xor_b32 v5, v5, v{vLane}
    v_and_b32 v5, 15, v5
    v_mul_u32_u24 v4, s{sLD}, v13
    v_lshl_add_u32 v{vWD}, v5, 4, v4
    s_lshl_b32 s3, s{sLD}, 5
    v_add_u32 v{vWD+1}, s3, v{vWD}
    v_and_b32 v192, 31, v{vLane}
    v_lshrrev_b32 v193, 5, v{vLane}
    v_bfe_u32 v14, v{vLane}, 1, 3
    s_lshl_b32 s3, s{sP}, 1
    v_add_u32 v15, s3, v193
    v_xor_b32 v14, v14, v15
    v_lshl_add_u32 v15, s{sWM}, 6, v192
    v_lshlrev_b32 v15, 7, v15
    v_lshl_add_u32 v{vXA}, v14, 4, v15
    v_xor_b32 v{vXA+1}, 32, v{vXA}
    v_xor_b32 v{vXA+2}, 64, v{vXA}
    v_xor_b32 v{vXA+3}, 0x60, v{vXA}
    v_bfe_u32 v14, v{vLane}, 2, 2
    v_lshl_add_u32 v15, v193, 3, v14
    s_lshl_b32 s{sT0}, s{sP}, 4
    v_add_u32 v15, s{sT0}, v15
    s_lshl_b32 s3, s{sWN}, 1
    s_add_u32 s3, s3, s{sFA}
    v_xor_b32 v14, s3, v14
    v_lshlrev_b32 v14, 6, v14
    v_lshl_add_u32 v15, v15, 8, v14
    v_and_b32 v14, 1, v12
    v_lshl_add_u32 v15, v14, 5, v15
    v_and_b32 v14, 3, v{vLane}
    v_lshl_add_u32 v15, v14, 3, v15
    v_add_u32 v{vWA}, {WS0}, v15
    v_xor_b32 v{vWA+1}, 0x1000, v{vWA}
    v_xor_b32 v{vWA+2}, 64, v{vWA}
    v_xor_b32 v{vWA+3}, 0x1040, v{vWA}
    v_and_b32 v14, 127, v0
    v_lshlrev_b32 v14, 2, v14
    v_add_u32 v14, {CSL}, v14
    v_mov_b32 v{vCs}, 0
    v_mov_b32 v{vCs+1}, 0
    ds_write_b32 v14, v{vCs}
    s_mov_b32 s{sST}, 0
    s_mov_b32 s{sCur}, 0
    s_mov_b32 s{sScale}, 0xffff0000
    s_waitcnt lgkmcnt(0)
    """)
    a(stamp(6))
    a(srd(20, "s4", "s5", S*D*2))
    a(f"""
    s_cmp_ge_u32 s{sCT}, 15
    s_cselect_b32 s24, s12, s6
    s_cselect_b32 s25, s13, s7
    s_cselect_b32 s26, {640*3072}, {640*3840}
    s_mov_b32 s27, 0x00020000
    v_mov_b32 v{vPollA}, 0
    v_mov_b32 v{vEA}, 0
    v_mov_b32 v{vEA+1}, 0
    """)
    a(srd(28, "s16", "s17", WS_SIZE))
    a(srd(DBG, "s18", "s19", 256))
    def issue_pre():
        t = f"s_lshl_b32 s{sXG}, s{sKS}, 7\ns_add_u32 s{sXG}, s{sXG}, s{sXB}\n"
        t += f"s_mul_i32 s{sWG}, s{sLD6}, s{sKS}\ns_add_u32 s{sWG}, s{sWG}, s{sWB}\n"
        t += f"s_add_u32 s{sKS}, s{sKS}, 1\ns_cmp_ge_u32 s{sKS}, 10\ns_cselect_b32 s{sKS}, 0, s{sKS}\n"
        return t
    def dma_m0(i): return f"s_add_u32 m0, s{sMX}, {i*8192}\n" if i < 4 else f"s_add_u32 m0, s{sMW}, {(i-4)*8192}\n"
    def dma_ld(i):
        if i < 4: return f"buffer_load_dwordx4 v{vXD+i}, s[20:23], s{sXG} offen lds\n"
        return f"buffer_load_dwordx4 v{vWD+i-4}, s[24:27], s{sWG} offen lds\n"
    def issue():
        t = issue_pre()
        for i in range(6): t += dma_m0(i) + "s_nop 0\n" + dma_ld(i)
        return t
    def slot_m0(slot_sgpr=None, slot=None):
        if slot is not None:
            return f"s_add_u32 s{sMX}, s{sM0X}, {slot*XS}\ns_add_u32 s{sMW}, s{sM0X}, {WS0+slot*16384}\n"
        return (f"s_lshl_b32 s{sMX}, s{slot_sgpr}, 15\ns_add_u32 s{sMX}, s{sMX}, s{sM0X}\n"
                f"s_lshl_b32 s{sMW}, s{slot_sgpr}, 14\ns_add_u32 s{sMW}, s{sMW}, s{sM0X}\ns_add_u32 s{sMW}, s{sMW}, {WS0}\n")
    if E("PF", "0") != "0":
        PF0 = int(E("PF0", "3"))
        a(f"""
        s_add_u32 s{sT0}, s{sW}, {PF0}
        s_cmp_ge_u32 s{sT0}, 10
        s_cbranch_scc1 L_{name}_nopf
        s_lshr_b32 s{sT1}, s2, 3
        s_mul_i32 s3, s{sT1}, 37
        v_add_u32 v14, s3, v{vLane}
        v_min_u32 v14, 0x3ff, v14
        s_and_b32 s3, s2, 1
        s_lshl_b32 s3, s3, 10
        v_add_u32 v14, s3, v14
        v_mul_u32_u24 v14, 1280, v14
        s_lshl_b32 s3, s{sT0}, 7
        s_mov_b32 exec_hi, 0x1f
        buffer_load_dword v30, v14, s[20:23], s3 offen
        s_mov_b64 exec, 0xffffffff
        s_lshl_b32 s3, s{sT1}, 5
        v_add_u32 v14, s3, v{vLane}
        v_mul_u32_u24 v15, 4682, v14
        v_lshrrev_b32 v15, 16, v15
        v_mul_u32_u24 v18, 14, v15
        v_sub_u32 v14, v14, v18
        s_lshl_b32 s3, s{sT0}, 6
        v_add_u32 v15, s3, v15
        s_bfe_u32 s3, s2, 0x20001
        s_mul_i32 s3, s3, 14
        v_add_u32 v14, s3, v14
        v_min_u32 v14, 53, v14
        v_lshlrev_b32 v14, 7, v14
        v_cmp_gt_u32 vcc, 3840, v14
        v_mul_u32_u24 v18, 3840, v15
        v_mul_u32_u24 v19, 3072, v15
        v_add_u32 v18, v18, v14
        v_add_u32 v19, v19, v14
        v_subrev_u32 v19, 3840, v19
        v_cndmask_b32 v18, v19, v18, vcc
        v_mov_b32 v20, s12
        v_mov_b32 v21, s13
        v_mov_b32 v22, s6
        v_mov_b32 v23, s7
        v_cndmask_b32 v20, v20, v22, vcc
        v_cndmask_b32 v21, v21, v23, vcc
        v_add_co_u32 v20, vcc, v20, v18
        s_nop 1
        v_addc_co_u32 v21, vcc, 0, v21, vcc
        global_load_dword v31, v[20:21], off
        s_mov_b64 exec, -1
        L_{name}_nopf:
        """)
    NPRE = int(E("NPRE", "2"))
    a(f"L_{name}_pre:")
    a(slot_m0(slot_sgpr=sCur)); a(issue())
    a(f"""
    s_add_u32 s{sCur}, s{sCur}, 1
    s_cmp_lt_u32 s{sCur}, {NPRE}
    {"s_barrier" if E("PBAR", "1") == "1" else "s_nop 0"}
    s_cbranch_scc1 L_{name}_pre
    """)
    if NPRE == 2: a(slot_m0(slot_sgpr=sCur) + issue_pre())
    a(f"s_mov_b32 s{sCur}, 0")
    a(stamp(7))
    def late_setup(orient):
        t = f"""
        s_lshl_b32 s{sT0}, s{sTB}, 2
        v_mov_b32 v{vPollA}, s{sT0}
        """
        if orient == 1:
            t += f"""
            s_mov_b32 s{sT1}, 52429
            s_sub_u32 s3, s{sCT}, 10
            s_lshl_b32 s3, s3, 7
            s_lshl_b32 s{sT0}, s{sWN}, 6
            s_add_u32 s3, s3, s{sT0}
            v_mul_u32_u24 v24, 320, v193
            """
            for ft in range(2):
                t += f"""
                s_xor_b32 s{sT0}, s{sFA}, {ft}
                s_lshl_b32 s{sT0}, s{sT0}, 5
                s_add_u32 s{sT0}, s{sT0}, s3
                v_add_u32 v30, s{sT0}, v192
                v_mul_u32_u24 v31, s{sT1}, v30
                v_lshrrev_b32 v31, 20, v31
                v_mul_u32_u24 v25, 20, v31
                v_sub_u32 v25, v30, v25
                v_mul_u32_u24 v31, {128*640}, v31
                v_lshl_add_u32 v31, v25, 4, v31
                v_add_u32 v{vEA+ft}, v31, v24
                """
        return t
    def reads(s, fs):
        if E("NOREAD"): return [""] * 6
        b = FR[fs]
        t = [f"ds_read_b128 {vr(b,4)}, v{vXA+s}\n", f"ds_read_b128 {vr(b+4,4)}, v{vXA+s} offset:4096\n"]
        for ft in range(2):
            o = (s >> 1) * 8192
            t.append(f"ds_read_b64_tr_b16 {vr(b+8+ft*4,2)}, v{vWA+ft*2+(s&1)} offset:{o}\n")
            t.append(f"ds_read_b64_tr_b16 {vr(b+10+ft*4,2)}, v{vWA+ft*2+(s&1)} offset:{o+1024}\n")
        return t
    def compute(s, fs, orient, zero=False, rd=None, extra=None):
        b = FR[fs]; X = [b, b+4]; W = [b+8, b+12]
        t = ""; k = 0
        for ft in range(2):
            for tt in range(2):
                c = "0" if zero else None
                if orient == 0: t += mfma(ACC(ft,tt), W[ft], X[tt], c) + "\n"
                else: t += mfma(ACC(ft,tt), X[tt], W[ft], c) + "\n"
                if extra: t += extra[k]
                elif rd and k < 3: t += rd[2*k] + rd[2*k+1]
                if (s & 1) == 0 and not E("NOCS"):
                    t += f"v_lshlrev_b32 v{vTmp}, 16, v{W[0]+k}\nv_and_b32 v{vTmp+1}, s{sScale}, v{W[0]+k}\n"
                    t += f"v_add_f32 v{vCs}, v{vCs}, v{vTmp}\nv_add_f32 v{vCs+1}, v{vCs+1}, v{vTmp+1}\n"
                k += 1
        return t
    def dma_extra(rd):
        return [dma_m0(0) + rd[0] + dma_ld(0) + dma_m0(1) + rd[1] + dma_ld(1),
                dma_m0(2) + rd[2] + dma_ld(2) + dma_m0(3) + rd[3] + dma_ld(3),
                dma_m0(4) + rd[4] + dma_ld(4) + dma_m0(5) + rd[5] + dma_ld(5), ""]
    a(f"""
    s_waitcnt vmcnt({6*(NPRE-1)})
    s_barrier
    """)
    a(stamp(1))
    a("".join(reads(0, 0)))
    a(f"""
    s_cmp_ge_u32 s{sCT}, 10
    s_cbranch_scc0 L_{name}_ent0
    s_cmp_lt_u32 s{sCT}, 15
    s_cbranch_scc1 L_{name}_ent1
    """)
    def rotate_s():
        return f"""s_cmp_eq_u32 s{sCur}, 2
        s_cselect_b32 s{sDX}, {-2*XS & 0xffffffff}, {XS}
        s_cselect_b32 s{sDW}, {-2*16384 & 0xffffffff}, 16384
        s_cselect_b32 s{sCur}, -1, s{sCur}
        s_add_u32 s{sCur}, s{sCur}, 1
        """
    def rotate_v(lo, hi):
        t = ""
        for r in range(lo, hi):
            t += f"v_add_u32 v{vXA+r}, s{sDX}, v{vXA+r}\nv_add_u32 v{vWA+r}, s{sDW}, v{vWA+r}\n"
        return t
    for orient in range(2):
        L = f"L_{name}_loop{orient}"
        a(f"L_{name}_ent{orient}:")
        a("s_waitcnt lgkmcnt(0)")
        if NPRE == 2: a(compute(0, 0, orient, zero=True, extra=dma_extra(reads(1, 1))))
        else: a(compute(0, 0, orient, zero=True, rd=reads(1, 1)))
        a(f"s_branch {L}_k1")
        a(f"{L}:")
        a("s_waitcnt lgkmcnt(0)")
        a(compute(0, 0, orient, rd=reads(1, 1)))
        a(f"{L}_k1:")
        a("s_waitcnt lgkmcnt(0)")
        r2 = reads(2, 0)
        a(compute(1, 1, orient, extra=[r2[0] + r2[1] + slot_m0(slot_sgpr=sCur), r2[2] + r2[3] + issue_pre(), r2[4] + r2[5] + rotate_s(), ""]))
        a("s_waitcnt lgkmcnt(0)")
        r3 = reads(3, 1)
        a(compute(2, 0, orient, extra=[r3[0] + r3[1], r3[2] + r3[3], r3[4] + r3[5], rotate_v(0, 4)]))
        a(f"""
        s_cmp_ge_u32 s{sST}, 7
        s_cbranch_scc1 {L}_tail
        s_waitcnt vmcnt(6) lgkmcnt(0)
        s_barrier
        """)
        a(compute(3, 1, orient, extra=dma_extra(reads(0, 0))))
        a(f"""
        s_add_u32 s{sST}, s{sST}, 1
        s_branch {L}
        {L}_tail:
        s_cmp_ge_u32 s{sST}, 9
        s_cbranch_scc1 {L}_last
        s_cmp_ge_u32 s{sST}, 8
        s_cbranch_scc1 {L}_w0
        s_waitcnt vmcnt(6) lgkmcnt(0)
        s_barrier
        """)
        a(late_setup(orient))
        a(f"""
        buffer_load_dword v{vPoll}, v{vPollA}, s[{DBG}:{DBG+3}], 0 offen sc1
        s_branch {L}_go
        {L}_w0:
        s_waitcnt vmcnt(0) lgkmcnt(0)
        s_barrier
        s_mov_b32 s{sT1}, 0
        {L}_spin:
        v_readfirstlane_b32 s{sT0}, v{vPoll}
        s_add_u32 s{sT1}, s{sT1}, 1
        s_cmp_ge_u32 s{sT0}, {0 if E("NOSPARE") else NSTAT}
        s_cbranch_scc1 {L}_got
        s_cmp_ge_u32 s{sT1}, 0x40000
        s_cbranch_scc1 {L}_got
        s_sleep 2
        buffer_load_dword v{vPoll}, v{vPollA}, s[{DBG}:{DBG+3}], 0 offen sc1
        s_waitcnt vmcnt(0)
        s_branch {L}_spin
        {L}_got:
        s_lshl_b32 s{sT0}, s{sTB}, 10
        s_lshl_b32 s{sT1}, s{sWM}, 8
        s_add_u32 s{sT0}, s{sT0}, s{sT1}
        s_add_u32 s{sT0}, s{sT0}, {STA_OFF}
        s_add_u32 s{sT1}, s{sT0}, 8192
        """)
        if orient == 0:
            a(f"""
            v_lshlrev_b32 v30, 2, v192
            buffer_load_dword v{vAB}, v30, s[28:31], s{sT0} offen sc1
            buffer_load_dword v{vAB+1}, v30, s[28:31], s{sT1} offen sc1
            buffer_load_dword v{vAB+2}, v30, s[28:31], s{sT0} offen offset:128 sc1
            buffer_load_dword v{vAB+3}, v30, s[28:31], s{sT1} offen offset:128 sc1
            """)
        else:
            a("v_lshlrev_b32 v30, 4, v193")
            for tt in range(2):
                for i in range(4):
                    a(f"buffer_load_dwordx4 {vr(VST+32*tt+4*i,4)}, v30, s[28:31], s{sT0} offen offset:{tt*128+i*32} sc1")
                    a(f"buffer_load_dwordx4 {vr(VST+32*tt+16+4*i,4)}, v30, s[28:31], s{sT1} offen offset:{tt*128+i*32} sc1")
        a(f"{L}_go:")
        a(compute(3, 1, orient, rd=reads(0, 0)))
        a(f"""
        s_add_u32 s{sST}, s{sST}, 1
        s_branch {L}
        {L}_last:
        s_waitcnt lgkmcnt(0)
        """)
        a(compute(3, 1, orient))
        if orient == 0: a(f"s_branch L_{name}_stats")
    a(f"L_{name}_stats:")
    a(stamp(2))
    a(f"""
    v_add_f32 v{vCs}, v{vCs}, v{vCs+1}
    v_mov_b32 v{vTmp}, v{vCs}
    s_lshl_b32 s{sT0}, s{sWN}, 6
    s_lshl_b32 s{sT1}, s{sFA}, 5
    s_add_u32 s{sT0}, s{sT0}, s{sT1}
    v_mov_b32 v13, v{vCs}
    s_nop 1
    v_permlane32_swap_b32 v13, v{vTmp}
    v_add_u32 v30, s{sT0}, v192
    v_lshlrev_b32 v30, 2, v30
    v_add_u32 v30, {CSL}, v30
    v_add_f32 v13, v13, v{vTmp}
    s_mov_b64 exec, 0xffffffff
    ds_add_f32 v30, v13
    s_mov_b64 exec, -1
    s_lshl_b32 s{sT0}, s{sTB}, 3
    s_lshl_b32 s{sT1}, s{sWM}, 1
    s_add_u32 s{sST}, s{sT0}, s{sT1}
    s_waitcnt lgkmcnt(0)
    s_barrier
    """)
    a(stamp(3))
    a(f"""
    s_cmp_ge_u32 s{sCT}, 10
    s_cbranch_scc0 L_{name}_epiT
    s_cmp_lt_u32 s{sCT}, 15
    s_cbranch_scc1 L_{name}_epiV
    L_{name}_epiT:
    s_lshl_b32 s{sT0}, s{sWN}, 8
    v_lshlrev_b32 v30, 4, v193
    v_add_u32 v30, s{sT0}, v30
    v_add_u32 v30, {CSL}, v30
    s_lshl_b32 s{sT0}, s{sFA}, 7
    v_add_u32 v31, s{sT0}, v30
    s_xor_b32 s{sT0}, s{sT0}, 128
    v_add_u32 v30, s{sT0}, v30
    """)
    for i in range(4): a(f"ds_read_b128 {vr(32+4*i,4)}, v31 offset:{i*32}")
    for i in range(4): a(f"ds_read_b128 {vr(48+4*i,4)}, v30 offset:{i*32}")
    def norm_pair_tok(accreg, csreg, ab, tmp):
        return (f"v_pk_mul_f32 {vr(tmp,2)}, {vr(csreg,2)}, {vr(ab,2)} op_sel:[0,1] op_sel_hi:[1,1]\n"
                f"v_pk_fma_f32 {vr(accreg,2)}, {vr(accreg,2)}, {vr(ab,2)}, {vr(tmp,2)} op_sel:[0,0,0] op_sel_hi:[1,0,1]\n")
    a(f"""
    s_cmp_lt_u32 s{sCT}, 5
    s_cselect_b32 s{sScale}, {hexf(QSCALE)}, 1.0
    s_cselect_b32 s{sXG}, {QF_OFF}, {KF_OFF}
    s_cselect_b32 s3, 0, 5
    s_sub_u32 s3, s{sCT}, s3
    s_lshl_b32 s3, s3, 4
    s_lshl_b32 s{sT0}, s{sWN}, 3
    s_add_u32 s3, s3, s{sT0}
    s_mul_i32 s{sT0}, s{sST}, 80
    s_add_u32 s3, s3, s{sT0}
    s_lshl_b32 s3, s3, 9
    s_add_u32 s{sXG}, s{sXG}, s3
    v_lshlrev_b32 v{vEA}, 4, v192
    v_lshl_add_u32 v{vEA}, v193, 9, v{vEA}
    s_waitcnt vmcnt(0)
    """)
    for r in range(4): a(f"v_mul_f32 v{vAB+r}, s{sScale}, v{vAB+r}")
    a(f"""
    s_cmp_ge_u32 s{sCT}, 15
    s_cbranch_scc1 L_{name}_epiH
    s_waitcnt lgkmcnt(0)
    """)
    for ft in range(2):
        for tt in range(2):
            ab = vAB + 2*tt
            a(f"""
            s_xor_b32 s{sT0}, s{sFA}, {ft}
            s_lshl_b32 s{sT0}, s{sT0}, 11
            s_add_u32 s{sT0}, s{sT0}, s{sXG}
            """)
            if tt: a(f"s_add_u32 s{sT0}, s{sT0}, {80*512}")
            for half in range(2):
                A0 = ACC(ft,tt) + 8*half
                for i in range(2):
                    A = A0 + 4*i; C = 32 + ft*16 + 8*half + 4*i
                    a(norm_pair_tok(A, C, ab, 28)); a(norm_pair_tok(A+2, C+2, ab, 30))
                for p in range(4): a(f"v_cvt_pk_bf16_f32 v{A0+p}, v{A0+2*p}, v{A0+2*p+1}")
                a(f"s_nop 0\nv_permlane32_swap_b32 v{A0}, v{A0+2}\nv_permlane32_swap_b32 v{A0+1}, v{A0+3}")
                a(f"buffer_store_dwordx4 {vr(A0,4)}, v{vEA}, s[28:31], s{sT0} offen offset:{half*1024}{ST}")
    a(f"s_branch L_{name}_end")
    a(f"L_{name}_epiH:")
    a(f"""
    s_mul_i32 s{sT0}, s{sST}, 96
    s_sub_u32 s3, s{sCT}, 15
    s_lshl_b32 s3, s3, 3
    s_add_u32 s{sT0}, s{sT0}, s3
    s_lshl_b32 s3, s{sWN}, 2
    s_add_u32 s{sT0}, s{sT0}, s3
    s_lshl_b32 s{sT0}, s{sT0}, 10
    s_add_u32 s{sXG}, s{sT0}, {HF_OFF}
    v_lshlrev_b32 v4, 4, v{vLane}
    s_waitcnt lgkmcnt(0)
    """)
    for ft in range(2):
        for tt in range(2):
            ab = vAB + 2*tt
            a(f"""
            s_xor_b32 s{sT0}, s{sFA}, {ft}
            s_lshl_b32 s{sT0}, s{sT0}, 11
            s_add_u32 s{sT0}, s{sT0}, s{sXG}
            s_add_u32 s{sT0}, s{sT0}, {tt*96*1024}
            """)
            for half in range(2):
                A0 = ACC(ft,tt) + 8*half
                for i in range(2):
                    A = A0 + 4*i; C = 32 + ft*16 + 8*half + 4*i
                    a(norm_pair_tok(A, C, ab, 28)); a(norm_pair_tok(A+2, C+2, ab, 30))
                for p in range(4):
                    a(f"v_cvt_pk_bf16_f32 v{A0+p}, v{A0+2*p}, v{A0+2*p+1}")
                for p in range(4):
                    a(f"v_pk_max_i16 v{A0+p}, v{A0+p}, 0")
                a(f"buffer_store_dwordx4 {vr(A0,4)}, v4, s[28:31], s{sT0} offen offset:{half*1024}{ST}")
    a(f"s_branch L_{name}_end")
    a(f"L_{name}_epiV:")
    a(f"""
    s_lshl_b32 s{sT0}, s{sWN}, 6
    v_add_u32 v30, s{sT0}, v192
    v_lshlrev_b32 v30, 2, v30
    v_add_u32 v30, {CSL}, v30
    s_lshl_b32 s{sT1}, s{sFA}, 7
    v_add_u32 v31, s{sT1}, v30
    s_xor_b32 s{sT1}, s{sT1}, 128
    v_add_u32 v30, s{sT1}, v30
    ds_read_b32 v24, v31
    ds_read_b32 v26, v30
    s_mul_i32 s{sT0}, s{sST}, 1280
    s_add_u32 s{sXG}, s{sT0}, {VF_OFF}
    s_waitcnt vmcnt(0) lgkmcnt(0)
    """)
    for tt in range(2):
        if tt == 1: a(f"s_add_u32 s{sXG}, s{sXG}, 1280")
        for ft in range(2):
            cs = 24 + 2*ft
            A0 = ACC(ft,tt)
            for p in range(8):
                A = A0 + 2*p
                tmp = 28 + 2*(p & 1)
                a(f"v_pk_mul_f32 {vr(tmp,2)}, {vr(VST+32*tt+16+2*p,2)}, {vr(cs,2)} op_sel:[0,0] op_sel_hi:[1,0]")
                a(f"v_pk_fma_f32 {vr(A,2)}, {vr(A,2)}, {vr(VST+32*tt+2*p,2)}, {vr(tmp,2)}")
            for p in range(8): a(f"v_cvt_pk_bf16_f32 v{A0+p}, v{A0+2*p}, v{A0+2*p+1}")
            a(f"buffer_store_dwordx4 {vr(A0,4)}, v{vEA+ft}, s[28:31], s{sXG} offen{ST}")
            a(f"buffer_store_dwordx4 {vr(A0+4,4)}, v{vEA+ft}, s[28:31], s{sXG} offen offset:640{ST}")
    a(f"s_branch L_{name}_end")
    a(f"L_{name}_spare:")
    if E("NOSPARE"): a(f"s_branch L_{name}_exit")
    a(f"""
    s_and_b32 s{sT0}, s2, 7
    s_lshr_b32 s{sT1}, s2, 3
    s_cmp_ge_u32 s{sT1}, 28
    s_cbranch_scc1 L_{name}_sp1
    s_sub_u32 s{sT0}, s{sT0}, 6
    s_lshl_b32 s{sT0}, s{sT0}, 2
    s_add_u32 s{sT0}, s{sT0}, s{sT1}
    s_add_u32 s{sST}, s{sT0}, 8
    s_branch L_{name}_sp2
    L_{name}_sp1:
    s_lshl_b32 s{sT0}, s{sT0}, 2
    s_add_u32 s{sT0}, s{sT0}, s{sT1}
    s_sub_u32 s{sST}, s{sT0}, 28
    L_{name}_sp2:
    v_mov_b32 v20, 0
    v_mov_b32 v21, 0
    v_mov_b32 v22, 0
    v_lshrrev_b32 v4, 4, v{vLane}
    v_and_b32 v5, 15, v{vLane}
    v_mul_u32_u24 v6, 1280, v4
    v_lshl_add_u32 v6, v5, 4, v6
    s_waitcnt lgkmcnt(0)
    """)
    a(srd(28, "s16", "s17", WS_SIZE))
    a(srd(DBG, "s18", "s19", 256))
    if E("TLBW", "0") == "1":
        a(f"""
        s_load_dwordx2 s[62:63], s[0:1], 48
        v_and_b32 v7, 15, v{vLane}
        v_lshlrev_b32 v7, 21, v7
        v_min_u32 v7, {WS_SIZE-4}, v7
        buffer_load_dword v25, v7, s[28:31], 0 offen
        s_waitcnt lgkmcnt(0)
        """)
        a(srd(20, "s62", "s63", S*D*2))
        a(f"""
        v_and_b32 v7, 1, v{vLane}
        v_lshlrev_b32 v7, 21, v7
        buffer_load_dword v26, v7, s[20:23], 0 offen
        """)
    if fused:
        a(f"""
        s_cmp_lg_u32 s{sST}, 39
        s_cbranch_scc1 L_{name}_noinit
        s_cmp_ge_u32 s{sW}, 2
        s_cbranch_scc1 L_{name}_init1
        v_lshlrev_b32 v7, 8, v0
        v_mov_b32 v8, 0
        s_mov_b32 s3, {FLG_OFF}
        buffer_store_dword v8, v7, s[28:31], s3 offen sc0 sc1
        s_waitcnt vmcnt(0)
        L_{name}_init1:
        s_barrier
        s_cmp_lg_u32 s{sW}, 0
        s_cbranch_scc1 L_{name}_noinit
        v_lshlrev_b32 v7, 2, v{vLane}
        v_mov_b32 v8, 1
        s_mov_b64 exec, 0xff
        buffer_atomic_add v8, v7, s[{DBG}:{DBG+3}], 0 offen sc1
        s_mov_b64 exec, -1
        L_{name}_noinit:
        """)
    a(f"""
    s_cmp_ge_u32 s{sST}, 32
    s_cbranch_scc1 L_{name}_relay
    """)
    a(srd(20, "s4", "s5", S*D*2))
    a(f"""
    s_lshl_b32 s{sT0}, s{sST}, 6
    s_lshl_b32 s{sT1}, s{sW}, 3
    s_add_u32 s{sT0}, s{sT0}, s{sT1}
    s_mul_i32 s{sXG}, s{sT0}, 1280
    s_add_u32 s{sWG}, s{sXG}, {4*1280}
    """)
    SPF = E("SPF", "1") == "1"
    def pf():
        if not SPF: return ""
        return "global_load_dword v24, v[20:21], off\nv_add_co_u32 v20, vcc, v22, v20\ns_nop 1\nv_addc_co_u32 v21, vcc, 0, v21, vcc\n"
    if SPF:
        a(f"""
        s_and_b32 s3, s{sST}, 3
        s_lshl_b32 s3, s3, 3
        s_add_u32 s3, s3, s{sW}
        s_cmp_ge_u32 s3, 16
        s_cbranch_scc1 L_{name}_pfw
        v_lshl_add_u32 v20, s3, 6, v{vLane}
        s_and_b32 s3, s2, 1
        s_lshl_b32 s3, s3, 10
        v_add_u32 v20, s3, v20
        v_mul_u32_u24 v20, 1280, v20
        v_add_u32 v20, {3*128}, v20
        v_mov_b32 v22, 128
        v_mov_b32 v18, s4
        v_mov_b32 v21, s5
        s_branch L_{name}_pfa
        L_{name}_pfw:
        s_sub_u32 s3, s3, 16
        s_min_u32 s3, s3, 13
        v_lshl_add_u32 v16, s3, 6, v{vLane}
        v_mul_u32_u24 v17, 4682, v16
        v_lshrrev_b32 v17, 16, v17
        v_mul_u32_u24 v18, 14, v17
        v_sub_u32 v16, v16, v18
        s_bfe_u32 s3, s2, 0x20001
        s_mul_i32 s3, s3, 14
        v_add_u32 v16, s3, v16
        v_min_u32 v16, 53, v16
        v_lshlrev_b32 v16, 7, v16
        v_add_u32 v17, {3*64}, v17
        v_cmp_gt_u32 vcc, 3840, v16
        v_mul_u32_u24 v18, 3840, v17
        v_mul_u32_u24 v19, 3072, v17
        v_add_u32 v18, v18, v16
        v_add_u32 v19, v19, v16
        v_subrev_u32 v19, 3840, v19
        v_cndmask_b32 v20, v19, v18, vcc
        v_mov_b32 v18, s12
        v_mov_b32 v21, s13
        v_mov_b32 v16, s6
        v_mov_b32 v17, s7
        v_cndmask_b32 v18, v18, v16, vcc
        v_cndmask_b32 v21, v21, v17, vcc
        v_mov_b32 v22, {64*3072}
        v_mov_b32 v16, {64*3840}
        v_cndmask_b32 v22, v22, v16, vcc
        L_{name}_pfa:
        v_add_co_u32 v20, vcc, v18, v20
        s_nop 1
        v_addc_co_u32 v21, vcc, 0, v21, vcc
        """)
        a(pf() * int(E("NPF1", "1")))
    for g in range(2):
        for i in range(5):
            a(f"buffer_load_dwordx4 {vr(32+20*g+4*i,4)}, v6, s[20:23], s{sXG if g==0 else sWG} offen offset:{i*256}")
    EARLY = E("EARLY", "1") == "1"
    if EARLY:
        a(f"""
        s_cmp_lt_u32 s{sST}, 8
        s_cbranch_scc1 L_{name}_noearly
        v_lshlrev_b32 v2, 4, v{vLane}
        s_lshl_b32 s{sM0X}, s{sW}, 10
        s_sub_u32 s3, s{sST}, 8
        s_mul_i32 s{sWB}, s3, 81920
        """)
        a(srd(24, "s14", "s15", 1536*1280))
        for j in range(10):
            a(f"""
            s_add_u32 s3, s{sM0X}, {j*8192}
            s_mov_b32 m0, s3
            s_add_u32 s3, s3, s{sWB}
            buffer_load_dwordx4 v2, s[24:27], s3 offen lds
            """)
        a(f"""
        s_waitcnt vmcnt(10)
        s_branch L_{name}_early1
        L_{name}_noearly:
        s_waitcnt vmcnt(0)
        L_{name}_early1:
        """)
    for g in range(2):
        if not EARLY: a(f"s_waitcnt vmcnt({5 if g == 0 else 0})")
        su, sq = 8 + 4*g, 10 + 4*g
        a(f"v_mov_b32 v{su}, 0\nv_mov_b32 v{su+1}, 0\nv_mov_b32 v{sq}, 0\nv_mov_b32 v{sq+1}, 0")
        for r in range(20):
            x = 32 + 20*g + r; t = 16 + 2*(r & 1)
            a(f"v_lshlrev_b32 v{t}, 16, v{x}\nv_and_b32 v{t+1}, 0xffff0000, v{x}")
            a(f"v_pk_add_f32 {vr(su,2)}, {vr(su,2)}, {vr(t,2)}\nv_pk_fma_f32 {vr(sq,2)}, {vr(t,2)}, {vr(t,2)}, {vr(sq,2)}")
        a(f"v_add_f32 v{su}, v{su}, v{su+1}\nv_add_f32 v{sq}, v{sq}, v{sq+1}")
    for sh in (8, 4, 2, 1):
        a("s_nop 1")
        for r in (8, 10, 12, 14):
            a(f"v_add_f32_dpp v{r}, v{r}, v{r} row_ror:{sh} row_mask:0xf bank_mask:0xf")
    a(f"s_mov_b32 s{sT1}, {hexf(1.0/640)}")
    for g in range(2):
        su, sq = 8 + 4*g, 10 + 4*g
        a(f"""
        v_mul_f32 v{su}, s{sT1}, v{su}
        v_mul_f32 v{sq}, s{sT1}, v{sq}
        v_fma_f32 v{sq}, -v{su}, v{su}, v{sq}
        v_max_f32 v{sq}, 0, v{sq}
        v_add_f32 v{sq}, {hexf(1e-5)}, v{sq}
        v_rsq_f32 v{sq}, v{sq}
        s_nop 0
        v_mul_f32 v{su}, v{su}, v{sq}
        v_sub_f32 v{su}, 0, v{su}
        """)
    a(f"""
    v_lshlrev_b32 v7, 2, v4
    s_lshl_b32 s{sT0}, s{sT0}, 2
    s_add_u32 s{sT0}, s{sT0}, {STA_OFF}
    s_add_u32 s{sT1}, s{sT0}, 8192
    s_mov_b32 s60, 0x00010001
    s_mov_b32 s61, 0x00010001
    s_mov_b64 exec, s[60:61]
    buffer_store_dword v10, v7, s[28:31], s{sT0} offen sc0 sc1
    buffer_store_dword v8, v7, s[28:31], s{sT1} offen sc0 sc1
    buffer_store_dword v14, v7, s[28:31], s{sT0} offen offset:16 sc0 sc1
    buffer_store_dword v12, v7, s[28:31], s{sT1} offen offset:16 sc0 sc1
    s_mov_b64 exec, -1
    s_waitcnt vmcnt(0)
    s_barrier
    """)
    a(f"""
    s_cmp_lg_u32 s{sW}, 0
    s_cbranch_scc1 L_{name}_relay
    s_lshr_b32 s{sT0}, s{sST}, 2
    s_lshl_b32 s{sT0}, s{sT0}, 2
    v_mov_b32 v7, s{sT0}
    v_mov_b32 v8, 1
    s_mov_b64 exec, 1
    buffer_atomic_add v8, v7, s[{DBG}:{DBG+3}], 0 offen sc1
    s_mov_b64 exec, -1
    L_{name}_relay:
    """)
    if not fused:
        a(f"""
        s_cmp_lg_u32 s{sST}, 39
        s_cbranch_scc1 L_{name}_nz
        v_and_b32 v7, 63, v0
        v_lshlrev_b32 v7, 8, v7
        v_mov_b32 v8, 0
        s_mov_b32 s{sT0}, {FLG_OFF}
        buffer_store_dword v8, v7, s[28:31], s{sT0} offen
        L_{name}_nz:
        """)
    NP2 = (7 - int(E("NPF1", "1"))) if SPF else 0
    a(f"""
    s_cmp_ge_u32 s{sST}, 8
    s_cbranch_scc1 L_{name}_rjob
    """)
    a(pf() * NP2)
    a(f"""
    s_branch {("L_" + name + "_sdone") if fused else ("L_" + name + "_exit")}
    L_{name}_rjob:
    s_sub_u32 s{sST}, s{sST}, 8
    v_lshlrev_b32 v2, 4, v{vLane}
    v_lshrrev_b32 v10, 5, v{vLane}
    v_and_b32 v5, 15, v{vLane}
    v_lshrrev_b32 v6, 2, v5
    v_and_b32 v5, 3, v5
    v_lshlrev_b32 v5, 3, v5
    v_bfe_u32 v11, v{vLane}, 4, 1
    v_lshl_add_u32 v11, v11, 5, v5
    s_lshl_b32 s{sT1}, s{sW}, 10
    s_cmp_ge_u32 s{sST}, 24
    s_cbranch_scc1 L_{name}_rwo
    """)
    if not EARLY:
        a(srd(20, "s14", "s15", 1536*1280))
        a(f"s_mul_i32 s{sWG}, s{sST}, 81920")
        for j in range(10):
            a(f"""
            s_add_u32 s{sT0}, s{sT1}, {j*8192}
            s_mov_b32 m0, s{sT0}
            s_add_u32 s{sT0}, s{sT0}, s{sWG}
            buffer_load_dwordx4 v2, s[20:23], s{sT0} offen lds
            """)
    a(pf() * NP2)
    a(f"""
    v_lshl_add_u32 v4, v10, 2, v6
    v_mul_u32_u24 v4, 1280, v4
    v_add_u32 v4, v4, v11
    s_lshr_b32 s{sT0}, s{sW}, 1
    s_mul_i32 s{sT1}, s{sT0}, 20480
    s_and_b32 s{sFA}, s{sW}, 1
    s_mul_i32 s{sFA}, s{sFA}, 10
    s_lshl_b32 s{sLD}, s{sFA}, 6
    s_add_u32 s{sT1}, s{sT1}, s{sLD}
    v_add_u32 v4, s{sT1}, v4
    v_add_u32 v5, {8*1280}, v4
    s_lshl_b32 s3, s{sST}, 2
    s_add_u32 s3, s3, s{sT0}
    s_mul_i32 s3, s3, 20
    s_add_u32 s3, s3, s{sFA}
    s_lshl_b32 s3, s3, 10
    s_add_u32 s{sXG}, s3, {W2F_OFF}
    {"s_nop 0" if EARLY else "s_waitcnt vmcnt(" + str(NP2) + ")"}
    {"s_nop 0" if EARLY else "s_barrier"}
    """)
    for j in range(10):
        a(f"ds_read_b64_tr_b16 {vr(32+4*j,2)}, v4 offset:{j*64}\nds_read_b64_tr_b16 {vr(34+4*j,2)}, v5 offset:{j*64}")
    a("s_waitcnt lgkmcnt(0)")
    for j in range(10):
        a(f"buffer_store_dwordx4 {vr(32+4*j,4)}, v2, s[28:31], s{sXG} offen{ST}")
        if j < 9: a(f"s_add_u32 s{sXG}, s{sXG}, 1024")
    a(f"s_branch {DONE}")
    a(f"L_{name}_rwo:")
    a(srd(20, "s8", "s9", 640*1280))
    a(f"s_sub_u32 s{sST}, s{sST}, 24\ns_mul_i32 s{sWG}, s{sST}, 102400")
    for j in range(13):
        if j == 12:
            a(f"s_cmp_ge_u32 s{sW}, 4\ns_cbranch_scc1 L_{name}_rwo1")
        a(f"""
        s_add_u32 s{sT0}, s{sT1}, {j*8192}
        s_mov_b32 m0, s{sT0}
        s_add_u32 s{sT0}, s{sT0}, s{sWG}
        buffer_load_dwordx4 v2, s[20:23], s{sT0} offen lds
        """)
    a(f"L_{name}_rwo1:")
    base0 = [0, 8, 20, 28, 16]; base1 = [4, 12, 24, 32, 36]
    a("s_waitcnt vmcnt(0)\ns_barrier")
    a(f"s_mov_b32 s{sDX}, 0")
    a(f"""
    L_{name}_rwl:
    s_lshl_b32 s{sT0}, s{sDX}, 3
    s_add_u32 s{sT0}, s{sT0}, s{sW}
    s_cmp_ge_u32 s{sT0}, 100
    s_cbranch_scc1 {DONE}
    s_mul_i32 s{sT1}, s{sT0}, 3277
    s_lshr_b32 s{sT1}, s{sT1}, 16
    s_mul_i32 s3, s{sT1}, 20
    s_sub_u32 s3, s{sT0}, s3
    s_mul_i32 s{sXG}, s{sST}, 100
    s_add_u32 s{sXG}, s{sXG}, s{sT0}
    s_lshl_b32 s{sXG}, s{sXG}, 10
    s_add_u32 s{sXG}, s{sXG}, {WOF_OFF}
    s_lshl_b32 s3, s3, 6
    s_lshl_b32 s{sT1}, s{sT1}, 1
    v_add_u32 v7, s{sT1}, v10
    v_mul_u32_u24 v8, 52429, v7
    v_lshrrev_b32 v8, 18, v8
    v_mul_u32_u24 v9, 5, v8
    v_sub_u32 v9, v7, v9
    v_mul_u32_u24 v8, 40, v8
    v_lshlrev_b32 v12, 3, v9
    v_cmp_lt_u32 vcc, 1, v9
    v_add_u32 v13, 4, v12
    s_nop 0
    v_cndmask_b32 v12, v12, v13, vcc
    v_cmp_eq_u32 vcc, 4, v9
    v_add_u32 v13, 4, v12
    v_mov_b32 v14, 36
    v_cndmask_b32 v12, v12, 16, vcc
    v_cndmask_b32 v13, v13, v14, vcc
    v_add3_u32 v12, v12, v8, v6
    v_add3_u32 v13, v13, v8, v6
    v_mul_u32_u24 v12, 1280, v12
    v_mul_u32_u24 v13, 1280, v13
    v_add3_u32 v12, v12, v11, s3
    v_add3_u32 v13, v13, v11, s3
    ds_read_b64_tr_b16 v[32:33], v12
    ds_read_b64_tr_b16 v[34:35], v13
    s_add_u32 s{sDX}, s{sDX}, 1
    s_waitcnt lgkmcnt(0)
    buffer_store_dwordx4 v[32:35], v2, s[28:31], s{sXG} offen{ST}
    s_nop 1
    s_branch L_{name}_rwl
    """)
    if fused:
        a(f"""
        L_{name}_sdone:
        s_mov_b32 s{sKS}, 0
        s_branch L_{name}_spoll
        {DONE}:
        s_mov_b32 s{sKS}, 1
        L_{name}_spoll:
        s_waitcnt vmcnt(0)
        s_barrier
        s_cmp_lg_u32 s{sW}, 0
        s_cbranch_scc1 L_{name}_sbar
        v_mov_b32 v7, 0
        s_mov_b32 s{sT1}, 0
        L_{name}_ipoll:
        buffer_load_dword v8, v7, s[{DBG}:{DBG+3}], 0 offen sc1
        s_add_u32 s{sT1}, s{sT1}, 1
        s_waitcnt vmcnt(0)
        v_readfirstlane_b32 s{sT0}, v8
        s_cmp_ge_u32 s{sT0}, {NSTAT}
        s_cbranch_scc1 L_{name}_igot
        s_cmp_ge_u32 s{sT1}, 0x40000
        s_cbranch_scc1 L_{name}_igot
        s_sleep 8
        s_branch L_{name}_ipoll
        L_{name}_igot:
        s_cmp_eq_u32 s{sKS}, 0
        s_cbranch_scc1 L_{name}_sbar
        v_lshlrev_b32 v7, 8, v{vLane}
        v_mov_b32 v8, 1
        s_mov_b32 s3, {FLG_OFF + 88*256}
        s_mov_b64 exec, 0xff
        buffer_atomic_add v8, v7, s[28:31], s3 offen sc1
        s_mov_b64 exec, -1
        L_{name}_sbar:
        s_barrier
        s_branch {fused}
        """)
    a(f"L_{name}_end:")
    if DIAG:
        a(stamp(4)); a("s_waitcnt vmcnt(0)"); a(stamp(5)); a(stamp_flush(0, 8, 28))
    if fused:
        a(f"""
        s_waitcnt vmcnt(0)
        s_barrier
        s_cmp_lg_u32 s{sW}, 0
        s_cbranch_scc1 {fused}
        s_add_u32 s{sT0}, s{sCT}, 64
        s_add_u32 s{sT1}, s{sTB}, 80
        s_cmp_ge_u32 s{sCT}, 15
        s_cselect_b32 s{sT0}, s{sT1}, s{sT0}
        s_lshl_b32 s{sT0}, s{sT0}, 8
        s_add_u32 s{sT0}, s{sT0}, {FLG_OFF}
        v_mov_b32 v7, 0
        v_mov_b32 v8, 1
        s_mov_b64 exec, 1
        buffer_atomic_add v8, v7, s[28:31], s{sT0} offen sc1
        s_mov_b64 exec, -1
        s_branch {fused}
        """)
    a(f"L_{name}_exit:\ns_endpgm")
    if not fused: a(kernel_desc(name, 200))
    return a.text()
```

```python
NAME = "recurrent_scan__softmax_full_mha__dense_activation_relu__prompt"
S, D, H, DH, FF = 2048, 640, 32, 20, 1536
QF_OFF  = 0x0
KF_OFF  = 0x280000
VF_OFF  = 0x500000
HF_OFF  = 0x780000
W2F_OFF = 0xD80000
WOF_OFF = 0xF60000
OF_OFF  = 0x1028000
G_OFF   = 0x12A8000
STA_OFF = 0x1528000
FLG_OFF = 0x1530000
WS_SIZE = 0x1600000
QSCALE = (DH ** -0.5) * 1.4426950408889634
import struct, os
E = os.environ.get
def f2u(x): return struct.unpack("<I", struct.pack("<f", x))[0]
def hexf(x): return "0x%08x" % f2u(x)
def _is_lit(t):
    t = t.strip()
    try:
        v = int(t, 0)
    except ValueError:
        return False
    return not (-16 <= v <= 64)
class Asm:
    def __init__(self): self.lines = []
    def __call__(self, text):
        for l in text.strip("\n").split("\n"):
            l = l.strip()
            if not l: continue
            if l.startswith("s_cselect_b32"):
                d, x, y = [t.strip() for t in l[len("s_cselect_b32"):].split(",")]
                if _is_lit(x) and _is_lit(y):
                    self.lines.append(f"    s_mov_b32 {d}, {y}")
                    l = f"s_cselect_b32 {d}, {x}, {d}"
            self.lines.append(("" if l.endswith(":") else "    ") + l)
    def raw(self, text): self.lines.append(text)
    def text(self): return "\n".join(self.lines) + "\n"
def vr(a, n=1): return f"v{a}" if n == 1 else f"v[{a}:{a+n-1}]"
def sr(a, n=1): return f"s{a}" if n == 1 else f"s[{a}:{a+n-1}]"
def mfma(d, a, b, c=None):
    cs = vr(d, 16) if c is None else (c if isinstance(c, str) else vr(c, 16))
    return f"v_mfma_f32_32x32x16_bf16 {vr(d,16)}, {vr(a,4)}, {vr(b,4)}, {cs}"
def mfma8(d, a, b, c=None):
    cs = vr(d, 16) if c is None else (c if isinstance(c, str) else vr(c, 16))
    return f"v_mfma_f32_32x32x8bf16_1k {vr(d,16)}, {vr(a,2)}, {vr(b,2)}, {cs}"
def srd(a, base_lo, base_hi, size):
    return f"""s_mov_b32 s{a}, {base_lo}
s_mov_b32 s{a+1}, {base_hi}
s_mov_b32 s{a+2}, {size}
s_mov_b32 s{a+3}, 0x00020000"""
def kernel_head(name):
    return f""".text
.globl {name}
.p2align 8
.type {name},@function
{name}:"""
def kernel_desc(name, vgpr, sgpr=100, accum=None):
    accum = accum or ((vgpr + 3) // 4 * 4)
    return f""".section .rodata,"a"
.p2align 6
.amdhsa_kernel {name}
  .amdhsa_next_free_vgpr {vgpr}
  .amdhsa_next_free_sgpr {sgpr}
  .amdhsa_accum_offset {accum}
  .amdhsa_group_segment_fixed_size 0
  .amdhsa_kernarg_size 72
  .amdhsa_user_sgpr_count 2
  .amdhsa_user_sgpr_kernarg_segment_ptr 1
  .amdhsa_system_sgpr_workgroup_id_x 1
  .amdhsa_float_denorm_mode_32 3
.end_amdhsa_kernel
.text"""
DIAG = int(E("DIAG", "0"))
DIAG_OFF = 0x2000000
def stamp(i):
    if not DIAG: return ""
    t = f"s_memtime s[{64+2*i}:{65+2*i}]\n"
    if i == 0: t += "s_memrealtime s[80:81]\n"
    t += "s_waitcnt lgkmcnt(0)\n"
    return t
def stamp_flush(kidx, n, srd_base):
    if not DIAG: return ""
    t = "s_waitcnt vmcnt(0)\ns_memrealtime s[82:83]\ns_waitcnt lgkmcnt(0)\n"
    t += "s_mov_b64 exec, -1\n"
    t += f"v_lshrrev_b32 v1, 6, v0\ns_lshl_b32 s3, s2, 4\nv_add_u32 v1, s3, v1\nv_lshlrev_b32 v1, 6, v1\n"
    t += f"s_mov_b32 s3, {DIAG_OFF + kidx*0x40000}\n"
    t += f"s_mov_b32 s{srd_base+2}, 0x3000000\n"
    for i in range(n):
        t += f"s_sub_u32 s84, s{64+2*i}, s64\nv_mov_b32 v2, s84\nbuffer_store_dword v2, v1, s[{srd_base}:{srd_base+3}], s3 offen offset:{4*i}\n"
    t += f"v_mov_b32 v2, s80\nbuffer_store_dword v2, v1, s[{srd_base}:{srd_base+3}], s3 offen offset:56\n"
    t += f"v_mov_b32 v2, s82\nbuffer_store_dword v2, v1, s[{srd_base}:{srd_base+3}], s3 offen offset:60\ns_waitcnt vmcnt(0)\n"
    return t

DIAG2 = int(E("DIAG2", "0"))
def d2_start():
    if not DIAG2: return ""
    return """
    s_memrealtime s[86:87]
    s_memtime s[88:89]
    s_load_dwordx2 s[90:91], s[0:1], 56
    s_waitcnt lgkmcnt(0)
    s_mov_b32 s92, s90
    s_mov_b32 s93, s91
    s_mov_b32 s94, 256
    s_mov_b32 s95, 0x00020000
    s_not_b32 s85, s86
    v_mov_b32 v253, s85
    v_mov_b32 v252, 32
    s_mov_b64 exec, 1
    buffer_atomic_umax v253, v252, s[92:95], 0 offen sc1
    s_mov_b64 exec, -1
    """
def d2_end():
    if not DIAG2: return ""
    return """
    s_waitcnt vmcnt(0)
    s_memrealtime s[84:85]
    s_memtime s[90:91]
    s_waitcnt lgkmcnt(0)
    v_mov_b32 v1, s84
    v_mov_b32 v2, 36
    s_mov_b64 exec, 1
    buffer_atomic_umax v1, v2, s[92:95], 0 offen sc1
    s_sub_u32 s90, s90, s88
    s_sub_u32 s84, s84, s86
    v_mov_b32 v1, s90
    v_mov_b32 v2, 40
    buffer_atomic_umax v1, v2, s[92:95], 0 offen sc1
    v_mov_b32 v1, s84
    v_mov_b32 v2, 44
    buffer_atomic_umax v1, v2, s[92:95], 0 offen sc1
    s_mov_b64 exec, -1
    s_waitcnt vmcnt(0)
    """
```

```python
NAME = "recurrent_scan__softmax_full_mha__dense_activation_relu__prompt"
S, D, H, DH, FF = 2048, 640, 32, 20, 1536
QF_OFF  = 0x0
KF_OFF  = 0x280000
VF_OFF  = 0x500000
HF_OFF  = 0x780000
W2F_OFF = 0xD80000
WOF_OFF = 0xF60000
OF_OFF  = 0x1028000
G_OFF   = 0x12A8000
STA_OFF = 0x1528000
FLG_OFF = 0x1530000
WS_SIZE = 0x1600000
QSCALE = (DH ** -0.5) * 1.4426950408889634
import struct, os
E = os.environ.get
def f2u(x): return struct.unpack("<I", struct.pack("<f", x))[0]
def hexf(x): return "0x%08x" % f2u(x)
def _is_lit(t):
    t = t.strip()
    try:
        v = int(t, 0)
    except ValueError:
        return False
    return not (-16 <= v <= 64)
class Asm:
    def __init__(self): self.lines = []
    def __call__(self, text):
        for l in text.strip("\n").split("\n"):
            l = l.strip()
            if not l: continue
            if l.startswith("s_cselect_b32"):
                d, x, y = [t.strip() for t in l[len("s_cselect_b32"):].split(",")]
                if _is_lit(x) and _is_lit(y):
                    self.lines.append(f"    s_mov_b32 {d}, {y}")
                    l = f"s_cselect_b32 {d}, {x}, {d}"
            self.lines.append(("" if l.endswith(":") else "    ") + l)
    def raw(self, text): self.lines.append(text)
    def text(self): return "\n".join(self.lines) + "\n"
def vr(a, n=1): return f"v{a}" if n == 1 else f"v[{a}:{a+n-1}]"
def sr(a, n=1): return f"s{a}" if n == 1 else f"s[{a}:{a+n-1}]"
def mfma(d, a, b, c=None):
    cs = vr(d, 16) if c is None else (c if isinstance(c, str) else vr(c, 16))
    return f"v_mfma_f32_32x32x16_bf16 {vr(d,16)}, {vr(a,4)}, {vr(b,4)}, {cs}"
def mfma8(d, a, b, c=None):
    cs = vr(d, 16) if c is None else (c if isinstance(c, str) else vr(c, 16))
    return f"v_mfma_f32_32x32x8bf16_1k {vr(d,16)}, {vr(a,2)}, {vr(b,2)}, {cs}"
def srd(a, base_lo, base_hi, size):
    return f"""s_mov_b32 s{a}, {base_lo}
s_mov_b32 s{a+1}, {base_hi}
s_mov_b32 s{a+2}, {size}
s_mov_b32 s{a+3}, 0x00020000"""
def kernel_head(name):
    return f""".text
.globl {name}
.p2align 8
.type {name},@function
{name}:"""
def kernel_desc(name, vgpr, sgpr=100, accum=None):
    accum = accum or ((vgpr + 3) // 4 * 4)
    return f""".section .rodata,"a"
.p2align 6
.amdhsa_kernel {name}
  .amdhsa_next_free_vgpr {vgpr}
  .amdhsa_next_free_sgpr {sgpr}
  .amdhsa_accum_offset {accum}
  .amdhsa_group_segment_fixed_size 0
  .amdhsa_kernarg_size 72
  .amdhsa_user_sgpr_count 2
  .amdhsa_user_sgpr_kernarg_segment_ptr 1
  .amdhsa_system_sgpr_workgroup_id_x 1
  .amdhsa_float_denorm_mode_32 3
.end_amdhsa_kernel
.text"""
DIAG = int(E("DIAG", "0"))
DIAG_OFF = 0x2000000
def stamp(i):
    if not DIAG: return ""
    t = f"s_memtime s[{64+2*i}:{65+2*i}]\n"
    if i == 0: t += "s_memrealtime s[80:81]\n"
    t += "s_waitcnt lgkmcnt(0)\n"
    return t
def stamp_flush(kidx, n, srd_base):
    if not DIAG: return ""
    t = "s_waitcnt vmcnt(0)\ns_memrealtime s[82:83]\ns_waitcnt lgkmcnt(0)\n"
    t += "s_mov_b64 exec, -1\n"
    t += f"v_lshrrev_b32 v1, 6, v0\ns_lshl_b32 s3, s2, 4\nv_add_u32 v1, s3, v1\nv_lshlrev_b32 v1, 6, v1\n"
    t += f"s_mov_b32 s3, {DIAG_OFF + kidx*0x40000}\n"
    t += f"s_mov_b32 s{srd_base+2}, 0x3000000\n"
    for i in range(n):
        t += f"s_sub_u32 s84, s{64+2*i}, s64\nv_mov_b32 v2, s84\nbuffer_store_dword v2, v1, s[{srd_base}:{srd_base+3}], s3 offen offset:{4*i}\n"
    t += f"v_mov_b32 v2, s80\nbuffer_store_dword v2, v1, s[{srd_base}:{srd_base+3}], s3 offen offset:56\n"
    t += f"v_mov_b32 v2, s82\nbuffer_store_dword v2, v1, s[{srd_base}:{srd_base+3}], s3 offen offset:60\ns_waitcnt vmcnt(0)\n"
    return t

DIAG2 = int(E("DIAG2", "0"))
def d2_start():
    if not DIAG2: return ""
    return """
    s_memrealtime s[86:87]
    s_memtime s[88:89]
    s_load_dwordx2 s[90:91], s[0:1], 56
    s_waitcnt lgkmcnt(0)
    s_mov_b32 s92, s90
    s_mov_b32 s93, s91
    s_mov_b32 s94, 256
    s_mov_b32 s95, 0x00020000
    s_not_b32 s85, s86
    v_mov_b32 v253, s85
    v_mov_b32 v252, 32
    v_readfirstlane_b32 s84, v0
    s_lshr_b32 s84, s84, 6
    s_lshl_b32 s97, s2, 3
    s_add_u32 s84, s84, s97
    s_and_b32 s84, s84, 0x3f
    s_cmp_lg_u32 s84, 0
    s_cbranch_scc1 L_d2_skip
    s_mov_b64 exec, 1
    buffer_atomic_umax v253, v252, s[92:95], 0 offen sc1
    s_mov_b64 exec, -1
    L_d2_skip:
    """
def d2_end():
    if not DIAG2: return ""
    return """
    s_waitcnt vmcnt(0)
    s_cmp_lg_u32 s32, 4
    s_cbranch_scc1 L_d2_skip2
    s_memrealtime s[84:85]
    s_memtime s[90:91]
    s_waitcnt lgkmcnt(0)
    v_mov_b32 v1, s84
    v_mov_b32 v2, 36
    s_mov_b64 exec, 1
    buffer_atomic_umax v1, v2, s[92:95], 0 offen sc1
    s_sub_u32 s90, s90, s88
    s_sub_u32 s84, s84, s86
    v_mov_b32 v1, s90
    v_mov_b32 v2, 40
    buffer_atomic_umax v1, v2, s[92:95], 0 offen sc1
    v_mov_b32 v1, s84
    v_mov_b32 v2, 44
    buffer_atomic_umax v1, v2, s[92:95], 0 offen sc1
    s_mov_b64 exec, -1
    s_waitcnt vmcnt(0)
    L_d2_skip2:
    """
```

```python
from common import *
CSL = 147456
K1_LDS = CSL + 512
XS, WS0 = 32768, 98304
ST = {"0": "", "1": " sc0 sc1", "2": " nt", "3": " sc1", "4": " sc0 sc1 nt"}[E("WT", "1")]
def k1(name, fused=None, sym=None):
    a = Asm()
    a(kernel_head(sym or name))
    NSTAT = 5 if fused else 4
    DONE = f"L_{name}_rdone" if fused else f"L_{name}_exit"
    sW, sTB, sCT, sLD, sXB, sWB, sM0X, sKS, sST, sT0, sT1, sCur = 32,33,34,35,36,37,38,39,40,41,42,43
    sScale, sWM, sWN, sFA, sDX, sDW, sXG, sWG, sP, sLD6, sMX, sMW = 45,46,47,48,49,50,51,52,53,54,60,61
    DBG = 56
    vLane = 1
    vXD, vWD = 194, 198
    vXA, vWA = 4, 8
    vCs, vTmp = 12, 14
    vEA = 16
    vAB = 24
    vPoll, vPollA = 28, 29
    FR = [32, 48]
    ACC = lambda ft, tt: 64 + (ft*2+tt)*16
    VST = 128
    a(f"""
    s_cmp_ge_u32 s2, 256
    s_cbranch_scc1 L_{name}_exit
    """)
    if E("PERM"):
        a(f"s_mul_i32 s2, s2, {int(E('PERM'))}\ns_add_u32 s2, s2, 77\ns_and_b32 s2, s2, 255")
    a(stamp(0))
    a(d2_start())
    a(f"""
    s_load_dwordx4 s[4:7], s[0:1], 0
    s_load_dwordx2 s[8:9], s[0:1], 16
    s_load_dwordx4 s[12:15], s[0:1], 32
    s_load_dwordx2 s[16:17], s[0:1], 64
    s_load_dwordx2 s[18:19], s[0:1], 56
    v_lshrrev_b32 v2, 6, v0
    v_and_b32 v{vLane}, 63, v0
    v_readfirstlane_b32 s{sW}, v2
    s_and_b32 s{sT0}, s2, 7
    s_lshr_b32 s{sT1}, s2, 3
    s_and_b32 s{sKS}, s{sT1}, 3
    s_and_b32 s3, s{sT0}, 1
    s_lshl_b32 s3, s3, 2
    s_add_u32 s{sTB}, s{sKS}, s3
    """)
    if E("REMAP", "0") == "1":
        a(f"""
        s_lshr_b32 s{sLD}, s{sT0}, 1
        s_lshl_b32 s3, s{sLD}, 3
        s_lshr_b32 s{sCT}, 0x0e140700, s3
        s_and_b32 s{sCT}, s{sCT}, 0xff
        s_lshr_b32 s3, s{sT1}, 2
        s_add_u32 s{sCT}, s{sCT}, s3
        s_cmp_eq_u32 s{sLD}, 3
        s_cselect_b32 s{sLD}, 6, 7
        s_cmp_ge_u32 s3, s{sLD}
        s_cbranch_scc1 L_{name}_spare
        """)
    else:
        a(f"""
        s_lshr_b32 s{sCT}, s{sT0}, 1
        s_mul_i32 s{sCT}, s{sCT}, 7
        s_lshr_b32 s3, s{sT1}, 2
        s_add_u32 s{sCT}, s{sCT}, s3
        s_cmp_ge_u32 s3, 7
        s_cbranch_scc1 L_{name}_spare
        s_cmp_ge_u32 s{sCT}, 27
        s_cbranch_scc1 L_{name}_spare
        """)
    rot = E("ROT", "0")
    if rot == "1":
        a(f"""
        s_mul_i32 s3, s3, 3
        s_mul_i32 s{sKS}, s{sKS}, 5
        s_lshr_b32 s{sKS}, s{sKS}, 1
        s_add_u32 s{sKS}, s{sKS}, s3
        s_cmp_ge_u32 s{sKS}, 20
        s_cselect_b32 s3, 20, 0
        s_sub_u32 s{sKS}, s{sKS}, s3
        s_cmp_ge_u32 s{sKS}, 10
        s_cselect_b32 s3, 10, 0
        s_sub_u32 s{sKS}, s{sKS}, s3
        """)
    elif rot == "2":
        a(f"""
        s_add_u32 s3, s3, s{sKS}
        s_and_b32 s3, s3, 1
        s_mul_i32 s{sKS}, s3, 5
        """)
    else:
        a(f"s_mov_b32 s{sKS}, 0")
    a(f"""
    s_cmp_ge_u32 s{sCT}, 15
    s_cselect_b32 s{sLD}, 3072, 3840
    s_cselect_b32 s3, 15, 0
    s_sub_u32 s3, s{sCT}, s3
    s_lshl_b32 s{sWB}, s3, 8
    s_mul_i32 s{sXB}, s{sTB}, {256*1280}
    s_lshl_b32 s{sM0X}, s{sW}, 10
    s_lshl_b32 s{sLD6}, s{sLD}, 6
    s_and_b32 s{sWM}, s{sW}, 3
    s_lshr_b32 s{sWN}, s{sW}, 2
    s_and_b32 s{sFA}, s{sW}, 1
    s_lshr_b32 s{sP}, s{sWM}, 1
    v_lshrrev_b32 v12, 4, v{vLane}
    s_lshl_b32 s3, s{sW}, 2
    v_add_u32 v13, s3, v12
    v_xor_b32 v5, v13, v{vLane}
    v_and_b32 v5, 7, v5
    v_lshrrev_b32 v4, 3, v{vLane}
    v_lshl_add_u32 v4, s{sW}, 3, v4
    v_mul_u32_u24 v4, 1280, v4
    v_lshl_add_u32 v{vXD}, v5, 4, v4
    v_add_u32 v{vXD+1}, {64*1280}, v{vXD}
    v_add_u32 v{vXD+2}, {128*1280}, v{vXD}
    v_add_u32 v{vXD+3}, {192*1280}, v{vXD}
    v_lshlrev_b32 v5, 2, v12
    v_xor_b32 v5, v5, v{vLane}
    v_and_b32 v5, 15, v5
    v_mul_u32_u24 v4, s{sLD}, v13
    v_lshl_add_u32 v{vWD}, v5, 4, v4
    s_lshl_b32 s3, s{sLD}, 5
    v_add_u32 v{vWD+1}, s3, v{vWD}
    v_and_b32 v192, 31, v{vLane}
    v_lshrrev_b32 v193, 5, v{vLane}
    v_bfe_u32 v14, v{vLane}, 1, 3
    s_lshl_b32 s3, s{sP}, 1
    v_add_u32 v15, s3, v193
    v_xor_b32 v14, v14, v15
    v_lshl_add_u32 v15, s{sWM}, 6, v192
    v_lshlrev_b32 v15, 7, v15
    v_lshl_add_u32 v{vXA}, v14, 4, v15
    v_xor_b32 v{vXA+1}, 32, v{vXA}
    v_xor_b32 v{vXA+2}, 64, v{vXA}
    v_xor_b32 v{vXA+3}, 0x60, v{vXA}
    v_bfe_u32 v14, v{vLane}, 2, 2
    v_lshl_add_u32 v15, v193, 3, v14
    s_lshl_b32 s{sT0}, s{sP}, 4
    v_add_u32 v15, s{sT0}, v15
    s_lshl_b32 s3, s{sWN}, 1
    s_add_u32 s3, s3, s{sFA}
    v_xor_b32 v14, s3, v14
    v_lshlrev_b32 v14, 6, v14
    v_lshl_add_u32 v15, v15, 8, v14
    v_and_b32 v14, 1, v12
    v_lshl_add_u32 v15, v14, 5, v15
    v_and_b32 v14, 3, v{vLane}
    v_lshl_add_u32 v15, v14, 3, v15
    v_add_u32 v{vWA}, {WS0}, v15
    v_xor_b32 v{vWA+1}, 0x1000, v{vWA}
    v_xor_b32 v{vWA+2}, 64, v{vWA}
    v_xor_b32 v{vWA+3}, 0x1040, v{vWA}
    v_and_b32 v14, 127, v0
    v_lshlrev_b32 v14, 2, v14
    v_add_u32 v14, {CSL}, v14
    v_mov_b32 v{vCs}, 0
    v_mov_b32 v{vCs+1}, 0
    ds_write_b32 v14, v{vCs}
    s_mov_b32 s{sST}, 0
    s_mov_b32 s{sCur}, 0
    s_mov_b32 s{sScale}, 0xffff0000
    s_waitcnt lgkmcnt(0)
    """)
    a(stamp(6))
    a(srd(20, "s4", "s5", S*D*2))
    a(f"""
    s_cmp_ge_u32 s{sCT}, 15
    s_cselect_b32 s24, s12, s6
    s_cselect_b32 s25, s13, s7
    s_cselect_b32 s26, {640*3072}, {640*3840}
    s_mov_b32 s27, 0x00020000
    v_mov_b32 v{vPollA}, 0
    v_mov_b32 v{vEA}, 0
    v_mov_b32 v{vEA+1}, 0
    """)
    a(srd(28, "s16", "s17", WS_SIZE))
    a(srd(DBG, "s18", "s19", 256))
    def issue_pre():
        t = f"s_lshl_b32 s{sXG}, s{sKS}, 7\ns_add_u32 s{sXG}, s{sXG}, s{sXB}\n"
        t += f"s_mul_i32 s{sWG}, s{sLD6}, s{sKS}\ns_add_u32 s{sWG}, s{sWG}, s{sWB}\n"
        t += f"s_add_u32 s{sKS}, s{sKS}, 1\ns_cmp_ge_u32 s{sKS}, 10\ns_cselect_b32 s{sKS}, 0, s{sKS}\n"
        return t
    def dma_m0(i): return f"s_add_u32 m0, s{sMX}, {i*8192}\n" if i < 4 else f"s_add_u32 m0, s{sMW}, {(i-4)*8192}\n"
    def dma_ld(i):
        if i < 4: return f"buffer_load_dwordx4 v{vXD+i}, s[20:23], s{sXG} offen lds\n"
        return f"buffer_load_dwordx4 v{vWD+i-4}, s[24:27], s{sWG} offen lds\n"
    def issue():
        t = issue_pre()
        for i in range(6): t += dma_m0(i) + "s_nop 0\n" + dma_ld(i)
        return t
    def slot_m0(slot_sgpr=None, slot=None):
        if slot is not None:
            return f"s_add_u32 s{sMX}, s{sM0X}, {slot*XS}\ns_add_u32 s{sMW}, s{sM0X}, {WS0+slot*16384}\n"
        return (f"s_lshl_b32 s{sMX}, s{slot_sgpr}, 15\ns_add_u32 s{sMX}, s{sMX}, s{sM0X}\n"
                f"s_lshl_b32 s{sMW}, s{slot_sgpr}, 14\ns_add_u32 s{sMW}, s{sMW}, s{sM0X}\ns_add_u32 s{sMW}, s{sMW}, {WS0}\n")
    if E("PF", "0") != "0":
        PF0 = int(E("PF0", "3"))
        a(f"""
        s_add_u32 s{sT0}, s{sW}, {PF0}
        s_cmp_ge_u32 s{sT0}, 10
        s_cbranch_scc1 L_{name}_nopf
        s_lshr_b32 s{sT1}, s2, 3
        s_mul_i32 s3, s{sT1}, 37
        v_add_u32 v14, s3, v{vLane}
        v_min_u32 v14, 0x3ff, v14
        s_and_b32 s3, s2, 1
        s_lshl_b32 s3, s3, 10
        v_add_u32 v14, s3, v14
        v_mul_u32_u24 v14, 1280, v14
        s_lshl_b32 s3, s{sT0}, 7
        s_mov_b32 exec_hi, 0x1f
        buffer_load_dword v30, v14, s[20:23], s3 offen
        s_mov_b64 exec, 0xffffffff
        s_lshl_b32 s3, s{sT1}, 5
        v_add_u32 v14, s3, v{vLane}
        v_mul_u32_u24 v15, 4682, v14
        v_lshrrev_b32 v15, 16, v15
        v_mul_u32_u24 v18, 14, v15
        v_sub_u32 v14, v14, v18
        s_lshl_b32 s3, s{sT0}, 6
        v_add_u32 v15, s3, v15
        s_bfe_u32 s3, s2, 0x20001
        s_mul_i32 s3, s3, 14
        v_add_u32 v14, s3, v14
        v_min_u32 v14, 53, v14
        v_lshlrev_b32 v14, 7, v14
        v_cmp_gt_u32 vcc, 3840, v14
        v_mul_u32_u24 v18, 3840, v15
        v_mul_u32_u24 v19, 3072, v15
        v_add_u32 v18, v18, v14
        v_add_u32 v19, v19, v14
        v_subrev_u32 v19, 3840, v19
        v_cndmask_b32 v18, v19, v18, vcc
        v_mov_b32 v20, s12
        v_mov_b32 v21, s13
        v_mov_b32 v22, s6
        v_mov_b32 v23, s7
        v_cndmask_b32 v20, v20, v22, vcc
        v_cndmask_b32 v21, v21, v23, vcc
        v_add_co_u32 v20, vcc, v20, v18
        s_nop 1
        v_addc_co_u32 v21, vcc, 0, v21, vcc
        global_load_dword v31, v[20:21], off
        s_mov_b64 exec, -1
        L_{name}_nopf:
        """)
    NPRE = int(E("NPRE", "2"))
    a(f"L_{name}_pre:")
    a(slot_m0(slot_sgpr=sCur)); a(issue())
    a(f"""
    s_add_u32 s{sCur}, s{sCur}, 1
    s_cmp_lt_u32 s{sCur}, {NPRE}
    {"s_barrier" if E("PBAR", "1") == "1" else "s_nop 0"}
    s_cbranch_scc1 L_{name}_pre
    """)
    if NPRE == 2: a(slot_m0(slot_sgpr=sCur) + issue_pre())
    a(f"s_mov_b32 s{sCur}, 0")
    a(stamp(7))
    def late_setup(orient):
        t = f"""
        s_lshl_b32 s{sT0}, s{sTB}, 2
        v_mov_b32 v{vPollA}, s{sT0}
        """
        if orient == 1:
            t += f"""
            s_mov_b32 s{sT1}, 52429
            s_sub_u32 s3, s{sCT}, 10
            s_lshl_b32 s3, s3, 7
            s_lshl_b32 s{sT0}, s{sWN}, 6
            s_add_u32 s3, s3, s{sT0}
            v_mul_u32_u24 v24, 320, v193
            """
            for ft in range(2):
                t += f"""
                s_xor_b32 s{sT0}, s{sFA}, {ft}
                s_lshl_b32 s{sT0}, s{sT0}, 5
                s_add_u32 s{sT0}, s{sT0}, s3
                v_add_u32 v30, s{sT0}, v192
                v_mul_u32_u24 v31, s{sT1}, v30
                v_lshrrev_b32 v31, 20, v31
                v_mul_u32_u24 v25, 20, v31
                v_sub_u32 v25, v30, v25
                v_mul_u32_u24 v31, {128*640}, v31
                v_lshl_add_u32 v31, v25, 4, v31
                v_add_u32 v{vEA+ft}, v31, v24
                """
        return t
    def reads(s, fs):
        if E("NOREAD"): return [""] * 6
        b = FR[fs]
        t = [f"ds_read_b128 {vr(b,4)}, v{vXA+s}\n", f"ds_read_b128 {vr(b+4,4)}, v{vXA+s} offset:4096\n"]
        for ft in range(2):
            o = (s >> 1) * 8192
            t.append(f"ds_read_b64_tr_b16 {vr(b+8+ft*4,2)}, v{vWA+ft*2+(s&1)} offset:{o}\n")
            t.append(f"ds_read_b64_tr_b16 {vr(b+10+ft*4,2)}, v{vWA+ft*2+(s&1)} offset:{o+1024}\n")
        return t
    def compute(s, fs, orient, zero=False, rd=None, extra=None):
        b = FR[fs]; X = [b, b+4]; W = [b+8, b+12]
        t = ""; k = 0
        for ft in range(2):
            for tt in range(2):
                c = "0" if zero else None
                if orient == 0: t += mfma(ACC(ft,tt), W[ft], X[tt], c) + "\n"
                else: t += mfma(ACC(ft,tt), X[tt], W[ft], c) + "\n"
                if extra: t += extra[k]
                elif rd and k < 3: t += rd[2*k] + rd[2*k+1]
                if (s & 1) == 0 and not E("NOCS"):
                    t += f"v_lshlrev_b32 v{vTmp}, 16, v{W[0]+k}\nv_and_b32 v{vTmp+1}, s{sScale}, v{W[0]+k}\n"
                    t += f"v_add_f32 v{vCs}, v{vCs}, v{vTmp}\nv_add_f32 v{vCs+1}, v{vCs+1}, v{vTmp+1}\n"
                k += 1
        return t
    def dma_extra(rd):
        return [dma_m0(0) + rd[0] + dma_ld(0) + dma_m0(1) + rd[1] + dma_ld(1),
                dma_m0(2) + rd[2] + dma_ld(2) + dma_m0(3) + rd[3] + dma_ld(3),
                dma_m0(4) + rd[4] + dma_ld(4) + dma_m0(5) + rd[5] + dma_ld(5), ""]
    a(f"""
    s_waitcnt vmcnt({6*(NPRE-1)})
    s_barrier
    """)
    a(stamp(1))
    a("".join(reads(0, 0)))
    a(f"""
    s_cmp_ge_u32 s{sCT}, 10
    s_cbranch_scc0 L_{name}_ent0
    s_cmp_lt_u32 s{sCT}, 15
    s_cbranch_scc1 L_{name}_ent1
    """)
    def rotate_s():
        return f"""s_cmp_eq_u32 s{sCur}, 2
        s_cselect_b32 s{sDX}, {-2*XS & 0xffffffff}, {XS}
        s_cselect_b32 s{sDW}, {-2*16384 & 0xffffffff}, 16384
        s_cselect_b32 s{sCur}, -1, s{sCur}
        s_add_u32 s{sCur}, s{sCur}, 1
        """
    def rotate_v(lo, hi):
        t = ""
        for r in range(lo, hi):
            t += f"v_add_u32 v{vXA+r}, s{sDX}, v{vXA+r}\nv_add_u32 v{vWA+r}, s{sDW}, v{vWA+r}\n"
        return t
    for orient in range(2):
        L = f"L_{name}_loop{orient}"
        a(f"L_{name}_ent{orient}:")
        a("s_waitcnt lgkmcnt(0)")
        if NPRE == 2: a(compute(0, 0, orient, zero=True, extra=dma_extra(reads(1, 1))))
        else: a(compute(0, 0, orient, zero=True, rd=reads(1, 1)))
        a(f"s_branch {L}_k1")
        a(f"{L}:")
        a("s_waitcnt lgkmcnt(0)")
        a(compute(0, 0, orient, rd=reads(1, 1)))
        a(f"{L}_k1:")
        a("s_waitcnt lgkmcnt(0)")
        r2 = reads(2, 0)
        a(compute(1, 1, orient, extra=[r2[0] + r2[1] + slot_m0(slot_sgpr=sCur), r2[2] + r2[3] + issue_pre(), r2[4] + r2[5] + rotate_s(), ""]))
        a("s_waitcnt lgkmcnt(0)")
        r3 = reads(3, 1)
        a(compute(2, 0, orient, extra=[r3[0] + r3[1], r3[2] + r3[3], r3[4] + r3[5], rotate_v(0, 4)]))
        a(f"""
        s_cmp_ge_u32 s{sST}, 7
        s_cbranch_scc1 {L}_tail
        s_waitcnt vmcnt(6) lgkmcnt(0)
        s_barrier
        """)
        a(compute(3, 1, orient, extra=dma_extra(reads(0, 0))))
        a(f"""
        s_add_u32 s{sST}, s{sST}, 1
        s_branch {L}
        {L}_tail:
        s_cmp_ge_u32 s{sST}, 9
        s_cbranch_scc1 {L}_last
        s_cmp_ge_u32 s{sST}, 8
        s_cbranch_scc1 {L}_w0
        s_waitcnt vmcnt(6) lgkmcnt(0)
        s_barrier
        """)
        a(late_setup(orient))
        a(f"""
        buffer_load_dword v{vPoll}, v{vPollA}, s[{DBG}:{DBG+3}], 0 offen sc1
        s_branch {L}_go
        {L}_w0:
        s_waitcnt vmcnt(0) lgkmcnt(0)
        s_barrier
        s_mov_b32 s{sT1}, 0
        {L}_spin:
        v_readfirstlane_b32 s{sT0}, v{vPoll}
        s_add_u32 s{sT1}, s{sT1}, 1
        s_cmp_ge_u32 s{sT0}, {0 if E("NOSPARE") else NSTAT}
        s_cbranch_scc1 {L}_got
        s_cmp_ge_u32 s{sT1}, 0x40000
        s_cbranch_scc1 {L}_got
        s_sleep 2
        buffer_load_dword v{vPoll}, v{vPollA}, s[{DBG}:{DBG+3}], 0 offen sc1
        s_waitcnt vmcnt(0)
        s_branch {L}_spin
        {L}_got:
        s_lshl_b32 s{sT0}, s{sTB}, 10
        s_lshl_b32 s{sT1}, s{sWM}, 8
        s_add_u32 s{sT0}, s{sT0}, s{sT1}
        s_add_u32 s{sT0}, s{sT0}, {STA_OFF}
        s_add_u32 s{sT1}, s{sT0}, 8192
        """)
        if orient == 0:
            a(f"""
            v_lshlrev_b32 v30, 2, v192
            buffer_load_dword v{vAB}, v30, s[28:31], s{sT0} offen sc1
            buffer_load_dword v{vAB+1}, v30, s[28:31], s{sT1} offen sc1
            buffer_load_dword v{vAB+2}, v30, s[28:31], s{sT0} offen offset:128 sc1
            buffer_load_dword v{vAB+3}, v30, s[28:31], s{sT1} offen offset:128 sc1
            """)
        else:
            a("v_lshlrev_b32 v30, 4, v193")
            for tt in range(2):
                for i in range(4):
                    a(f"buffer_load_dwordx4 {vr(VST+32*tt+4*i,4)}, v30, s[28:31], s{sT0} offen offset:{tt*128+i*32} sc1")
                    a(f"buffer_load_dwordx4 {vr(VST+32*tt+16+4*i,4)}, v30, s[28:31], s{sT1} offen offset:{tt*128+i*32} sc1")
        a(f"{L}_go:")
        a(compute(3, 1, orient, rd=reads(0, 0)))
        a(f"""
        s_add_u32 s{sST}, s{sST}, 1
        s_branch {L}
        {L}_last:
        s_waitcnt lgkmcnt(0)
        """)
        a(compute(3, 1, orient))
        if orient == 0: a(f"s_branch L_{name}_stats")
    a(f"L_{name}_stats:")
    a(stamp(2))
    a(f"""
    v_add_f32 v{vCs}, v{vCs}, v{vCs+1}
    v_mov_b32 v{vTmp}, v{vCs}
    s_lshl_b32 s{sT0}, s{sWN}, 6
    s_lshl_b32 s{sT1}, s{sFA}, 5
    s_add_u32 s{sT0}, s{sT0}, s{sT1}
    v_mov_b32 v13, v{vCs}
    s_nop 1
    v_permlane32_swap_b32 v13, v{vTmp}
    v_add_u32 v30, s{sT0}, v192
    v_lshlrev_b32 v30, 2, v30
    v_add_u32 v30, {CSL}, v30
    v_add_f32 v13, v13, v{vTmp}
    s_mov_b64 exec, 0xffffffff
    ds_add_f32 v30, v13
    s_mov_b64 exec, -1
    s_lshl_b32 s{sT0}, s{sTB}, 3
    s_lshl_b32 s{sT1}, s{sWM}, 1
    s_add_u32 s{sST}, s{sT0}, s{sT1}
    s_waitcnt lgkmcnt(0)
    s_barrier
    """)
    a(stamp(3))
    a(f"""
    s_cmp_ge_u32 s{sCT}, 10
    s_cbranch_scc0 L_{name}_epiT
    s_cmp_lt_u32 s{sCT}, 15
    s_cbranch_scc1 L_{name}_epiV
    L_{name}_epiT:
    s_lshl_b32 s{sT0}, s{sWN}, 8
    v_lshlrev_b32 v30, 4, v193
    v_add_u32 v30, s{sT0}, v30
    v_add_u32 v30, {CSL}, v30
    s_lshl_b32 s{sT0}, s{sFA}, 7
    v_add_u32 v31, s{sT0}, v30
    s_xor_b32 s{sT0}, s{sT0}, 128
    v_add_u32 v30, s{sT0}, v30
    """)
    for i in range(4): a(f"ds_read_b128 {vr(32+4*i,4)}, v31 offset:{i*32}")
    for i in range(4): a(f"ds_read_b128 {vr(48+4*i,4)}, v30 offset:{i*32}")
    def norm_pair_tok(accreg, csreg, ab, tmp):
        return (f"v_pk_mul_f32 {vr(tmp,2)}, {vr(csreg,2)}, {vr(ab,2)} op_sel:[0,1] op_sel_hi:[1,1]\n"
                f"v_pk_fma_f32 {vr(accreg,2)}, {vr(accreg,2)}, {vr(ab,2)}, {vr(tmp,2)} op_sel:[0,0,0] op_sel_hi:[1,0,1]\n")
    a(f"""
    s_cmp_lt_u32 s{sCT}, 5
    s_cselect_b32 s{sScale}, {hexf(QSCALE)}, 1.0
    s_cselect_b32 s{sXG}, {QF_OFF}, {KF_OFF}
    s_cselect_b32 s3, 0, 5
    s_sub_u32 s3, s{sCT}, s3
    s_lshl_b32 s3, s3, 4
    s_lshl_b32 s{sT0}, s{sWN}, 3
    s_add_u32 s3, s3, s{sT0}
    s_mul_i32 s{sT0}, s{sST}, 80
    s_add_u32 s3, s3, s{sT0}
    s_lshl_b32 s3, s3, 9
    s_add_u32 s{sXG}, s{sXG}, s3
    v_lshlrev_b32 v{vEA}, 4, v192
    v_lshl_add_u32 v{vEA}, v193, 9, v{vEA}
    s_waitcnt vmcnt(0)
    """)
    for r in range(4): a(f"v_mul_f32 v{vAB+r}, s{sScale}, v{vAB+r}")
    a(f"""
    s_cmp_ge_u32 s{sCT}, 15
    s_cbranch_scc1 L_{name}_epiH
    s_waitcnt lgkmcnt(0)
    """)
    for ft in range(2):
        for tt in range(2):
            ab = vAB + 2*tt
            a(f"""
            s_xor_b32 s{sT0}, s{sFA}, {ft}
            s_lshl_b32 s{sT0}, s{sT0}, 11
            s_add_u32 s{sT0}, s{sT0}, s{sXG}
            """)
            if tt: a(f"s_add_u32 s{sT0}, s{sT0}, {80*512}")
            for half in range(2):
                A0 = ACC(ft,tt) + 8*half
                for i in range(2):
                    A = A0 + 4*i; C = 32 + ft*16 + 8*half + 4*i
                    a(norm_pair_tok(A, C, ab, 28)); a(norm_pair_tok(A+2, C+2, ab, 30))
                for p in range(4): a(f"v_cvt_pk_bf16_f32 v{A0+p}, v{A0+2*p}, v{A0+2*p+1}")
                a(f"s_nop 0\nv_permlane32_swap_b32 v{A0}, v{A0+2}\nv_permlane32_swap_b32 v{A0+1}, v{A0+3}")
                a(f"buffer_store_dwordx4 {vr(A0,4)}, v{vEA}, s[28:31], s{sT0} offen offset:{half*1024}{ST}")
    a(f"s_branch L_{name}_end")
    a(f"L_{name}_epiH:")
    a(f"""
    s_mul_i32 s{sT0}, s{sST}, 96
    s_sub_u32 s3, s{sCT}, 15
    s_lshl_b32 s3, s3, 3
    s_add_u32 s{sT0}, s{sT0}, s3
    s_lshl_b32 s3, s{sWN}, 2
    s_add_u32 s{sT0}, s{sT0}, s3
    s_lshl_b32 s{sT0}, s{sT0}, 10
    s_add_u32 s{sXG}, s{sT0}, {HF_OFF}
    v_lshlrev_b32 v4, 4, v{vLane}
    s_waitcnt lgkmcnt(0)
    """)
    for ft in range(2):
        for tt in range(2):
            ab = vAB + 2*tt
            a(f"""
            s_xor_b32 s{sT0}, s{sFA}, {ft}
            s_lshl_b32 s{sT0}, s{sT0}, 11
            s_add_u32 s{sT0}, s{sT0}, s{sXG}
            s_add_u32 s{sT0}, s{sT0}, {tt*96*1024}
            """)
            for half in range(2):
                A0 = ACC(ft,tt) + 8*half
                for i in range(2):
                    A = A0 + 4*i; C = 32 + ft*16 + 8*half + 4*i
                    a(norm_pair_tok(A, C, ab, 28)); a(norm_pair_tok(A+2, C+2, ab, 30))
                for p in range(4):
                    a(f"v_cvt_pk_bf16_f32 v{A0+p}, v{A0+2*p}, v{A0+2*p+1}")
                for p in range(4):
                    a(f"v_pk_max_i16 v{A0+p}, v{A0+p}, 0")
                a(f"buffer_store_dwordx4 {vr(A0,4)}, v4, s[28:31], s{sT0} offen offset:{half*1024}{ST}")
    a(f"s_branch L_{name}_end")
    a(f"L_{name}_epiV:")
    a(f"""
    s_lshl_b32 s{sT0}, s{sWN}, 6
    v_add_u32 v30, s{sT0}, v192
    v_lshlrev_b32 v30, 2, v30
    v_add_u32 v30, {CSL}, v30
    s_lshl_b32 s{sT1}, s{sFA}, 7
    v_add_u32 v31, s{sT1}, v30
    s_xor_b32 s{sT1}, s{sT1}, 128
    v_add_u32 v30, s{sT1}, v30
    ds_read_b32 v24, v31
    ds_read_b32 v26, v30
    s_mul_i32 s{sT0}, s{sST}, 1280
    s_add_u32 s{sXG}, s{sT0}, {VF_OFF}
    s_waitcnt vmcnt(0) lgkmcnt(0)
    """)
    for tt in range(2):
        if tt == 1: a(f"s_add_u32 s{sXG}, s{sXG}, 1280")
        for ft in range(2):
            cs = 24 + 2*ft
            A0 = ACC(ft,tt)
            for p in range(8):
                A = A0 + 2*p
                tmp = 28 + 2*(p & 1)
                a(f"v_pk_mul_f32 {vr(tmp,2)}, {vr(VST+32*tt+16+2*p,2)}, {vr(cs,2)} op_sel:[0,0] op_sel_hi:[1,0]")
                a(f"v_pk_fma_f32 {vr(A,2)}, {vr(A,2)}, {vr(VST+32*tt+2*p,2)}, {vr(tmp,2)}")
            for p in range(8): a(f"v_cvt_pk_bf16_f32 v{A0+p}, v{A0+2*p}, v{A0+2*p+1}")
            a(f"buffer_store_dwordx4 {vr(A0,4)}, v{vEA+ft}, s[28:31], s{sXG} offen{ST}")
            a(f"buffer_store_dwordx4 {vr(A0+4,4)}, v{vEA+ft}, s[28:31], s{sXG} offen offset:640{ST}")
    a(f"s_branch L_{name}_end")
    a(f"L_{name}_spare:")
    if E("NOSPARE"): a(f"s_branch L_{name}_exit")
    a(f"""
    s_and_b32 s{sT0}, s2, 7
    s_lshr_b32 s{sT1}, s2, 3
    s_cmp_ge_u32 s{sT1}, 28
    s_cbranch_scc1 L_{name}_sp1
    s_sub_u32 s{sT0}, s{sT0}, 6
    s_lshl_b32 s{sT0}, s{sT0}, 2
    s_add_u32 s{sT0}, s{sT0}, s{sT1}
    s_add_u32 s{sST}, s{sT0}, 8
    s_branch L_{name}_sp2
    L_{name}_sp1:
    s_lshl_b32 s{sT0}, s{sT0}, 2
    s_add_u32 s{sT0}, s{sT0}, s{sT1}
    s_sub_u32 s{sST}, s{sT0}, 28
    L_{name}_sp2:
    v_mov_b32 v20, 0
    v_mov_b32 v21, 0
    v_mov_b32 v22, 0
    v_lshrrev_b32 v4, 4, v{vLane}
    v_and_b32 v5, 15, v{vLane}
    v_mul_u32_u24 v6, 1280, v4
    v_lshl_add_u32 v6, v5, 4, v6
    s_waitcnt lgkmcnt(0)
    """)
    a(srd(28, "s16", "s17", WS_SIZE))
    a(srd(DBG, "s18", "s19", 256))
    if E("CPF", "0") == "1":
        a(f"""
        s_and_b32 s3, s{sST}, 3
        s_cmp_lg_u32 s3, 0
        s_cbranch_scc1 L_{name}_nocpf
        s_cmp_ge_u32 s{sST}, 32
        s_cbranch_scc1 L_{name}_nocpf
        s_cmp_ge_u32 s{sW}, 4
        s_cbranch_scc1 L_{name}_nocpf
        s_getpc_b64 s[62:63]
        L_{name}_pc:
        s_sub_u32 s62, s62, L_{name}_pc-{sym or name}
        s_subb_u32 s63, s63, 0
        v_lshl_add_u32 v7, s{sW}, 6, v{vLane}
        v_lshlrev_b32 v7, 7, v7
        v_min_u32 v7, CODE_END-{sym or name}-4, v7
        v_mov_b32 v9, s63
        v_add_co_u32 v8, vcc, s62, v7
        s_nop 1
        v_addc_co_u32 v9, vcc, 0, v9, vcc
        global_load_dword v25, v[8:9], off
        L_{name}_nocpf:
        """)
    if E("TLBW", "0") == "1":
        a(f"""
        s_load_dwordx2 s[62:63], s[0:1], 48
        v_and_b32 v7, 15, v{vLane}
        v_lshlrev_b32 v7, 21, v7
        v_min_u32 v7, {WS_SIZE-4}, v7
        buffer_load_dword v25, v7, s[28:31], 0 offen
        s_waitcnt lgkmcnt(0)
        """)
        a(srd(20, "s62", "s63", S*D*2))
        a(f"""
        v_and_b32 v7, 1, v{vLane}
        v_lshlrev_b32 v7, 21, v7
        buffer_load_dword v26, v7, s[20:23], 0 offen
        """)
    if fused:
        a(f"""
        s_cmp_lg_u32 s{sST}, 39
        s_cbranch_scc1 L_{name}_noinit
        s_cmp_ge_u32 s{sW}, 2
        s_cbranch_scc1 L_{name}_init1
        v_lshlrev_b32 v7, 8, v0
        v_mov_b32 v8, 0
        s_mov_b32 s3, {FLG_OFF}
        buffer_store_dword v8, v7, s[28:31], s3 offen sc0 sc1
        s_waitcnt vmcnt(0)
        L_{name}_init1:
        s_barrier
        s_cmp_lg_u32 s{sW}, 0
        s_cbranch_scc1 L_{name}_noinit
        v_lshlrev_b32 v7, 2, v{vLane}
        v_mov_b32 v8, 1
        s_mov_b64 exec, 0xff
        buffer_atomic_add v8, v7, s[{DBG}:{DBG+3}], 0 offen sc1
        s_mov_b64 exec, -1
        L_{name}_noinit:
        """)
    a(f"""
    s_cmp_ge_u32 s{sST}, 32
    s_cbranch_scc1 L_{name}_relay
    """)
    a(srd(20, "s4", "s5", S*D*2))
    a(f"""
    s_lshl_b32 s{sT0}, s{sST}, 6
    s_lshl_b32 s{sT1}, s{sW}, 3
    s_add_u32 s{sT0}, s{sT0}, s{sT1}
    s_mul_i32 s{sXG}, s{sT0}, 1280
    s_add_u32 s{sWG}, s{sXG}, {4*1280}
    """)
    SPF = E("SPF", "1") == "1"
    def pf():
        if not SPF: return ""
        return "global_load_dword v24, v[20:21], off\nv_add_co_u32 v20, vcc, v22, v20\ns_nop 1\nv_addc_co_u32 v21, vcc, 0, v21, vcc\n"
    if SPF:
        a(f"""
        s_and_b32 s3, s{sST}, 3
        s_lshl_b32 s3, s3, 3
        s_add_u32 s3, s3, s{sW}
        s_cmp_ge_u32 s3, 16
        s_cbranch_scc1 L_{name}_pfw
        v_lshl_add_u32 v20, s3, 6, v{vLane}
        s_and_b32 s3, s2, 1
        s_lshl_b32 s3, s3, 10
        v_add_u32 v20, s3, v20
        v_mul_u32_u24 v20, 1280, v20
        v_add_u32 v20, {3*128}, v20
        v_mov_b32 v22, 128
        v_mov_b32 v18, s4
        v_mov_b32 v21, s5
        s_branch L_{name}_pfa
        L_{name}_pfw:
        s_sub_u32 s3, s3, 16
        s_min_u32 s3, s3, 13
        v_lshl_add_u32 v16, s3, 6, v{vLane}
        v_mul_u32_u24 v17, 4682, v16
        v_lshrrev_b32 v17, 16, v17
        v_mul_u32_u24 v18, 14, v17
        v_sub_u32 v16, v16, v18
        s_bfe_u32 s3, s2, 0x20001
        {"s_lshl_b32 s3, s3, 3" if E("REMAP", "0") == "1" else "s_mul_i32 s3, s3, 14"}
        {"s_lshr_b32 s3, 0x1c280e00, s3" if E("REMAP", "0") == "1" else ""}
        {"s_and_b32 s3, s3, 0xff" if E("REMAP", "0") == "1" else ""}
        v_add_u32 v16, s3, v16
        v_min_u32 v16, 53, v16
        v_lshlrev_b32 v16, 7, v16
        v_add_u32 v17, {3*64}, v17
        v_cmp_gt_u32 vcc, 3840, v16
        v_mul_u32_u24 v18, 3840, v17
        v_mul_u32_u24 v19, 3072, v17
        v_add_u32 v18, v18, v16
        v_add_u32 v19, v19, v16
        v_subrev_u32 v19, 3840, v19
        v_cndmask_b32 v20, v19, v18, vcc
        v_mov_b32 v18, s12
        v_mov_b32 v21, s13
        v_mov_b32 v16, s6
        v_mov_b32 v17, s7
        v_cndmask_b32 v18, v18, v16, vcc
        v_cndmask_b32 v21, v21, v17, vcc
        v_mov_b32 v22, {64*3072}
        v_mov_b32 v16, {64*3840}
        v_cndmask_b32 v22, v22, v16, vcc
        L_{name}_pfa:
        v_add_co_u32 v20, vcc, v18, v20
        s_nop 1
        v_addc_co_u32 v21, vcc, 0, v21, vcc
        """)
        a(pf() * int(E("NPF1", "1")))
    for g in range(2):
        for i in range(5):
            a(f"buffer_load_dwordx4 {vr(32+20*g+4*i,4)}, v6, s[20:23], s{sXG if g==0 else sWG} offen offset:{i*256}")
    EARLY = E("EARLY", "1") == "1"
    if EARLY:
        a(f"""
        s_cmp_lt_u32 s{sST}, 8
        s_cbranch_scc1 L_{name}_noearly
        v_lshlrev_b32 v2, 4, v{vLane}
        s_lshl_b32 s{sM0X}, s{sW}, 10
        s_sub_u32 s3, s{sST}, 8
        s_mul_i32 s{sWB}, s3, 81920
        """)
        a(srd(24, "s14", "s15", 1536*1280))
        for j in range(10):
            a(f"""
            s_add_u32 s3, s{sM0X}, {j*8192}
            s_mov_b32 m0, s3
            s_add_u32 s3, s3, s{sWB}
            buffer_load_dwordx4 v2, s[24:27], s3 offen lds
            """)
        a(f"""
        s_waitcnt vmcnt(10)
        s_branch L_{name}_early1
        L_{name}_noearly:
        s_waitcnt vmcnt(0)
        L_{name}_early1:
        """)
    for g in range(2):
        if not EARLY: a(f"s_waitcnt vmcnt({5 if g == 0 else 0})")
        su, sq = 8 + 4*g, 10 + 4*g
        a(f"v_mov_b32 v{su}, 0\nv_mov_b32 v{su+1}, 0\nv_mov_b32 v{sq}, 0\nv_mov_b32 v{sq+1}, 0")
        for r in range(20):
            x = 32 + 20*g + r; t = 16 + 2*(r & 1)
            a(f"v_lshlrev_b32 v{t}, 16, v{x}\nv_and_b32 v{t+1}, 0xffff0000, v{x}")
            a(f"v_pk_add_f32 {vr(su,2)}, {vr(su,2)}, {vr(t,2)}\nv_pk_fma_f32 {vr(sq,2)}, {vr(t,2)}, {vr(t,2)}, {vr(sq,2)}")
        a(f"v_add_f32 v{su}, v{su}, v{su+1}\nv_add_f32 v{sq}, v{sq}, v{sq+1}")
    for sh in (8, 4, 2, 1):
        a("s_nop 1")
        for r in (8, 10, 12, 14):
            a(f"v_add_f32_dpp v{r}, v{r}, v{r} row_ror:{sh} row_mask:0xf bank_mask:0xf")
    a(f"s_mov_b32 s{sT1}, {hexf(1.0/640)}")
    for g in range(2):
        su, sq = 8 + 4*g, 10 + 4*g
        a(f"""
        v_mul_f32 v{su}, s{sT1}, v{su}
        v_mul_f32 v{sq}, s{sT1}, v{sq}
        v_fma_f32 v{sq}, -v{su}, v{su}, v{sq}
        v_max_f32 v{sq}, 0, v{sq}
        v_add_f32 v{sq}, {hexf(1e-5)}, v{sq}
        v_rsq_f32 v{sq}, v{sq}
        s_nop 0
        v_mul_f32 v{su}, v{su}, v{sq}
        v_sub_f32 v{su}, 0, v{su}
        """)
    a(f"""
    v_lshlrev_b32 v7, 2, v4
    s_lshl_b32 s{sT0}, s{sT0}, 2
    s_add_u32 s{sT0}, s{sT0}, {STA_OFF}
    s_add_u32 s{sT1}, s{sT0}, 8192
    s_mov_b32 s60, 0x00010001
    s_mov_b32 s61, 0x00010001
    s_mov_b64 exec, s[60:61]
    buffer_store_dword v10, v7, s[28:31], s{sT0} offen sc0 sc1
    buffer_store_dword v8, v7, s[28:31], s{sT1} offen sc0 sc1
    buffer_store_dword v14, v7, s[28:31], s{sT0} offen offset:16 sc0 sc1
    buffer_store_dword v12, v7, s[28:31], s{sT1} offen offset:16 sc0 sc1
    s_mov_b64 exec, -1
    s_waitcnt vmcnt(0)
    s_barrier
    """)
    a(f"""
    s_cmp_lg_u32 s{sW}, 0
    s_cbranch_scc1 L_{name}_relay
    s_lshr_b32 s{sT0}, s{sST}, 2
    s_lshl_b32 s{sT0}, s{sT0}, 2
    v_mov_b32 v7, s{sT0}
    v_mov_b32 v8, 1
    s_mov_b64 exec, 1
    buffer_atomic_add v8, v7, s[{DBG}:{DBG+3}], 0 offen sc1
    s_mov_b64 exec, -1
    L_{name}_relay:
    """)
    if not fused:
        a(f"""
        s_cmp_lg_u32 s{sST}, 39
        s_cbranch_scc1 L_{name}_nz
        v_and_b32 v7, 63, v0
        v_lshlrev_b32 v7, 8, v7
        v_mov_b32 v8, 0
        s_mov_b32 s{sT0}, {FLG_OFF}
        buffer_store_dword v8, v7, s[28:31], s{sT0} offen
        L_{name}_nz:
        """)
    NP2 = (7 - int(E("NPF1", "1"))) if SPF else 0
    a(f"""
    s_cmp_ge_u32 s{sST}, 8
    s_cbranch_scc1 L_{name}_rjob
    """)
    a(pf() * NP2)
    a(f"""
    s_branch {("L_" + name + "_sdone") if fused else ("L_" + name + "_exit")}
    L_{name}_rjob:
    s_sub_u32 s{sST}, s{sST}, 8
    v_lshlrev_b32 v2, 4, v{vLane}
    v_lshrrev_b32 v10, 5, v{vLane}
    v_and_b32 v5, 15, v{vLane}
    v_lshrrev_b32 v6, 2, v5
    v_and_b32 v5, 3, v5
    v_lshlrev_b32 v5, 3, v5
    v_bfe_u32 v11, v{vLane}, 4, 1
    v_lshl_add_u32 v11, v11, 5, v5
    s_lshl_b32 s{sT1}, s{sW}, 10
    s_cmp_ge_u32 s{sST}, 24
    s_cbranch_scc1 L_{name}_rwo
    """)
    if not EARLY:
        a(srd(20, "s14", "s15", 1536*1280))
        a(f"s_mul_i32 s{sWG}, s{sST}, 81920")
        for j in range(10):
            a(f"""
            s_add_u32 s{sT0}, s{sT1}, {j*8192}
            s_mov_b32 m0, s{sT0}
            s_add_u32 s{sT0}, s{sT0}, s{sWG}
            buffer_load_dwordx4 v2, s[20:23], s{sT0} offen lds
            """)
    a(pf() * NP2)
    a(f"""
    v_lshl_add_u32 v4, v10, 2, v6
    v_mul_u32_u24 v4, 1280, v4
    v_add_u32 v4, v4, v11
    s_lshr_b32 s{sT0}, s{sW}, 1
    s_mul_i32 s{sT1}, s{sT0}, 20480
    s_and_b32 s{sFA}, s{sW}, 1
    s_mul_i32 s{sFA}, s{sFA}, 10
    s_lshl_b32 s{sLD}, s{sFA}, 6
    s_add_u32 s{sT1}, s{sT1}, s{sLD}
    v_add_u32 v4, s{sT1}, v4
    v_add_u32 v5, {8*1280}, v4
    s_lshl_b32 s3, s{sST}, 2
    s_add_u32 s3, s3, s{sT0}
    s_mul_i32 s3, s3, 20
    s_add_u32 s3, s3, s{sFA}
    s_lshl_b32 s3, s3, 10
    s_add_u32 s{sXG}, s3, {W2F_OFF}
    {"s_nop 0" if EARLY else "s_waitcnt vmcnt(" + str(NP2) + ")"}
    {"s_nop 0" if EARLY else "s_barrier"}
    """)
    for j in range(10):
        a(f"ds_read_b64_tr_b16 {vr(32+4*j,2)}, v4 offset:{j*64}\nds_read_b64_tr_b16 {vr(34+4*j,2)}, v5 offset:{j*64}")
    a("s_waitcnt lgkmcnt(0)")
    for j in range(10):
        a(f"buffer_store_dwordx4 {vr(32+4*j,4)}, v2, s[28:31], s{sXG} offen{ST}")
        if j < 9: a(f"s_add_u32 s{sXG}, s{sXG}, 1024")
    a(f"s_branch {DONE}")
    a(f"L_{name}_rwo:")
    a(srd(20, "s8", "s9", 640*1280))
    a(f"s_sub_u32 s{sST}, s{sST}, 24\ns_mul_i32 s{sWG}, s{sST}, 102400")
    for j in range(13):
        if j == 12:
            a(f"s_cmp_ge_u32 s{sW}, 4\ns_cbranch_scc1 L_{name}_rwo1")
        a(f"""
        s_add_u32 s{sT0}, s{sT1}, {j*8192}
        s_mov_b32 m0, s{sT0}
        s_add_u32 s{sT0}, s{sT0}, s{sWG}
        buffer_load_dwordx4 v2, s[20:23], s{sT0} offen lds
        """)
    a(f"L_{name}_rwo1:")
    base0 = [0, 8, 20, 28, 16]; base1 = [4, 12, 24, 32, 36]
    a("s_waitcnt vmcnt(0)\ns_barrier")
    a(f"s_mov_b32 s{sDX}, 0")
    a(f"""
    L_{name}_rwl:
    s_lshl_b32 s{sT0}, s{sDX}, 3
    s_add_u32 s{sT0}, s{sT0}, s{sW}
    s_cmp_ge_u32 s{sT0}, 100
    s_cbranch_scc1 {DONE}
    s_mul_i32 s{sT1}, s{sT0}, 3277
    s_lshr_b32 s{sT1}, s{sT1}, 16
    s_mul_i32 s3, s{sT1}, 20
    s_sub_u32 s3, s{sT0}, s3
    s_mul_i32 s{sXG}, s{sST}, 100
    s_add_u32 s{sXG}, s{sXG}, s{sT0}
    s_lshl_b32 s{sXG}, s{sXG}, 10
    s_add_u32 s{sXG}, s{sXG}, {WOF_OFF}
    s_lshl_b32 s3, s3, 6
    s_lshl_b32 s{sT1}, s{sT1}, 1
    v_add_u32 v7, s{sT1}, v10
    v_mul_u32_u24 v8, 52429, v7
    v_lshrrev_b32 v8, 18, v8
    v_mul_u32_u24 v9, 5, v8
    v_sub_u32 v9, v7, v9
    v_mul_u32_u24 v8, 40, v8
    v_lshlrev_b32 v12, 3, v9
    v_cmp_lt_u32 vcc, 1, v9
    v_add_u32 v13, 4, v12
    s_nop 0
    v_cndmask_b32 v12, v12, v13, vcc
    v_cmp_eq_u32 vcc, 4, v9
    v_add_u32 v13, 4, v12
    v_mov_b32 v14, 36
    v_cndmask_b32 v12, v12, 16, vcc
    v_cndmask_b32 v13, v13, v14, vcc
    v_add3_u32 v12, v12, v8, v6
    v_add3_u32 v13, v13, v8, v6
    v_mul_u32_u24 v12, 1280, v12
    v_mul_u32_u24 v13, 1280, v13
    v_add3_u32 v12, v12, v11, s3
    v_add3_u32 v13, v13, v11, s3
    ds_read_b64_tr_b16 v[32:33], v12
    ds_read_b64_tr_b16 v[34:35], v13
    s_add_u32 s{sDX}, s{sDX}, 1
    s_waitcnt lgkmcnt(0)
    buffer_store_dwordx4 v[32:35], v2, s[28:31], s{sXG} offen{ST}
    s_nop 1
    s_branch L_{name}_rwl
    """)
    if fused:
        a(f"""
        L_{name}_sdone:
        s_mov_b32 s{sKS}, 0
        s_branch L_{name}_spoll
        {DONE}:
        s_mov_b32 s{sKS}, 1
        L_{name}_spoll:
        s_waitcnt vmcnt(0)
        s_barrier
        s_cmp_lg_u32 s{sW}, 0
        s_cbranch_scc1 L_{name}_sbar
        v_mov_b32 v7, 0
        s_mov_b32 s{sT1}, 0
        L_{name}_ipoll:
        buffer_load_dword v8, v7, s[{DBG}:{DBG+3}], 0 offen sc1
        s_add_u32 s{sT1}, s{sT1}, 1
        s_waitcnt vmcnt(0)
        v_readfirstlane_b32 s{sT0}, v8
        s_cmp_ge_u32 s{sT0}, {NSTAT}
        s_cbranch_scc1 L_{name}_igot
        s_cmp_ge_u32 s{sT1}, 0x40000
        s_cbranch_scc1 L_{name}_igot
        s_sleep 8
        s_branch L_{name}_ipoll
        L_{name}_igot:
        s_cmp_eq_u32 s{sKS}, 0
        s_cbranch_scc1 L_{name}_sbar
        v_lshlrev_b32 v7, 8, v{vLane}
        v_mov_b32 v8, 1
        s_mov_b32 s3, {FLG_OFF + 88*256}
        s_mov_b64 exec, 0xff
        buffer_atomic_add v8, v7, s[28:31], s3 offen sc1
        s_mov_b64 exec, -1
        L_{name}_sbar:
        s_barrier
        s_branch {fused}
        """)
    a(f"L_{name}_end:")
    if DIAG:
        a(stamp(4)); a("s_waitcnt vmcnt(0)"); a(stamp(5)); a(stamp_flush(0, 8, 28))
    if fused:
        a(f"""
        s_waitcnt vmcnt(0)
        s_barrier
        s_cmp_lg_u32 s{sW}, 0
        s_cbranch_scc1 {fused}
        s_add_u32 s{sT0}, s{sCT}, 64
        s_add_u32 s{sT1}, s{sTB}, 80
        s_cmp_ge_u32 s{sCT}, 15
        s_cselect_b32 s{sT0}, s{sT1}, s{sT0}
        s_lshl_b32 s{sT0}, s{sT0}, 8
        s_add_u32 s{sT0}, s{sT0}, {FLG_OFF}
        v_mov_b32 v7, 0
        v_mov_b32 v8, 1
        s_mov_b64 exec, 1
        buffer_atomic_add v8, v7, s[28:31], s{sT0} offen sc1
        s_mov_b64 exec, -1
        s_branch {fused}
        """)
    a(f"L_{name}_exit:\ns_endpgm")
    if not fused: a(kernel_desc(name, 200))
    return a.text()
```

```python
from common import *
from ffn_parts import *
SLOT = 22528
ONES = 3*SLOT
PART = ONES + 10240
K2_LDS = PART + 4*PBUF
ST = " sc0 sc1" if E("WT", "0") == "1" else ""
def k2(name, fused=None):
    a = Asm()
    SC = " sc1" if fused else ""
    if fused: a(f"{fused}:\ns_waitcnt vmcnt(0)")
    else: a(kernel_head(name))
    sW, sHead, sT, sF, sC, sT0, sT1, sSlot, sCQ, sOdd = 32, 33, 34, 35, 36, 37, 38, 39, 44, 45
    sMaskV = 40
    sOk = 42
    sKG, sK2G, sVG, sA, sB, sBW, sTF, sFQ, sPass = 46, 47, 48, 49, 50, 51, 52, 53, 54
    vLane, vL16 = 1, 2
    if not fused:
        a(f"""
        s_cmp_ge_u32 s2, 256
        s_cbranch_scc1 L_{name}_exit
        """)
    a(stamp(0))
    a(f"""
    s_load_dwordx2 s[4:5], s[0:1], 64
    s_load_dwordx2 s[6:7], s[0:1], 0
    s_load_dwordx4 s[12:15], s[0:1], 48
    v_lshrrev_b32 v2, 6, v0
    v_and_b32 v{vLane}, 63, v0
    v_readfirstlane_b32 s{sW}, v2
    s_and_b32 s{sT0}, s2, 7
    s_lshr_b32 s{sT1}, s2, 3
    s_lshl_b32 s{sHead}, s{sT0}, 2
    s_and_b32 s3, s{sT1}, 3
    s_add_u32 s{sHead}, s{sHead}, s3
    s_mul_i32 s{sF}, s{sHead}, 5
    s_add_u32 s{sF}, s{sF}, 1
    s_lshr_b32 s{sF}, s{sF}, 1
    s_and_b32 s{sOdd}, s{sHead}, 1
    s_cmp_eq_u32 s{sOdd}, 0
    s_cselect_b32 s3, 2, -1
    s_add_u32 s{sCQ}, s{sF}, s3
    s_lshl_b32 s{sF}, s{sF}, 9
    s_lshl_b32 s{sCQ}, s{sCQ}, 9
    s_lshl_b32 s{sOdd}, s{sOdd}, 3
    v_lshlrev_b32 v{vL16}, 4, v{vLane}
    v_and_b32 v3, 31, v{vLane}
    v_lshrrev_b32 v11, 5, v{vLane}
    s_cmp_ge_u32 s{sW}, 4
    s_cbranch_scc1 L_{name}_bg
    """)
    vK1, vK2, vV, vM01 = 4, 5, 6, 7
    Q1 = [12, 16]; Q2 = [20, 22]
    K1 = [24, 28]; K2 = [32, 34]; V1 = [36, 40]; V2 = [44, 48]; P1, P2 = 52, 56
    SS = [64, 80]; O = [96, 112]; CM = [128, 144]
    a(f"""
    s_lshr_b32 s{sT}, s{sT1}, 2
    s_lshl_b32 s{sT}, s{sT}, 3
    s_lshl_b32 s3, s{sW}, 1
    s_add_u32 s{sT}, s{sT}, s3
    v_lshlrev_b32 v{vK2}, 4, v3
    v_lshl_add_u32 v{vK1}, v11, 9, v{vK2}
    v_add_u32 v{vK2}, s{sOdd}, v{vK2}
    s_mul_i32 s3, s{sT}, 40960
    s_add_u32 s{sT0}, s3, s{sF}
    s_add_u32 s{sT1}, s3, s{sCQ}
    v_mov_b32 v{Q2[0]}, 0
    v_mov_b32 v{Q2[0]+1}, 0
    v_mov_b32 v{Q2[1]}, 0
    v_mov_b32 v{Q2[1]+1}, 0
    s_waitcnt lgkmcnt(0)
    """)
    a(srd(8, "s4", "s5", WS_SIZE))
    a(f"""
    s_add_u32 s{sA}, s{sT0}, 40960
    s_add_u32 s{sB}, s{sT1}, 40960
    {"s_barrier" if fused else ""}
    buffer_load_dwordx4 {vr(Q1[0],4)}, v{vK1}, s[8:11], s{sT0} offen{SC}
    buffer_load_dwordx4 {vr(Q1[1],4)}, v{vK1}, s[8:11], s{sA} offen{SC}
    s_mov_b64 exec, 0xffffffff
    buffer_load_dwordx2 {vr(Q2[0],2)}, v{vK2}, s[8:11], s{sT1} offen{SC}
    buffer_load_dwordx2 {vr(Q2[1],2)}, v{vK2}, s[8:11], s{sB} offen{SC}
    s_mov_b64 exec, -1
    s_setprio {E('APRIO', '2')}
    s_mov_b32 s{sMaskV}, 0x000fffff
    s_mov_b32 s{sMaskV+1}, 0x000fffff
    v_mul_u32_u24 v{vV}, 320, v11
    v_lshl_add_u32 v{vV}, v3, 4, v{vV}
    v_cmp_eq_u32 vcc, 20, v3
    v_mov_b32 v11, {ONES-12288+(0 if E('ONESALL') else 16)}
    v_mov_b32 v8, {ONES-12288}
    v_cndmask_b32 v11, v11, v8, vcc
    v_cmp_gt_u32 vcc, 20, v3
    v_mov_b32 v{vM01}, 0
    s_nop 0
    v_cndmask_b32 v{vV}, v11, v{vV}, vcc
    v_cndmask_b32 v{vM01}, v{vM01}, 1, vcc
    """)
    for r in range(4): a(f"v_mov_b32 v{V2[1]+r}, 0\nv_mov_b32 v{P2+r}, 0")
    for q in range(2):
        for r in range(16): a(f"v_mov_b32 v{O[q]+r}, 0")
    a(f"""
    s_mov_b32 s{sC}, 0
    s_mov_b32 s{sSlot}, 0
    s_waitcnt vmcnt(0)
    s_barrier
    """)
    a(stamp(1))
    def rd_k1(p, j): return f"ds_read_b128 {vr(K1[p],4)}, v{vK1} offset:{j*1024}\n"
    def rd_k2(p, j): return f"ds_read_b64 {vr(K2[p],2)}, v{vK2} offset:{8192+j*512}\n"
    def rd_v1(p, j): return f"ds_read_b128 {vr(V1[p],4)}, v{vV} offset:{12288+j*1280}\n"
    def rd_v2(p, j): return f"ds_read_b128 {vr(V2[p],4)}, v{vV} offset:{12288+j*1280+640}\n"
    a(rd_k1(0,0) + rd_k2(0,0) + rd_v1(0,0) + rd_v2(0,0))
    a("s_waitcnt lgkmcnt(2)")
    for q in range(2): a(mfma(SS[q], K1[0], Q1[q], "0"))
    for q in range(2): a(mfma8(SS[q], K2[0], Q2[q]))
    a("s_nop 10")
    for q in range(2):
        S0 = SS[q]; t = 3 if q == 0 else 11
        a(f"v_max3_f32 v{t}, v{S0}, v{S0+1}, v{S0+2}")
        for r in range(3, 15, 2): a(f"v_max3_f32 v{t}, v{t}, v{S0+r}, v{S0+r+1}")
        a(f"v_max_f32 v{t}, v{t}, v{S0+15}")
    a(f"""
    v_mov_b32 v{P1}, v3
    v_mov_b32 v{P1+1}, v11
    s_nop 1
    v_permlane32_swap_b32 v3, v{P1}
    v_permlane32_swap_b32 v11, v{P1+1}
    v_max_f32 v3, v3, v{P1}
    v_max_f32 v11, v11, v{P1+1}
    """)
    for r in range(16): a(f"v_sub_f32 v{CM[0]+r}, 0, v3")
    for r in range(16): a(f"v_sub_f32 v{CM[1]+r}, 0, v11")
    a("s_waitcnt lgkmcnt(0)\ns_nop 0")
    a(mfma(SS[0], K1[0], Q1[0], CM[0])); a(mfma8(SS[0], K2[0], Q2[0]))
    a("s_nop 11")
    a(stamp(2))
    if E("CHUNKST"): a(f"v_mov_b32 v250, 0\nv_lshlrev_b32 v249, 2, v{vLane}")
    L = f"L_{name}_loop"
    if E("INSTREAM"): a(f"s_mov_b32 s{sT1}, {HF_OFF}")
    al = E("ALIGN", "0")
    if al != "0": a(".p2align 6")
    if al == "3": a("s_nop 0")
    a(f"{L}:")
    if E("CHUNKST"): a(f"s_memtime s[84:85]\ns_waitcnt lgkmcnt(0)\ns_mov_b32 m0, s{sC}\ns_nop 0\nv_writelane_b32 v250, s84, m0")
    for n in range(16):
        j, q = n >> 1, n & 1
        p, pn = j & 1, (j + 1) & 1
        Sc, qn = SS[q], 1 - q
        Sn = SS[qn]
        def e(r): return f"v_exp_f32 v{Sc+r}, v{Sc+r}\n"
        def c(P, i, r): return f"v_cvt_pk_bf16_f32 v{P+i}, v{Sc+r}, v{Sc+r+1}\n"
        nx = (j + 1) & 7
        if q == 1: a("s_waitcnt lgkmcnt(0)" + ("\ns_nop 0" if E("ALIGN") == "2" else ""))
        kq = p if q == 0 else pn
        INS = E("INSTREAM")
        def rds():
            if q != 0: return ""
            t = ""
            if j == 7:
                t += f"""
                s_barrier
                s_cmp_eq_u32 s{sSlot}, 2
                s_cselect_b32 s{sT0}, {(-2*SLOT) & 0xffffffff}, {SLOT}
                s_cselect_b32 s{sSlot}, -1, s{sSlot}
                s_add_u32 s{sSlot}, s{sSlot}, 1
                v_add_u32 v{vK1}, s{sT0}, v{vK1}
                v_add_u32 v{vK2}, s{sT0}, v{vK2}
                v_mad_i32_i24 v{vV}, v{vM01}, s{sT0}, v{vV}
                """
            return t + rd_k1(pn, nx) + rd_k2(pn, nx) + rd_v1(pn, nx) + rd_v2(pn, nx)
        if INS and n < 15:
            FA, FF_ = 160, 240
            f = n % 5
            a(mfma(Sn, K1[kq], Q1[qn], CM[qn]))
            a(e(0)+e(1)+e(2)+e(3))
            a(mfma(O[qn], V2[pn if q == 0 else p], P2))
            a(rds())
            a(e(4)+e(5)+e(6)+c(P1,0,0)+c(P1,1,2))
            a(mfma8(Sn, K2[kq], Q2[qn]))
            a(e(7)+e(8)+e(9)+c(P1,2,4)+c(P1,3,6))
            if f == 0 and INS != "2": a("s_waitcnt vmcnt(0)")
            a(mfma(FA + 16*f, FF_, FF_ + 4))
            if f == 0 and INS != "2":
                for k in range(6): a(f"buffer_load_dwordx4 {vr(248, 4)}, v{vL16}, s[8:11], s{sT1} offen offset:{(k%4)*1024}")
            a(e(10)+e(11)+e(12)+c(P2,0,8)+c(P2,1,10))
            a(mfma(O[q], V1[p], P1))
            a(e(13)+e(14)+e(15)+c(P2,2,12)+c(P2,3,14))
        else:
            a(mfma(Sn, K1[kq], Q1[qn], "0" if E("NOCM") else CM[qn]))
            a(e(0)+e(1)+e(2)+e(3)+c(P1,0,0)+c(P1,1,2))
            a(mfma(O[qn], V2[pn if q == 0 else p], P2))
            a(rds())
            a(e(4)+e(5)+e(6)+e(7)+c(P1,2,4)+c(P1,3,6))
            a(mfma8(Sn, K2[kq], Q2[qn]))
            a(e(8)+e(9)+e(10)+e(11)+c(P2,0,8)+c(P2,1,10))
            a(mfma(O[q], V1[p], P1))
            a(e(12)+e(13)+e(14)+e(15)+c(P2,2,12)+c(P2,3,14))
    a(f"""
    s_add_u32 s{sC}, s{sC}, 1
    s_cmp_lt_u32 s{sC}, 8
    s_cbranch_scc1 {L}
    s_nop 0
    """)
    a(mfma(O[1], V2[1], P2))
    if E("CHUNKST"):
        a(f"""
        s_memtime s[84:85]
        s_waitcnt lgkmcnt(0)
        v_writelane_b32 v250, s84, 8
        s_lshl_b32 s3, s2, 2
        s_add_u32 s3, s3, s{sW}
        s_lshl_b32 s3, s3, 8
        s_add_u32 s3, s3, {DIAG_OFF + 0xC0000}
        s_mov_b32 s10, 0x3000000
        s_mov_b64 exec, 0xffff
        buffer_store_dword v250, v2, s[8:11], s3 offen
        s_mov_b64 exec, -1
        """)
    a(stamp(3))
    a(f"""
    s_mov_b32 s{sPass}, 0
    s_lshr_b32 s{sA}, s{sHead}, 1
    s_mul_i32 s{sA}, s{sA}, 5
    s_mul_i32 s3, s{sT}, 80
    s_add_u32 s{sA}, s{sA}, s3
    s_lshl_b32 s{sA}, s{sA}, 9
    s_add_u32 s{sA}, s{sA}, {OF_OFF}
    s_add_u32 s{sB}, s{sA}, s{sOdd}
    s_lshl_b32 s3, s{sOdd}, 7
    s_add_u32 s{sA}, s{sA}, s3
    v_and_b32 v9, 31, v{vLane}
    v_lshrrev_b32 v8, 5, v{vLane}
    v_lshlrev_b32 v9, 4, v9
    v_lshl_add_u32 v8, v8, 9, v9
    s_waitcnt lgkmcnt(0)
    """)
    O0 = O[0]
    a(f"""
    L_{name}_norm:
    v_mov_b32 v3, v{O0+8}
    v_mov_b32 v11, v{O0+8}
    s_mov_b32 s{sT0}, {hexf(2.0**-40)}
    s_mov_b32 s{sT1}, {hexf(2.0**60)}
    v_permlane32_swap_b32 v3, v11
    v_pk_add_f32 v[60:61], {vr(O0,2)}, {vr(O0+2,2)}
    v_rcp_f32 v10, v11
    v_pk_add_f32 v[62:63], {vr(O0+4,2)}, {vr(O0+6,2)}
    v_med3_f32 v3, v11, s{sT0}, v11
    v_pk_add_f32 v[60:61], v[60:61], {vr(O0+8,2)}
    v_pk_add_f32 v[62:63], v[62:63], {vr(O0+10,2)}
    v_min_f32 v3, s{sT1}, v11
    v_max_f32 v3, s{sT0}, v3
    v_pk_add_f32 v[60:61], v[60:61], v[62:63]
    v_cmp_eq_f32 s[{sOk}:{sOk+1}], v3, v11
    v_add_f32 v60, v60, v61
    s_movk_i32 s3, 0x1f8
    v_cmp_class_f32 vcc, v60, s3
    s_and_b64 s[{sOk}:{sOk+1}], s[{sOk}:{sOk+1}], vcc
    s_cmp_eq_u64 s[{sOk}:{sOk+1}], -1
    {"s_nop 0" if E("NOSLOW") else "s_cbranch_scc0 L_"+name+"_slow"}
    L_{name}_fin:
    """)
    for p in range(6): a(f"v_pk_mul_f32 {vr(O0+2*p,2)}, {vr(O0+2*p,2)}, v[10:11] op_sel_hi:[1,0]")
    for p in range(6): a(f"v_cvt_pk_bf16_f32 v{O0+p}, v{O0+2*p}, v{O0+2*p+1}")
    a(f"""
    s_nop 0
    v_permlane32_swap_b32 v{O0}, v{O0+2}
    v_permlane32_swap_b32 v{O0+1}, v{O0+3}
    buffer_store_dwordx4 {vr(O0,4)}, v8, s[8:11], s{sA} offen sc0 sc1
    s_mov_b64 exec, 0xffffffff
    buffer_store_dwordx2 {vr(O0+4,2)}, v9, s[8:11], s{sB} offen offset:2048 sc0 sc1
    s_mov_b64 exec, -1
    s_cmp_lg_u32 s{sPass}, 0
    s_cbranch_scc1 L_{name}_aend
    s_mov_b32 s{sPass}, 1
    s_add_u32 s{sA}, s{sA}, 40960
    s_add_u32 s{sB}, s{sB}, 40960
    """)
    for r in range(12): a(f"v_mov_b32 v{O[0]+r}, v{O[1]+r}")
    for r in range(4): a(f"v_mov_b32 v{Q1[0]+r}, v{Q1[1]+r}")
    for r in range(2): a(f"v_mov_b32 v{Q2[0]+r}, v{Q2[1]+r}")
    a(f"s_branch L_{name}_norm")
    a(f"L_{name}_aend:")
    if DIAG: a(stamp(4))
    a(f"""
    s_lshl_b32 s{sT0}, s{sT}, 8
    s_add_u32 s{sT0}, s{sT0}, {FLG_OFF}
    s_add_u32 s{sT1}, s{sT0}, 256
    v_mov_b32 v8, 0
    v_mov_b32 v9, 1
    s_waitcnt vmcnt(0)
    s_mov_b64 exec, 1
    buffer_atomic_add v9, v8, s[8:11], s{sT0} offen sc1
    buffer_atomic_add v9, v8, s[8:11], s{sT1} offen sc1
    s_mov_b64 exec, -1
    """)
    if DIAG:
        a(stamp(5)); a(stamp_flush(1, 6, 8))
    a("s_endpgm")
    vM, vAl, vTm = 128, 129, 130
    a(f"""
    L_{name}_slow:
    v_and_b32 v10, 31, v{vLane}
    v_lshrrev_b32 v11, 5, v{vLane}
    v_lshlrev_b32 v{vK2}, 4, v10
    v_lshl_add_u32 v{vK1}, v11, 9, v{vK2}
    v_add_u32 v{vK2}, s{sOdd}, v{vK2}
    v_mul_u32_u24 v{vV}, 320, v11
    v_lshl_add_u32 v{vV}, v10, 4, v{vV}
    v_mov_b32 v{vM}, 0xff800000
    v_mov_b32 v3, 0x3f803f80
    """)
    for r in range(4): a(f"v_mov_b32 v{V1[0]+r}, v3\nv_mov_b32 v{V2[0]+r}, v3")
    for r in range(16): a(f"v_mov_b32 v{O0+r}, 0")
    S0 = SS[0]
    a(f"""
    s_mov_b32 s{sC}, 0
    s_add_u32 s{sKG}, s{sF}, {KF_OFF}
    s_add_u32 s{sK2G}, s{sCQ}, {KF_OFF}
    s_mul_i32 s{sVG}, s{sHead}, {128*640}
    s_add_u32 s{sVG}, s{sVG}, {VF_OFF}
    L_{name}_sl:
    buffer_load_dwordx4 {vr(K1[0],4)}, v{vK1}, s[8:11], s{sKG} offen{SC}
    buffer_load_dwordx2 {vr(K2[0],2)}, v{vK2}, s[8:11], s{sK2G} offen{SC}
    s_mov_b64 exec, s[{sMaskV}:{sMaskV+1}]
    buffer_load_dwordx4 {vr(V1[0],4)}, v{vV}, s[8:11], s{sVG} offen{SC}
    buffer_load_dwordx4 {vr(V2[0],4)}, v{vV}, s[8:11], s{sVG} offen offset:640{SC}
    s_mov_b64 exec, -1
    s_waitcnt vmcnt(2)
    """)
    a(mfma(S0, K1[0], Q1[0], "0")); a(mfma8(S0, K2[0], Q2[0]))
    a("s_nop 11")
    a(f"v_max3_f32 v{vTm}, v{S0}, v{S0+1}, v{S0+2}")
    for r in range(3, 15, 2): a(f"v_max3_f32 v{vTm}, v{vTm}, v{S0+r}, v{S0+r+1}")
    a(f"""
    v_max3_f32 v{vTm}, v{vTm}, v{S0+15}, v{vM}
    v_mov_b32 v3, v{vTm}
    s_nop 1
    v_permlane32_swap_b32 v{vTm}, v3
    v_max_f32 v{vTm}, v{vTm}, v3
    v_sub_f32 v{vAl}, v{vM}, v{vTm}
    v_exp_f32 v{vAl}, v{vAl}
    v_mov_b32 v{vM}, v{vTm}
    """)
    for r in range(16): a(f"v_sub_f32 v{S0+r}, v{S0+r}, v{vM}")
    for r in range(16): a(f"v_exp_f32 v{S0+r}, v{S0+r}")
    for r in range(16): a(f"v_mul_f32 v{O0+r}, v{O0+r}, v{vAl}")
    for i in range(4): a(f"v_cvt_pk_bf16_f32 v{P1+i}, v{S0+2*i}, v{S0+2*i+1}")
    for i in range(4): a(f"v_cvt_pk_bf16_f32 v{P2+i}, v{S0+8+2*i}, v{S0+8+2*i+1}")
    a("s_waitcnt vmcnt(0)\ns_nop 0")
    a(mfma(O0, V1[0], P1)); a(mfma(O0, V2[0], P2))
    a(f"""
    s_add_u32 s{sKG}, s{sKG}, 40960
    s_add_u32 s{sK2G}, s{sK2G}, 40960
    s_add_u32 s{sVG}, s{sVG}, 1280
    s_add_u32 s{sC}, s{sC}, 1
    s_cmp_lt_u32 s{sC}, 64
    s_nop 6
    s_cbranch_scc1 L_{name}_sl
    s_nop 3
    v_mov_b32 v3, v{O0+8}
    v_mov_b32 v11, v{O0+8}
    s_nop 1
    v_permlane32_swap_b32 v3, v11
    v_rcp_f32 v10, v11
    s_nop 0
    s_branch L_{name}_fin
    """)
    vK2D, vL16b = 3, 19
    ACC = [96 + 16*f for f in range(5)]
    FR = lambda b: 24 + 24*b
    a(f"""
    L_{name}_bg:
    s_setprio {E("BPRIO", "0")}
    s_sub_u32 s{sBW}, s{sW}, 4
    v_mul_u32_u24 v{vK2D}, 40960, v11
    v_and_b32 v4, 31, v{vLane}
    v_lshl_add_u32 v{vK2D}, v4, 4, v{vK2D}
    v_add_u32 v{vL16b}, 4096, v{vL16}
    s_mul_i32 s3, s{sBW}, {2*40960}
    s_add_u32 s3, s3, {KF_OFF}
    s_add_u32 s{sKG}, s3, s{sF}
    s_add_u32 s{sK2G}, s3, s{sCQ}
    s_mul_i32 s{sVG}, s{sHead}, {128*640}
    s_mul_i32 s3, s{sBW}, 2560
    s_add_u32 s{sVG}, s{sVG}, s3
    s_add_u32 s{sVG}, s{sVG}, {VF_OFF}
    s_and_b32 s{sFQ}, s2, 1
    s_lshl_b32 s{sFQ}, s{sFQ}, 1
    s_and_b32 s3, s{sT1}, 1
    s_add_u32 s{sFQ}, s{sFQ}, s3
    s_bfe_u32 s{sTF}, s2, 0x20001
    s_lshl_b32 s{sTF}, s{sTF}, 4
    s_lshr_b32 s3, s{sT1}, 1
    s_add_u32 s{sTF}, s{sTF}, s3
    s_waitcnt lgkmcnt(0)
    """)
    a(srd(8, "s4", "s5", WS_SIZE))
    def gate(label, setup, sleep):
        return setup + f"""
        s_mov_b32 s{sT1}, 0
        s_mov_b32 s{sT0}, {FLG_OFF}
        {label}:
        buffer_load_dword v9, v8, s[8:11], s{sT0} offen sc1
        s_add_u32 s{sT1}, s{sT1}, 1
        s_waitcnt vmcnt(0)
        v_cmp_ge_u32 vcc, v9, v10
        s_cmp_eq_u64 vcc, -1
        s_cbranch_scc1 {label}_ok
        s_cmp_ge_u32 s{sT1}, 0x40000
        s_cbranch_scc1 {label}_ok
        s_sleep {sleep}
        s_branch {label}
        {label}_ok:
        """
    if fused:
        a(f"s_cmp_lg_u32 s{sBW}, 0\ns_cbranch_scc1 L_{name}_gA")
        a(gate(f"L_{name}_pA", f"""
        s_lshr_b32 s{sT0}, s{sF}, 9
        s_lshr_b32 s{sT1}, s{sCQ}, 9
        s_min_u32 s3, s{sT0}, s{sT1}
        s_lshr_b32 s3, s3, 4
        s_add_u32 s{sT0}, s{sT0}, 1
        s_max_u32 s{sT0}, s{sT0}, s{sT1}
        s_lshr_b32 s{sT0}, s{sT0}, 4
        s_add_u32 s3, s3, 64
        s_add_u32 s{sT0}, s{sT0}, 64
        v_mov_b32 v8, s3
        v_writelane_b32 v8, s{sT0}, 1
        s_add_u32 s3, s3, 5
        s_add_u32 s{sT0}, s{sT0}, 5
        v_writelane_b32 v8, s3, 2
        v_writelane_b32 v8, s{sT0}, 3
        s_mul_i32 s3, s{sHead}, 20
        s_add_u32 s{sT0}, s3, 19
        s_lshr_b32 s3, s3, 7
        s_lshr_b32 s{sT0}, s{sT0}, 7
        s_add_u32 s3, s3, 74
        s_add_u32 s{sT0}, s{sT0}, 74
        v_writelane_b32 v8, s3, 4
        v_writelane_b32 v8, s{sT0}, 5
        v_mov_b32 v10, 8
        v_lshlrev_b32 v8, 8, v8
        """, 2))
        a(f"L_{name}_gA:\ns_barrier")
    vq = VmQ()
    def dma(c):
        sl = (c % 3) * SLOT
        t = f"""
        s_lshl_b32 s{sT0}, s{sBW}, 11
        s_add_u32 m0, s{sT0}, {sl}
        s_add_u32 s{sT1}, s{sKG}, 40960
        buffer_load_dwordx4 v{vL16}, s[8:11], s{sKG} offen{SC} lds
        s_add_u32 m0, s{sT0}, {sl+1024}
        s_lshl_b32 s{sT0}, s{sBW}, 10
        buffer_load_dwordx4 v{vL16}, s[8:11], s{sT1} offen{SC} lds
        s_add_u32 m0, s{sT0}, {sl+8192}
        s_mul_i32 s{sT0}, s{sBW}, 2560
        buffer_load_dwordx4 v{vK2D}, s[8:11], s{sK2G} offen{SC} lds
        s_add_u32 m0, s{sT0}, {sl+12288}
        s_add_u32 s{sT1}, s{sVG}, 1024
        buffer_load_dwordx4 v{vL16}, s[8:11], s{sVG} offen{SC} lds
        s_add_u32 m0, s{sT0}, {sl+12288+1024}
        s_add_u32 s{sKG}, s{sKG}, {8*40960}
        buffer_load_dwordx4 v{vL16}, s[8:11], s{sT1} offen{SC} lds
        s_add_u32 m0, s{sT0}, {sl+12288+2048}
        s_add_u32 s{sT1}, s{sVG}, 2048
        s_mov_b64 exec, 0xffffffff
        buffer_load_dwordx4 v{vL16}, s[8:11], s{sT1} offen{SC} lds
        s_mov_b64 exec, -1
        s_add_u32 s{sK2G}, s{sK2G}, {8*40960}
        s_add_u32 s{sVG}, s{sVG}, 10240
        """
        vq.issue(f"D{c}", 6)
        return t
    WP, AO, A4, GF, X = 24, 184, 200, 216, 236
    vOq = 4
    OL, X4L, W4L = 40960, 81920, 0
    sXO, sX4 = 55, 56
    a(dma(0))
    a(f"""
    s_mul_i32 s{sA}, s{sTF}, 96
    s_mul_i32 s3, s{sBW}, 24
    s_add_u32 s{sA}, s{sA}, s3
    s_lshl_b32 s{sA}, s{sA}, 10
    s_add_u32 s{sA}, s{sA}, {HF_OFF}
    s_mul_i32 s{sB}, s3, 20
    s_mul_i32 s3, s{sFQ}, 5
    s_add_u32 s{sB}, s{sB}, s3
    s_lshl_b32 s{sB}, s{sB}, 10
    s_add_u32 s{sB}, s{sB}, {W2F_OFF}
    v_lshrrev_b32 v4, 2, v{vLane}
    v_mul_u32_u24 v4, 640, v4
    v_and_b32 v5, 3, v{vLane}
    v_lshl_add_u32 v4, v5, 2, v4
    v_add_u32 v4, {ONES}, v4
    v_mov_b32 v5, 0x3f803f80
    v_mov_b32 v6, 0
    ds_write_b32 v4, v5
    ds_write_b32 v4, v6 offset:16
    """)
    a(dma(1)); a(dma(2))
    def ld(s):
        vq.issue(f"L{s}", 6)
        return gemm_loads(FR(s % 3), vL16, vL16b, 8, sA, sB, SC)
    a(vq.wait("D0")); a("s_waitcnt lgkmcnt(0)\ns_barrier")
    if fused:
        a(gate(f"L_{name}_pB", f"""
        s_lshr_b32 s3, s{sTF}, 3
        s_add_u32 s3, s3, 80
        s_and_b32 s{sT0}, s2, 7
        s_add_u32 s{sT0}, s{sT0}, 88
        v_mov_b32 v8, s3
        v_writelane_b32 v8, s{sT0}, 1
        v_mov_b32 v10, 12
        v_writelane_b32 v10, 32, 1
        v_lshlrev_b32 v8, 8, v8
        """, 4))
        vq.q = []
    if not E("NOFFN"):
        for s in range(3): a(ld(s))
    s = 0
    for c in range(8):
        FS = [int(x) for x in E("FSCHED", "3,4,4,4,4,5").split(",")]
        PWC = len(FS)
        assert sum(FS) == 24 and len(FS) <= 6
        if c < len(FS) and not E("NOFFN"):
            for k in range(FS[c]):
                a(vq.wait(f"L{s}"))
                a(gemm_comp(FR(s % 3), ACC, s == 0))
                if s + 3 < 24: a(ld(s + 3))
                s += 1
        if c == int(E("PWC", "5")):
            a(partial_write(ACC, vLane, sBW, sT0, PART))
            a("s_waitcnt lgkmcnt(0)")
        if c == 6:
            a(f"""
            v_and_b32 v4, 31, v{vLane}
            v_lshrrev_b32 v5, 5, v{vLane}
            """)
            a(srd(16, "s6", "s7", S*D*2))
            a(srd(20, "s12", "s13", S*D*2))
            a(f"""
            v_mul_u32_u24 v12, 1280, v4
            v_lshl_add_u32 v13, v5, 4, v12
            v_lshl_add_u32 v12, v5, 3, v12
            v_mul_u32_u24 v15, {PSTR}, v4
            v_lshl_add_u32 v15, v5, 4, v15
            s_mul_i32 s{sXO}, s{sTF}, {32*1280}
            s_mul_i32 s3, s{sFQ}, 320
            s_add_u32 s{sXO}, s{sXO}, s3
            s_lshl_b32 s3, s{sBW}, 4
            s_add_u32 s{sX4}, s{sXO}, s3
            s_add_u32 s{sX4}, s{sX4}, 256
            s_lshl_b32 s3, s{sBW}, 6
            s_add_u32 s{sXO}, s{sXO}, s3
            """)
            for i in range(4): a(f"buffer_load_dwordx2 {vr(X+2*i,2)}, v12, s[16:19], s{sXO} offen offset:{16*i}")
            a(f"buffer_load_dwordx2 {vr(X+8,2)}, v12, s[16:19], s{sX4} offen")
            vq.issue("X", 5)
        if c in (6, 7):
            for qd in ((0, 1) if c == 6 else (2, 3)):
                a(f"""
                s_add_u32 s3, s{sBW}, {qd}
                s_and_b32 s3, s3, 3
                s_mul_i32 s{sB}, s3, {10*20*1024}
                s_mul_i32 s{sT0}, s{sFQ}, 5
                s_add_u32 s{sT0}, s{sT0}, s{sBW}
                s_lshl_b32 s{sT0}, s{sT0}, 10
                s_add_u32 s{sB}, s{sB}, s{sT0}
                s_add_u32 s{sB}, s{sB}, {WOF_OFF}
                s_mul_i32 s3, s3, 10240
                s_add_u32 s3, s3, {OL}
                v_add_u32 v{vOq+qd}, s3, v{vL16}
                """)
                for j in range(10):
                    a(f"buffer_load_dwordx4 {vr(WP+4*(10*qd+j),4)}, v{vL16}, s[8:11], s{sB} offen{SC}")
                    if j < 9: a(f"s_add_u32 s{sB}, s{sB}, {20*1024}")
                vq.issue("W", 10)
        if c <= 6: a(vq.wait(f"D{c+1}"))
        a("s_barrier")
        if c + 3 <= 7: a(dma(c + 3))
    a(f"""
    s_mul_i32 s{sB}, s{sBW}, {10*20*1024}
    s_mul_i32 s{sT0}, s{sFQ}, 5
    s_add_u32 s{sT0}, s{sT0}, 4
    s_lshl_b32 s{sT0}, s{sT0}, 10
    s_add_u32 s{sB}, s{sB}, s{sT0}
    s_add_u32 s{sB}, s{sB}, {WOF_OFF}
    s_mul_i32 s{sT0}, s{sBW}, 10240
    s_add_u32 s{sT0}, s{sT0}, {W4L}
    v_add_u32 v14, s{sT0}, v{vL16}
    """)
    for j in range(10):
        a(f"s_add_u32 m0, s{sT0}, {j*1024}\ns_nop 0\nbuffer_load_dwordx4 v{vL16}, s[8:11], s{sB} offen{SC} lds")
        if j < 9: a(f"s_add_u32 s{sB}, s{sB}, {20*1024}")
    a(f"""
    s_lshl_b32 s{sT0}, s{sBW}, 7
    s_add_u32 s{sT0}, s{sT0}, {PART}
    v_add_u32 v16, s{sT0}, v15
    s_lshl_b32 s{sT0}, s{sBW}, 5
    s_add_u32 s{sT0}, s{sT0}, {PART+512}
    v_add_u32 v15, s{sT0}, v15
    """)
    TB = [184, 200]
    def grd(i):
        b = TB[i & 1]
        return "".join((f"ds_read_b128 {vr(b+4*w,4)}, v16 offset:{w*PBUF+32*i}\n" if i < 4 else f"ds_read_b128 {vr(b+4*w,4)}, v15 offset:{w*PBUF}\n") for w in range(4))
    a(grd(0))
    for i in range(5):
        b = TB[i & 1]; d = GF + 4*i
        if i < 4: a(grd(i + 1))
        a(f"s_waitcnt lgkmcnt({4 if i < 4 else 0})")
        for e in range(4): a(f"v_add_f32 v{b+e}, v{b+e}, v{b+4+e}\nv_add_f32 v{b+8+e}, v{b+8+e}, v{b+12+e}")
        for e in range(4): a(f"v_add_f32 v{d+e}, v{b+e}, v{b+8+e}")
    a(f"s_mov_b32 s{sT0}, {hexf(-1.4426950408889634)}")
    GT = 8
    for r in range(0, 20, 4):
        for e in range(4): a(f"v_mul_f32 v{GT+e}, s{sT0}, v{GF+r+e}")
        for e in range(4): a(f"v_exp_f32 v{GT+e}, v{GT+e}")
        for e in range(4): a(f"v_add_f32 v{GT+e}, 1.0, v{GT+e}")
        for e in range(4): a(f"v_rcp_f32 v{GT+e}, v{GT+e}")
        for e in range(4): a(f"v_mul_f32 v{GF+r+e}, v{GF+r+e}, v{GT+e}")
    a(f"""
    s_cmp_lg_u32 s{sBW}, 0
    s_cbranch_scc1 L_{name}_ready
    s_lshl_b32 s{sT0}, s{sTF}, 8
    s_add_u32 s{sT0}, s{sT0}, {FLG_OFF}
    v_mov_b32 v8, 0
    s_mov_b32 s{sT1}, 0
    L_{name}_poll:
    buffer_load_dword v9, v8, s[8:11], s{sT0} offen sc1
    s_add_u32 s{sT1}, s{sT1}, 1
    s_waitcnt vmcnt(0)
    v_readfirstlane_b32 s3, v9
    s_cmp_ge_u32 s3, 32
    s_cbranch_scc1 L_{name}_ready
    s_cmp_ge_u32 s{sT1}, 0x40000
    s_cbranch_scc1 L_{name}_ready
    s_sleep {E('SLP', '2')}
    s_branch L_{name}_poll
    L_{name}_ready:
    s_waitcnt vmcnt(0) lgkmcnt(0)
    s_barrier
    """)
    if DIAG: a(stamp(1))
    a(f"""
    s_mul_i32 s{sA}, s{sTF}, 40
    s_mul_i32 s3, s{sBW}, 10
    s_add_u32 s{sA}, s{sA}, s3
    s_lshl_b32 s{sA}, s{sA}, 10
    s_add_u32 s{sA}, s{sA}, {OF_OFF}
    s_mul_i32 s{sT0}, s{sBW}, 10240
    s_add_u32 s{sT0}, s{sT0}, {OL}
    """)
    for j in range(10):
        a(f"s_add_u32 m0, s{sT0}, {j*1024}\ns_nop 0\nbuffer_load_dwordx4 v{vL16}, s[8:11], s{sA} offen sc1 lds")
        if j < 9: a(f"s_add_u32 s{sA}, s{sA}, 1024")
    OB = [246, 250]; W4 = [8, 16]
    def rdo(u): return f"ds_read_b128 {vr(OB[u & 1],4)}, v{vOq + u//10} offset:{(u % 10)*1024}\n"
    def rdw(u): return f"ds_read_b128 {vr(W4[u & 1],4)}, v14 offset:{u*1024}\n"
    a("s_waitcnt vmcnt(8)")
    a(rdo(0) + rdw(0))
    for u in range(40):
        nxt = ""
        if u + 1 < 10 and (u + 1) % 2 == 0: a(f"s_waitcnt vmcnt({max(0, 10 - (u + 1) - 2)})")
        if u + 1 == 10: a("s_waitcnt vmcnt(0)\ns_barrier")
        if u + 1 < 40: nxt = rdo(u + 1) + (rdw(u + 1) if u + 1 < 10 else "")
        a(nxt)
        cnt = (1 if u + 1 < 40 else 0) + (1 if u + 1 < 10 else 0)
        a(f"s_waitcnt lgkmcnt({cnt})")
        a(mfma(AO, WP + 4*u, OB[u & 1], "0" if u == 0 else None))
        if u < 10: a(mfma(A4, W4[u & 1], OB[u & 1], "0" if u == 0 else None))
    if DIAG: a(stamp(2))
    a(f"""
    s_lshl_b32 s{sT0}, s{sBW}, 12
    s_add_u32 s{sT0}, s{sT0}, {X4L}
    v_add_u32 v14, s{sT0}, v{vL16}
    s_lshl_b32 s{sT0}, s{sBW}, 10
    s_add_u32 s{sT0}, s{sT0}, {X4L}
    v_add_u32 v15, s{sT0}, v{vL16}
    """)
    for i in range(4): a(f"ds_write_b128 v14, {vr(A4+4*i,4)} offset:{i*1024}")
    a("s_waitcnt lgkmcnt(0)\ns_barrier")
    for w in range(4): a(f"ds_read_b128 {vr(24+4*w,4)}, v15 offset:{w*4096}")
    def fin(sreg, g, x, d):
        t = f"""
        v_lshlrev_b32 v40, 16, v{x}
        v_and_b32 v41, 0xffff0000, v{x}
        v_lshlrev_b32 v42, 16, v{x+1}
        v_and_b32 v43, 0xffff0000, v{x+1}
        """
        for e in range(4): t += f"v_fma_f32 v{40+e}, v{sreg+e}, v{g+e}, v{40+e}\n"
        t += f"v_cvt_pk_bf16_f32 v{d}, v40, v41\nv_cvt_pk_bf16_f32 v{d+1}, v42, v43\n"
        return t
    for i in range(4): a(fin(AO+4*i, GF+4*i, X+2*i, 48+2*i))
    a(f"""
    v_permlane32_swap_b32 v48, v50
    v_permlane32_swap_b32 v49, v51
    v_permlane32_swap_b32 v52, v54
    v_permlane32_swap_b32 v53, v55
    buffer_store_dwordx4 v[48:51], v13, s[20:23], s{sXO} offen
    buffer_store_dwordx4 v[52:55], v13, s[20:23], s{sXO} offen offset:32
    s_waitcnt lgkmcnt(0)
    """)
    for e in range(4): a(f"v_add_f32 v{24+e}, v{24+e}, v{28+e}\nv_add_f32 v{32+e}, v{32+e}, v{36+e}")
    for e in range(4): a(f"v_add_f32 v{24+e}, v{24+e}, v{32+e}")
    a(fin(24, GF+16, X+8, 56))
    a(f"buffer_store_dwordx2 v[56:57], v12, s[20:23], s{sX4} offen")
    if DIAG: a(stamp(3))
    a(f"L_{name}_end:")
    a(d2_end())
    if DIAG:
        a(stamp(4)); a("s_waitcnt vmcnt(0)"); a(stamp(5)); a(stamp_flush(1, 6, 8))
    a(f"L_{name}_exit:\ns_endpgm")
    if not fused: a(kernel_desc(name, 254))
    return a.text()
```

```python
NAME = "recurrent_scan__softmax_full_mha__dense_activation_relu__prompt"
S, D, H, DH, FF = 2048, 640, 32, 20, 1536
QF_OFF  = 0x0
KF_OFF  = 0x280000
VF_OFF  = 0x500000
HF_OFF  = 0x780000
W2F_OFF = 0xD80000
WOF_OFF = 0xF60000
OF_OFF  = 0x1028000
G_OFF   = 0x12A8000
STA_OFF = 0x1528000
FLG_OFF = 0x1530000
WS_SIZE = 0x1600000
QSCALE = (DH ** -0.5) * 1.4426950408889634
import struct, os
E = os.environ.get
def f2u(x): return struct.unpack("<I", struct.pack("<f", x))[0]
def hexf(x): return "0x%08x" % f2u(x)
def _is_lit(t):
    t = t.strip()
    try:
        v = int(t, 0)
    except ValueError:
        return False
    return not (-16 <= v <= 64)
class Asm:
    def __init__(self): self.lines = []
    def __call__(self, text):
        for l in text.strip("\n").split("\n"):
            l = l.strip()
            if not l: continue
            if l.startswith("s_cselect_b32"):
                d, x, y = [t.strip() for t in l[len("s_cselect_b32"):].split(",")]
                if _is_lit(x) and _is_lit(y):
                    self.lines.append(f"    s_mov_b32 {d}, {y}")
                    l = f"s_cselect_b32 {d}, {x}, {d}"
            self.lines.append(("" if l.endswith(":") else "    ") + l)
    def raw(self, text): self.lines.append(text)
    def text(self): return "\n".join(self.lines) + "\n"
def vr(a, n=1): return f"v{a}" if n == 1 else f"v[{a}:{a+n-1}]"
def sr(a, n=1): return f"s{a}" if n == 1 else f"s[{a}:{a+n-1}]"
def mfma(d, a, b, c=None):
    cs = vr(d, 16) if c is None else (c if isinstance(c, str) else vr(c, 16))
    return f"v_mfma_f32_32x32x16_bf16 {vr(d,16)}, {vr(a,4)}, {vr(b,4)}, {cs}"
def mfma8(d, a, b, c=None):
    cs = vr(d, 16) if c is None else (c if isinstance(c, str) else vr(c, 16))
    return f"v_mfma_f32_32x32x8bf16_1k {vr(d,16)}, {vr(a,2)}, {vr(b,2)}, {cs}"
def srd(a, base_lo, base_hi, size):
    return f"""s_mov_b32 s{a}, {base_lo}
s_mov_b32 s{a+1}, {base_hi}
s_mov_b32 s{a+2}, {size}
s_mov_b32 s{a+3}, 0x00020000"""
def kernel_head(name):
    return f""".text
.globl {name}
.p2align 8
.type {name},@function
{name}:"""
def kernel_desc(name, vgpr, sgpr=100, accum=None):
    accum = accum or ((vgpr + 3) // 4 * 4)
    return f""".section .rodata,"a"
.p2align 6
.amdhsa_kernel {name}
  .amdhsa_next_free_vgpr {vgpr}
  .amdhsa_next_free_sgpr {sgpr}
  .amdhsa_accum_offset {accum}
  .amdhsa_group_segment_fixed_size 0
  .amdhsa_kernarg_size 72
  .amdhsa_user_sgpr_count 2
  .amdhsa_user_sgpr_kernarg_segment_ptr 1
  .amdhsa_system_sgpr_workgroup_id_x 1
  .amdhsa_float_denorm_mode_32 3
.end_amdhsa_kernel
.text"""
DIAG = int(E("DIAG", "0"))
DIAG_OFF = 0x2000000
def stamp(i):
    if not DIAG: return ""
    t = f"s_memtime s[{64+2*i}:{65+2*i}]\n"
    if i == 0: t += "s_memrealtime s[80:81]\n"
    t += "s_waitcnt lgkmcnt(0)\n"
    return t
def stamp_flush(kidx, n, srd_base):
    if not DIAG: return ""
    t = "s_waitcnt vmcnt(0)\ns_memrealtime s[82:83]\ns_waitcnt lgkmcnt(0)\n"
    t += "s_mov_b64 exec, -1\n"
    t += f"v_lshrrev_b32 v1, 6, v0\ns_lshl_b32 s3, s2, 4\nv_add_u32 v1, s3, v1\nv_lshlrev_b32 v1, 6, v1\n"
    t += f"s_mov_b32 s3, {DIAG_OFF + kidx*0x40000}\n"
    t += f"s_mov_b32 s{srd_base+2}, 0x3000000\n"
    for i in range(n):
        t += f"s_sub_u32 s84, s{64+2*i}, s64\nv_mov_b32 v2, s84\nbuffer_store_dword v2, v1, s[{srd_base}:{srd_base+3}], s3 offen offset:{4*i}\n"
    t += f"v_mov_b32 v2, s80\nbuffer_store_dword v2, v1, s[{srd_base}:{srd_base+3}], s3 offen offset:56\n"
    t += f"v_mov_b32 v2, s82\nbuffer_store_dword v2, v1, s[{srd_base}:{srd_base+3}], s3 offen offset:60\ns_waitcnt vmcnt(0)\n"
    return t

DIAG2 = int(E("DIAG2", "0"))
def d2_start():
    if not DIAG2: return ""
    return """
    s_memrealtime s[86:87]
    s_memtime s[88:89]
    s_load_dwordx2 s[90:91], s[0:1], 56
    s_waitcnt lgkmcnt(0)
    s_mov_b32 s92, s90
    s_mov_b32 s93, s91
    s_mov_b32 s94, 256
    s_mov_b32 s95, 0x00020000
    s_not_b32 s85, s86
    v_mov_b32 v253, s85
    v_mov_b32 v252, 32
    v_readfirstlane_b32 s84, v0
    s_lshr_b32 s84, s84, 6
    s_lshl_b32 s97, s2, 3
    s_add_u32 s84, s84, s97
    s_and_b32 s84, s84, 0x3f
    s_cmp_lg_u32 s84, 0
    s_cbranch_scc1 L_d2_skip
    s_mov_b64 exec, 1
    buffer_atomic_umax v253, v252, s[92:95], 0 offen sc1
    s_mov_b64 exec, -1
    L_d2_skip:
    """
def d2_end():
    if not DIAG2: return ""
    return """
    s_waitcnt vmcnt(0)
    s_cmp_lg_u32 s32, 4
    s_cbranch_scc1 L_d2_skip2
    s_memrealtime s[84:85]
    s_memtime s[90:91]
    s_waitcnt lgkmcnt(0)
    v_mov_b32 v1, s84
    v_mov_b32 v2, 36
    s_mov_b64 exec, 1
    buffer_atomic_umax v1, v2, s[92:95], 0 offen sc1
    s_sub_u32 s90, s90, s88
    s_sub_u32 s84, s84, s86
    v_mov_b32 v1, s90
    v_mov_b32 v2, 40
    buffer_atomic_umax v1, v2, s[92:95], 0 offen sc1
    v_mov_b32 v1, s84
    v_mov_b32 v2, 44
    buffer_atomic_umax v1, v2, s[92:95], 0 offen sc1
    s_mov_b64 exec, -1
    s_waitcnt vmcnt(0)
    L_d2_skip2:
    """

def code_prefetch(tag, sym, lo, sWave, vTid, nwaves, vd):
    return f"""
    s_getpc_b64 s[62:63]
    L_pc_{tag}:
    s_sub_u32 s62, s62, L_pc_{tag}-{lo}
    s_subb_u32 s63, s63, 0
    v_lshlrev_b32 v{vd}, 7, v{vTid}
    v_min_u32 v{vd}, CODE_END-{lo}-4, v{vd}
    v_mov_b32 v{vd+2}, s63
    v_add_co_u32 v{vd+1}, vcc, s62, v{vd}
    s_nop 1
    v_addc_co_u32 v{vd+2}, vcc, 0, v{vd+2}, vcc
    global_load_dword v{vd}, v[{vd+1}:{vd+2}], off
    """
```

```python
from common import *
CSL = 147456
K1_LDS = CSL + 512
XS, WS0 = 32768, 98304
ST = {"0": "", "1": " sc0 sc1", "2": " nt", "3": " sc1", "4": " sc0 sc1 nt"}[E("WT", "1")]
def k1(name, fused=None, sym=None):
    a = Asm()
    a(kernel_head(sym or name))
    NSTAT = 5 if fused else 4
    DONE = f"L_{name}_rdone" if fused else f"L_{name}_exit"
    sW, sTB, sCT, sLD, sXB, sWB, sM0X, sKS, sST, sT0, sT1, sCur = 32,33,34,35,36,37,38,39,40,41,42,43
    sScale, sWM, sWN, sFA, sDX, sDW, sXG, sWG, sP, sLD6, sMX, sMW = 45,46,47,48,49,50,51,52,53,54,60,61
    DBG = 56
    vLane = 1
    vXD, vWD = 194, 198
    vXA, vWA = 4, 8
    vCs, vTmp = 12, 14
    vEA = 16
    vAB = 24
    vPoll, vPollA = 28, 29
    FR = [32, 48]
    ACC = lambda ft, tt: 64 + (ft*2+tt)*16
    VST = 128
    a(f"""
    s_cmp_ge_u32 s2, 256
    s_cbranch_scc1 L_{name}_exit
    """)
    if E("PERM"):
        a(f"s_mul_i32 s2, s2, {int(E('PERM'))}\ns_add_u32 s2, s2, 77\ns_and_b32 s2, s2, 255")
    a(stamp(0))
    a(d2_start())
    a(f"""
    s_load_dwordx4 s[4:7], s[0:1], 0
    s_load_dwordx2 s[8:9], s[0:1], 16
    s_load_dwordx4 s[12:15], s[0:1], 32
    s_load_dwordx2 s[16:17], s[0:1], 64
    s_load_dwordx2 s[18:19], s[0:1], 56
    v_lshrrev_b32 v2, 6, v0
    v_and_b32 v{vLane}, 63, v0
    v_readfirstlane_b32 s{sW}, v2
    s_and_b32 s{sT0}, s2, 7
    s_lshr_b32 s{sT1}, s2, 3
    s_and_b32 s{sKS}, s{sT1}, 3
    s_and_b32 s3, s{sT0}, 1
    s_lshl_b32 s3, s3, 2
    s_add_u32 s{sTB}, s{sKS}, s3
    """)
    if E("REMAP", "0") == "1":
        a(f"""
        s_lshr_b32 s{sLD}, s{sT0}, 1
        s_lshl_b32 s3, s{sLD}, 3
        s_lshr_b32 s{sCT}, 0x0e140700, s3
        s_and_b32 s{sCT}, s{sCT}, 0xff
        s_lshr_b32 s3, s{sT1}, 2
        s_add_u32 s{sCT}, s{sCT}, s3
        s_cmp_eq_u32 s{sLD}, 3
        s_cselect_b32 s{sLD}, 6, 7
        s_cmp_ge_u32 s3, s{sLD}
        s_cbranch_scc1 L_{name}_spare
        """)
    else:
        a(f"""
        s_lshr_b32 s{sCT}, s{sT0}, 1
        s_mul_i32 s{sCT}, s{sCT}, 7
        s_lshr_b32 s3, s{sT1}, 2
        s_add_u32 s{sCT}, s{sCT}, s3
        s_cmp_ge_u32 s3, 7
        s_cbranch_scc1 L_{name}_spare
        s_cmp_ge_u32 s{sCT}, 27
        s_cbranch_scc1 L_{name}_spare
        """)
    rot = E("ROT", "0")
    if rot == "1":
        a(f"""
        s_mul_i32 s3, s3, 3
        s_mul_i32 s{sKS}, s{sKS}, 5
        s_lshr_b32 s{sKS}, s{sKS}, 1
        s_add_u32 s{sKS}, s{sKS}, s3
        s_cmp_ge_u32 s{sKS}, 20
        s_cselect_b32 s3, 20, 0
        s_sub_u32 s{sKS}, s{sKS}, s3
        s_cmp_ge_u32 s{sKS}, 10
        s_cselect_b32 s3, 10, 0
        s_sub_u32 s{sKS}, s{sKS}, s3
        """)
    elif rot == "2":
        a(f"""
        s_add_u32 s3, s3, s{sKS}
        s_and_b32 s3, s3, 1
        s_mul_i32 s{sKS}, s3, 5
        """)
    else:
        a(f"s_mov_b32 s{sKS}, 0")
    a(f"""
    s_cmp_ge_u32 s{sCT}, 15
    s_cselect_b32 s{sLD}, 3072, 3840
    s_cselect_b32 s3, 15, 0
    s_sub_u32 s3, s{sCT}, s3
    s_lshl_b32 s{sWB}, s3, 8
    s_mul_i32 s{sXB}, s{sTB}, {256*1280}
    s_lshl_b32 s{sM0X}, s{sW}, 10
    s_lshl_b32 s{sLD6}, s{sLD}, 6
    s_and_b32 s{sWM}, s{sW}, 3
    s_lshr_b32 s{sWN}, s{sW}, 2
    s_and_b32 s{sFA}, s{sW}, 1
    s_lshr_b32 s{sP}, s{sWM}, 1
    v_lshrrev_b32 v12, 4, v{vLane}
    s_lshl_b32 s3, s{sW}, 2
    v_add_u32 v13, s3, v12
    v_xor_b32 v5, v13, v{vLane}
    v_and_b32 v5, 7, v5
    v_lshrrev_b32 v4, 3, v{vLane}
    v_lshl_add_u32 v4, s{sW}, 3, v4
    v_mul_u32_u24 v4, 1280, v4
    v_lshl_add_u32 v{vXD}, v5, 4, v4
    v_add_u32 v{vXD+1}, {64*1280}, v{vXD}
    v_add_u32 v{vXD+2}, {128*1280}, v{vXD}
    v_add_u32 v{vXD+3}, {192*1280}, v{vXD}
    v_lshlrev_b32 v5, 2, v12
    v_xor_b32 v5, v5, v{vLane}
    v_and_b32 v5, 15, v5
    v_mul_u32_u24 v4, s{sLD}, v13
    v_lshl_add_u32 v{vWD}, v5, 4, v4
    s_lshl_b32 s3, s{sLD}, 5
    v_add_u32 v{vWD+1}, s3, v{vWD}
    v_and_b32 v192, 31, v{vLane}
    v_lshrrev_b32 v193, 5, v{vLane}
    v_bfe_u32 v14, v{vLane}, 1, 3
    s_lshl_b32 s3, s{sP}, 1
    v_add_u32 v15, s3, v193
    v_xor_b32 v14, v14, v15
    v_lshl_add_u32 v15, s{sWM}, 6, v192
    v_lshlrev_b32 v15, 7, v15
    v_lshl_add_u32 v{vXA}, v14, 4, v15
    v_xor_b32 v{vXA+1}, 32, v{vXA}
    v_xor_b32 v{vXA+2}, 64, v{vXA}
    v_xor_b32 v{vXA+3}, 0x60, v{vXA}
    v_bfe_u32 v14, v{vLane}, 2, 2
    v_lshl_add_u32 v15, v193, 3, v14
    s_lshl_b32 s{sT0}, s{sP}, 4
    v_add_u32 v15, s{sT0}, v15
    s_lshl_b32 s3, s{sWN}, 1
    s_add_u32 s3, s3, s{sFA}
    v_xor_b32 v14, s3, v14
    v_lshlrev_b32 v14, 6, v14
    v_lshl_add_u32 v15, v15, 8, v14
    v_and_b32 v14, 1, v12
    v_lshl_add_u32 v15, v14, 5, v15
    v_and_b32 v14, 3, v{vLane}
    v_lshl_add_u32 v15, v14, 3, v15
    v_add_u32 v{vWA}, {WS0}, v15
    v_xor_b32 v{vWA+1}, 0x1000, v{vWA}
    v_xor_b32 v{vWA+2}, 64, v{vWA}
    v_xor_b32 v{vWA+3}, 0x1040, v{vWA}
    v_and_b32 v14, 127, v0
    v_lshlrev_b32 v14, 2, v14
    v_add_u32 v14, {CSL}, v14
    v_mov_b32 v{vCs}, 0
    v_mov_b32 v{vCs+1}, 0
    ds_write_b32 v14, v{vCs}
    s_mov_b32 s{sST}, 0
    s_mov_b32 s{sCur}, 0
    s_mov_b32 s{sScale}, 0xffff0000
    s_waitcnt lgkmcnt(0)
    """)
    a(stamp(6))
    a(srd(20, "s4", "s5", S*D*2))
    a(f"""
    s_cmp_ge_u32 s{sCT}, 15
    s_cselect_b32 s24, s12, s6
    s_cselect_b32 s25, s13, s7
    s_cselect_b32 s26, {640*3072}, {640*3840}
    s_mov_b32 s27, 0x00020000
    v_mov_b32 v{vPollA}, 0
    v_mov_b32 v{vEA}, 0
    v_mov_b32 v{vEA+1}, 0
    """)
    a(srd(28, "s16", "s17", WS_SIZE))
    a(srd(DBG, "s18", "s19", 256))
    def issue_pre():
        t = f"s_lshl_b32 s{sXG}, s{sKS}, 7\ns_add_u32 s{sXG}, s{sXG}, s{sXB}\n"
        t += f"s_mul_i32 s{sWG}, s{sLD6}, s{sKS}\ns_add_u32 s{sWG}, s{sWG}, s{sWB}\n"
        t += f"s_add_u32 s{sKS}, s{sKS}, 1\ns_cmp_ge_u32 s{sKS}, 10\ns_cselect_b32 s{sKS}, 0, s{sKS}\n"
        return t
    def dma_m0(i): return f"s_add_u32 m0, s{sMX}, {i*8192}\n" if i < 4 else f"s_add_u32 m0, s{sMW}, {(i-4)*8192}\n"
    def dma_ld(i):
        if i < 4: return f"buffer_load_dwordx4 v{vXD+i}, s[20:23], s{sXG} offen lds\n"
        return f"buffer_load_dwordx4 v{vWD+i-4}, s[24:27], s{sWG} offen lds\n"
    def issue():
        t = issue_pre()
        for i in range(6): t += dma_m0(i) + "s_nop 0\n" + dma_ld(i)
        return t
    def slot_m0(slot_sgpr=None, slot=None):
        if slot is not None:
            return f"s_add_u32 s{sMX}, s{sM0X}, {slot*XS}\ns_add_u32 s{sMW}, s{sM0X}, {WS0+slot*16384}\n"
        return (f"s_lshl_b32 s{sMX}, s{slot_sgpr}, 15\ns_add_u32 s{sMX}, s{sMX}, s{sM0X}\n"
                f"s_lshl_b32 s{sMW}, s{slot_sgpr}, 14\ns_add_u32 s{sMW}, s{sMW}, s{sM0X}\ns_add_u32 s{sMW}, s{sMW}, {WS0}\n")
    if E("PF", "0") != "0":
        PF0 = int(E("PF0", "3"))
        a(f"""
        s_add_u32 s{sT0}, s{sW}, {PF0}
        s_cmp_ge_u32 s{sT0}, 10
        s_cbranch_scc1 L_{name}_nopf
        s_lshr_b32 s{sT1}, s2, 3
        s_mul_i32 s3, s{sT1}, 37
        v_add_u32 v14, s3, v{vLane}
        v_min_u32 v14, 0x3ff, v14
        s_and_b32 s3, s2, 1
        s_lshl_b32 s3, s3, 10
        v_add_u32 v14, s3, v14
        v_mul_u32_u24 v14, 1280, v14
        s_lshl_b32 s3, s{sT0}, 7
        s_mov_b32 exec_hi, 0x1f
        buffer_load_dword v30, v14, s[20:23], s3 offen
        s_mov_b64 exec, 0xffffffff
        s_lshl_b32 s3, s{sT1}, 5
        v_add_u32 v14, s3, v{vLane}
        v_mul_u32_u24 v15, 4682, v14
        v_lshrrev_b32 v15, 16, v15
        v_mul_u32_u24 v18, 14, v15
        v_sub_u32 v14, v14, v18
        s_lshl_b32 s3, s{sT0}, 6
        v_add_u32 v15, s3, v15
        s_bfe_u32 s3, s2, 0x20001
        s_mul_i32 s3, s3, 14
        v_add_u32 v14, s3, v14
        v_min_u32 v14, 53, v14
        v_lshlrev_b32 v14, 7, v14
        v_cmp_gt_u32 vcc, 3840, v14
        v_mul_u32_u24 v18, 3840, v15
        v_mul_u32_u24 v19, 3072, v15
        v_add_u32 v18, v18, v14
        v_add_u32 v19, v19, v14
        v_subrev_u32 v19, 3840, v19
        v_cndmask_b32 v18, v19, v18, vcc
        v_mov_b32 v20, s12
        v_mov_b32 v21, s13
        v_mov_b32 v22, s6
        v_mov_b32 v23, s7
        v_cndmask_b32 v20, v20, v22, vcc
        v_cndmask_b32 v21, v21, v23, vcc
        v_add_co_u32 v20, vcc, v20, v18
        s_nop 1
        v_addc_co_u32 v21, vcc, 0, v21, vcc
        global_load_dword v31, v[20:21], off
        s_mov_b64 exec, -1
        L_{name}_nopf:
        """)
    NPRE = int(E("NPRE", "2"))
    a(f"L_{name}_pre:")
    a(slot_m0(slot_sgpr=sCur)); a(issue())
    a(f"""
    s_add_u32 s{sCur}, s{sCur}, 1
    s_cmp_lt_u32 s{sCur}, {NPRE}
    {"s_barrier" if E("PBAR", "1") == "1" else "s_nop 0"}
    s_cbranch_scc1 L_{name}_pre
    """)
    if NPRE == 2: a(slot_m0(slot_sgpr=sCur) + issue_pre())
    a(f"s_mov_b32 s{sCur}, 0")
    a(stamp(7))
    def late_setup(orient):
        t = f"""
        s_lshl_b32 s{sT0}, s{sTB}, 2
        v_mov_b32 v{vPollA}, s{sT0}
        """
        if orient == 1:
            t += f"""
            s_mov_b32 s{sT1}, 52429
            s_sub_u32 s3, s{sCT}, 10
            s_lshl_b32 s3, s3, 7
            s_lshl_b32 s{sT0}, s{sWN}, 6
            s_add_u32 s3, s3, s{sT0}
            v_mul_u32_u24 v24, 320, v193
            """
            for ft in range(2):
                t += f"""
                s_xor_b32 s{sT0}, s{sFA}, {ft}
                s_lshl_b32 s{sT0}, s{sT0}, 5
                s_add_u32 s{sT0}, s{sT0}, s3
                v_add_u32 v30, s{sT0}, v192
                v_mul_u32_u24 v31, s{sT1}, v30
                v_lshrrev_b32 v31, 20, v31
                v_mul_u32_u24 v25, 20, v31
                v_sub_u32 v25, v30, v25
                v_mul_u32_u24 v31, {128*640}, v31
                v_lshl_add_u32 v31, v25, 4, v31
                v_add_u32 v{vEA+ft}, v31, v24
                """
        return t
    def reads(s, fs):
        if E("NOREAD"): return [""] * 6
        b = FR[fs]
        t = [f"ds_read_b128 {vr(b,4)}, v{vXA+s}\n", f"ds_read_b128 {vr(b+4,4)}, v{vXA+s} offset:4096\n"]
        for ft in range(2):
            o = (s >> 1) * 8192
            t.append(f"ds_read_b64_tr_b16 {vr(b+8+ft*4,2)}, v{vWA+ft*2+(s&1)} offset:{o}\n")
            t.append(f"ds_read_b64_tr_b16 {vr(b+10+ft*4,2)}, v{vWA+ft*2+(s&1)} offset:{o+1024}\n")
        return t
    def compute(s, fs, orient, zero=False, rd=None, extra=None):
        b = FR[fs]; X = [b, b+4]; W = [b+8, b+12]
        t = ""; k = 0
        for ft in range(2):
            for tt in range(2):
                c = "0" if zero else None
                if orient == 0: t += mfma(ACC(ft,tt), W[ft], X[tt], c) + "\n"
                else: t += mfma(ACC(ft,tt), X[tt], W[ft], c) + "\n"
                if extra: t += extra[k]
                elif rd and k < 3: t += rd[2*k] + rd[2*k+1]
                if (s & 1) == 0 and not E("NOCS"):
                    t += f"v_lshlrev_b32 v{vTmp}, 16, v{W[0]+k}\nv_and_b32 v{vTmp+1}, s{sScale}, v{W[0]+k}\n"
                    t += f"v_add_f32 v{vCs}, v{vCs}, v{vTmp}\nv_add_f32 v{vCs+1}, v{vCs+1}, v{vTmp+1}\n"
                k += 1
        return t
    def dma_extra(rd):
        return [dma_m0(0) + rd[0] + dma_ld(0) + dma_m0(1) + rd[1] + dma_ld(1),
                dma_m0(2) + rd[2] + dma_ld(2) + dma_m0(3) + rd[3] + dma_ld(3),
                dma_m0(4) + rd[4] + dma_ld(4) + dma_m0(5) + rd[5] + dma_ld(5), ""]
    a(f"""
    s_waitcnt vmcnt({6*(NPRE-1)})
    s_barrier
    """)
    a(stamp(1))
    a("".join(reads(0, 0)))
    a(f"""
    s_cmp_ge_u32 s{sCT}, 10
    s_cbranch_scc0 L_{name}_ent0
    s_cmp_lt_u32 s{sCT}, 15
    s_cbranch_scc1 L_{name}_ent1
    """)
    def rotate_s():
        return f"""s_cmp_eq_u32 s{sCur}, 2
        s_cselect_b32 s{sDX}, {-2*XS & 0xffffffff}, {XS}
        s_cselect_b32 s{sDW}, {-2*16384 & 0xffffffff}, 16384
        s_cselect_b32 s{sCur}, -1, s{sCur}
        s_add_u32 s{sCur}, s{sCur}, 1
        """
    def rotate_v(lo, hi):
        t = ""
        for r in range(lo, hi):
            t += f"v_add_u32 v{vXA+r}, s{sDX}, v{vXA+r}\nv_add_u32 v{vWA+r}, s{sDW}, v{vWA+r}\n"
        return t
    for orient in range(2):
        L = f"L_{name}_loop{orient}"
        a(f"L_{name}_ent{orient}:")
        a("s_waitcnt lgkmcnt(0)")
        if NPRE == 2: a(compute(0, 0, orient, zero=True, extra=dma_extra(reads(1, 1))))
        else: a(compute(0, 0, orient, zero=True, rd=reads(1, 1)))
        a(f"s_branch {L}_k1")
        a(f"{L}:")
        a("s_waitcnt lgkmcnt(0)")
        a(compute(0, 0, orient, rd=reads(1, 1)))
        a(f"{L}_k1:")
        a("s_waitcnt lgkmcnt(0)")
        r2 = reads(2, 0)
        a(compute(1, 1, orient, extra=[r2[0] + r2[1] + slot_m0(slot_sgpr=sCur), r2[2] + r2[3] + issue_pre(), r2[4] + r2[5] + rotate_s(), ""]))
        a("s_waitcnt lgkmcnt(0)")
        r3 = reads(3, 1)
        a(compute(2, 0, orient, extra=[r3[0] + r3[1], r3[2] + r3[3], r3[4] + r3[5], rotate_v(0, 4)]))
        a(f"""
        s_cmp_ge_u32 s{sST}, 7
        s_cbranch_scc1 {L}_tail
        s_waitcnt vmcnt(6) lgkmcnt(0)
        s_barrier
        """)
        a(compute(3, 1, orient, extra=dma_extra(reads(0, 0))))
        a(f"""
        s_add_u32 s{sST}, s{sST}, 1
        s_branch {L}
        {L}_tail:
        s_cmp_ge_u32 s{sST}, 9
        s_cbranch_scc1 {L}_last
        s_cmp_ge_u32 s{sST}, 8
        s_cbranch_scc1 {L}_w0
        s_waitcnt vmcnt(6) lgkmcnt(0)
        s_barrier
        """)
        a(late_setup(orient))
        a(f"""
        buffer_load_dword v{vPoll}, v{vPollA}, s[{DBG}:{DBG+3}], 0 offen sc1
        s_branch {L}_go
        {L}_w0:
        s_waitcnt vmcnt(0) lgkmcnt(0)
        s_barrier
        s_mov_b32 s{sT1}, 0
        {L}_spin:
        v_readfirstlane_b32 s{sT0}, v{vPoll}
        s_add_u32 s{sT1}, s{sT1}, 1
        s_cmp_ge_u32 s{sT0}, {0 if E("NOSPARE") else NSTAT}
        s_cbranch_scc1 {L}_got
        s_cmp_ge_u32 s{sT1}, 0x40000
        s_cbranch_scc1 {L}_got
        s_sleep 2
        buffer_load_dword v{vPoll}, v{vPollA}, s[{DBG}:{DBG+3}], 0 offen sc1
        s_waitcnt vmcnt(0)
        s_branch {L}_spin
        {L}_got:
        s_lshl_b32 s{sT0}, s{sTB}, 10
        s_lshl_b32 s{sT1}, s{sWM}, 8
        s_add_u32 s{sT0}, s{sT0}, s{sT1}
        s_add_u32 s{sT0}, s{sT0}, {STA_OFF}
        s_add_u32 s{sT1}, s{sT0}, 8192
        """)
        if orient == 0:
            a(f"""
            v_lshlrev_b32 v30, 2, v192
            buffer_load_dword v{vAB}, v30, s[28:31], s{sT0} offen sc1
            buffer_load_dword v{vAB+1}, v30, s[28:31], s{sT1} offen sc1
            buffer_load_dword v{vAB+2}, v30, s[28:31], s{sT0} offen offset:128 sc1
            buffer_load_dword v{vAB+3}, v30, s[28:31], s{sT1} offen offset:128 sc1
            """)
        else:
            a("v_lshlrev_b32 v30, 4, v193")
            for tt in range(2):
                for i in range(4):
                    a(f"buffer_load_dwordx4 {vr(VST+32*tt+4*i,4)}, v30, s[28:31], s{sT0} offen offset:{tt*128+i*32} sc1")
                    a(f"buffer_load_dwordx4 {vr(VST+32*tt+16+4*i,4)}, v30, s[28:31], s{sT1} offen offset:{tt*128+i*32} sc1")
        a(f"{L}_go:")
        a(compute(3, 1, orient, rd=reads(0, 0)))
        a(f"""
        s_add_u32 s{sST}, s{sST}, 1
        s_branch {L}
        {L}_last:
        s_waitcnt lgkmcnt(0)
        """)
        a(compute(3, 1, orient))
        if orient == 0: a(f"s_branch L_{name}_stats")
    a(f"L_{name}_stats:")
    a(stamp(2))
    a(f"""
    v_add_f32 v{vCs}, v{vCs}, v{vCs+1}
    v_mov_b32 v{vTmp}, v{vCs}
    s_lshl_b32 s{sT0}, s{sWN}, 6
    s_lshl_b32 s{sT1}, s{sFA}, 5
    s_add_u32 s{sT0}, s{sT0}, s{sT1}
    v_mov_b32 v13, v{vCs}
    s_nop 1
    v_permlane32_swap_b32 v13, v{vTmp}
    v_add_u32 v30, s{sT0}, v192
    v_lshlrev_b32 v30, 2, v30
    v_add_u32 v30, {CSL}, v30
    v_add_f32 v13, v13, v{vTmp}
    s_mov_b64 exec, 0xffffffff
    ds_add_f32 v30, v13
    s_mov_b64 exec, -1
    s_lshl_b32 s{sT0}, s{sTB}, 3
    s_lshl_b32 s{sT1}, s{sWM}, 1
    s_add_u32 s{sST}, s{sT0}, s{sT1}
    s_waitcnt lgkmcnt(0)
    s_barrier
    """)
    a(stamp(3))
    a(f"""
    s_cmp_ge_u32 s{sCT}, 10
    s_cbranch_scc0 L_{name}_epiT
    s_cmp_lt_u32 s{sCT}, 15
    s_cbranch_scc1 L_{name}_epiV
    L_{name}_epiT:
    s_lshl_b32 s{sT0}, s{sWN}, 8
    v_lshlrev_b32 v30, 4, v193
    v_add_u32 v30, s{sT0}, v30
    v_add_u32 v30, {CSL}, v30
    s_lshl_b32 s{sT0}, s{sFA}, 7
    v_add_u32 v31, s{sT0}, v30
    s_xor_b32 s{sT0}, s{sT0}, 128
    v_add_u32 v30, s{sT0}, v30
    """)
    for i in range(4): a(f"ds_read_b128 {vr(32+4*i,4)}, v31 offset:{i*32}")
    for i in range(4): a(f"ds_read_b128 {vr(48+4*i,4)}, v30 offset:{i*32}")
    def norm_pair_tok(accreg, csreg, ab, tmp):
        return (f"v_pk_mul_f32 {vr(tmp,2)}, {vr(csreg,2)}, {vr(ab,2)} op_sel:[0,1] op_sel_hi:[1,1]\n"
                f"v_pk_fma_f32 {vr(accreg,2)}, {vr(accreg,2)}, {vr(ab,2)}, {vr(tmp,2)} op_sel:[0,0,0] op_sel_hi:[1,0,1]\n")
    a(f"""
    s_cmp_lt_u32 s{sCT}, 5
    s_cselect_b32 s{sScale}, {hexf(QSCALE)}, 1.0
    s_cselect_b32 s{sXG}, {QF_OFF}, {KF_OFF}
    s_cselect_b32 s3, 0, 5
    s_sub_u32 s3, s{sCT}, s3
    s_lshl_b32 s3, s3, 4
    s_lshl_b32 s{sT0}, s{sWN}, 3
    s_add_u32 s3, s3, s{sT0}
    s_mul_i32 s{sT0}, s{sST}, 80
    s_add_u32 s3, s3, s{sT0}
    s_lshl_b32 s3, s3, 9
    s_add_u32 s{sXG}, s{sXG}, s3
    v_lshlrev_b32 v{vEA}, 4, v192
    v_lshl_add_u32 v{vEA}, v193, 9, v{vEA}
    s_waitcnt vmcnt(0)
    """)
    for r in range(4): a(f"v_mul_f32 v{vAB+r}, s{sScale}, v{vAB+r}")
    a(f"""
    s_cmp_ge_u32 s{sCT}, 15
    s_cbranch_scc1 L_{name}_epiH
    s_waitcnt lgkmcnt(0)
    """)
    for ft in range(2):
        for tt in range(2):
            ab = vAB + 2*tt
            a(f"""
            s_xor_b32 s{sT0}, s{sFA}, {ft}
            s_lshl_b32 s{sT0}, s{sT0}, 11
            s_add_u32 s{sT0}, s{sT0}, s{sXG}
            """)
            if tt: a(f"s_add_u32 s{sT0}, s{sT0}, {80*512}")
            for half in range(2):
                A0 = ACC(ft,tt) + 8*half
                for i in range(2):
                    A = A0 + 4*i; C = 32 + ft*16 + 8*half + 4*i
                    a(norm_pair_tok(A, C, ab, 28)); a(norm_pair_tok(A+2, C+2, ab, 30))
                for p in range(4): a(f"v_cvt_pk_bf16_f32 v{A0+p}, v{A0+2*p}, v{A0+2*p+1}")
                a(f"s_nop 0\nv_permlane32_swap_b32 v{A0}, v{A0+2}\nv_permlane32_swap_b32 v{A0+1}, v{A0+3}")
                a(f"buffer_store_dwordx4 {vr(A0,4)}, v{vEA}, s[28:31], s{sT0} offen offset:{half*1024}{ST}")
    a(f"s_branch L_{name}_end")
    a(f"L_{name}_epiH:")
    a(f"""
    s_mul_i32 s{sT0}, s{sST}, 96
    s_sub_u32 s3, s{sCT}, 15
    s_lshl_b32 s3, s3, 3
    s_add_u32 s{sT0}, s{sT0}, s3
    s_lshl_b32 s3, s{sWN}, 2
    s_add_u32 s{sT0}, s{sT0}, s3
    s_lshl_b32 s{sT0}, s{sT0}, 10
    s_add_u32 s{sXG}, s{sT0}, {HF_OFF}
    v_lshlrev_b32 v4, 4, v{vLane}
    s_waitcnt lgkmcnt(0)
    """)
    for ft in range(2):
        for tt in range(2):
            ab = vAB + 2*tt
            a(f"""
            s_xor_b32 s{sT0}, s{sFA}, {ft}
            s_lshl_b32 s{sT0}, s{sT0}, 11
            s_add_u32 s{sT0}, s{sT0}, s{sXG}
            s_add_u32 s{sT0}, s{sT0}, {tt*96*1024}
            """)
            for half in range(2):
                A0 = ACC(ft,tt) + 8*half
                for i in range(2):
                    A = A0 + 4*i; C = 32 + ft*16 + 8*half + 4*i
                    a(norm_pair_tok(A, C, ab, 28)); a(norm_pair_tok(A+2, C+2, ab, 30))
                for p in range(4):
                    a(f"v_cvt_pk_bf16_f32 v{A0+p}, v{A0+2*p}, v{A0+2*p+1}")
                for p in range(4):
                    a(f"v_pk_max_i16 v{A0+p}, v{A0+p}, 0")
                a(f"buffer_store_dwordx4 {vr(A0,4)}, v4, s[28:31], s{sT0} offen offset:{half*1024}{ST}")
    a(f"s_branch L_{name}_end")
    a(f"L_{name}_epiV:")
    a(f"""
    s_lshl_b32 s{sT0}, s{sWN}, 6
    v_add_u32 v30, s{sT0}, v192
    v_lshlrev_b32 v30, 2, v30
    v_add_u32 v30, {CSL}, v30
    s_lshl_b32 s{sT1}, s{sFA}, 7
    v_add_u32 v31, s{sT1}, v30
    s_xor_b32 s{sT1}, s{sT1}, 128
    v_add_u32 v30, s{sT1}, v30
    ds_read_b32 v24, v31
    ds_read_b32 v26, v30
    s_mul_i32 s{sT0}, s{sST}, 1280
    s_add_u32 s{sXG}, s{sT0}, {VF_OFF}
    s_waitcnt vmcnt(0) lgkmcnt(0)
    """)
    for tt in range(2):
        if tt == 1: a(f"s_add_u32 s{sXG}, s{sXG}, 1280")
        for ft in range(2):
            cs = 24 + 2*ft
            A0 = ACC(ft,tt)
            for p in range(8):
                A = A0 + 2*p
                tmp = 28 + 2*(p & 1)
                a(f"v_pk_mul_f32 {vr(tmp,2)}, {vr(VST+32*tt+16+2*p,2)}, {vr(cs,2)} op_sel:[0,0] op_sel_hi:[1,0]")
                a(f"v_pk_fma_f32 {vr(A,2)}, {vr(A,2)}, {vr(VST+32*tt+2*p,2)}, {vr(tmp,2)}")
            for p in range(8): a(f"v_cvt_pk_bf16_f32 v{A0+p}, v{A0+2*p}, v{A0+2*p+1}")
            a(f"buffer_store_dwordx4 {vr(A0,4)}, v{vEA+ft}, s[28:31], s{sXG} offen{ST}")
            a(f"buffer_store_dwordx4 {vr(A0+4,4)}, v{vEA+ft}, s[28:31], s{sXG} offen offset:640{ST}")
    a(f"s_branch L_{name}_end")
    a(f"L_{name}_spare:")
    if E("NOSPARE"): a(f"s_branch L_{name}_exit")
    a(f"""
    s_and_b32 s{sT0}, s2, 7
    s_lshr_b32 s{sT1}, s2, 3
    s_cmp_ge_u32 s{sT1}, 28
    s_cbranch_scc1 L_{name}_sp1
    s_sub_u32 s{sT0}, s{sT0}, 6
    s_lshl_b32 s{sT0}, s{sT0}, 2
    s_add_u32 s{sT0}, s{sT0}, s{sT1}
    s_add_u32 s{sST}, s{sT0}, 8
    s_branch L_{name}_sp2
    L_{name}_sp1:
    s_lshl_b32 s{sT0}, s{sT0}, 2
    s_add_u32 s{sT0}, s{sT0}, s{sT1}
    s_sub_u32 s{sST}, s{sT0}, 28
    L_{name}_sp2:
    v_mov_b32 v20, 0
    v_mov_b32 v21, 0
    v_mov_b32 v22, 0
    v_lshrrev_b32 v4, 4, v{vLane}
    v_and_b32 v5, 15, v{vLane}
    v_mul_u32_u24 v6, 1280, v4
    v_lshl_add_u32 v6, v5, 4, v6
    s_waitcnt lgkmcnt(0)
    """)
    a(srd(28, "s16", "s17", WS_SIZE))
    a(srd(DBG, "s18", "s19", 256))
    if fused and E("CPF", "1") == "1":
        a(f"""
        s_and_b32 s3, s{sST}, 3
        s_cmp_lg_u32 s3, 0
        s_cbranch_scc1 L_{name}_nocpf
        s_cmp_ge_u32 s{sST}, 32
        s_cbranch_scc1 L_{name}_nocpf
        s_cmp_ge_u32 s{sW}, 4
        s_cbranch_scc1 L_{name}_nocpf
        """)
        a(code_prefetch("a", sym, sym, sW, 0, 4, 25))
        a(f"L_{name}_nocpf:")
    if E("TLBW", "0") == "1":
        a(f"""
        s_load_dwordx2 s[62:63], s[0:1], 48
        v_and_b32 v7, 15, v{vLane}
        v_lshlrev_b32 v7, 21, v7
        v_min_u32 v7, {WS_SIZE-4}, v7
        buffer_load_dword v25, v7, s[28:31], 0 offen
        s_waitcnt lgkmcnt(0)
        """)
        a(srd(20, "s62", "s63", S*D*2))
        a(f"""
        v_and_b32 v7, 1, v{vLane}
        v_lshlrev_b32 v7, 21, v7
        buffer_load_dword v26, v7, s[20:23], 0 offen
        """)
    if fused:
        a(f"""
        s_cmp_lg_u32 s{sST}, 39
        s_cbranch_scc1 L_{name}_noinit
        s_cmp_ge_u32 s{sW}, 2
        s_cbranch_scc1 L_{name}_init1
        v_lshlrev_b32 v7, 8, v0
        v_mov_b32 v8, 0
        s_mov_b32 s3, {FLG_OFF}
        buffer_store_dword v8, v7, s[28:31], s3 offen sc0 sc1
        s_waitcnt vmcnt(0)
        L_{name}_init1:
        s_barrier
        s_cmp_lg_u32 s{sW}, 0
        s_cbranch_scc1 L_{name}_noinit
        v_lshlrev_b32 v7, 2, v{vLane}
        v_mov_b32 v8, 1
        s_mov_b64 exec, 0xff
        buffer_atomic_add v8, v7, s[{DBG}:{DBG+3}], 0 offen sc1
        s_mov_b64 exec, -1
        L_{name}_noinit:
        """)
    a(f"""
    s_cmp_ge_u32 s{sST}, 32
    s_cbranch_scc1 L_{name}_relay
    """)
    a(srd(20, "s4", "s5", S*D*2))
    a(f"""
    s_lshl_b32 s{sT0}, s{sST}, 6
    s_lshl_b32 s{sT1}, s{sW}, 3
    s_add_u32 s{sT0}, s{sT0}, s{sT1}
    s_mul_i32 s{sXG}, s{sT0}, 1280
    s_add_u32 s{sWG}, s{sXG}, {4*1280}
    """)
    SPF = E("SPF", "1") == "1"
    def pf():
        if not SPF: return ""
        return "global_load_dword v24, v[20:21], off\nv_add_co_u32 v20, vcc, v22, v20\ns_nop 1\nv_addc_co_u32 v21, vcc, 0, v21, vcc\n"
    if SPF:
        a(f"""
        s_and_b32 s3, s{sST}, 3
        s_lshl_b32 s3, s3, 3
        s_add_u32 s3, s3, s{sW}
        s_cmp_ge_u32 s3, 16
        s_cbranch_scc1 L_{name}_pfw
        v_lshl_add_u32 v20, s3, 6, v{vLane}
        s_and_b32 s3, s2, 1
        s_lshl_b32 s3, s3, 10
        v_add_u32 v20, s3, v20
        v_mul_u32_u24 v20, 1280, v20
        v_add_u32 v20, {3*128}, v20
        v_mov_b32 v22, 128
        v_mov_b32 v18, s4
        v_mov_b32 v21, s5
        s_branch L_{name}_pfa
        L_{name}_pfw:
        s_sub_u32 s3, s3, 16
        s_min_u32 s3, s3, 13
        v_lshl_add_u32 v16, s3, 6, v{vLane}
        v_mul_u32_u24 v17, 4682, v16
        v_lshrrev_b32 v17, 16, v17
        v_mul_u32_u24 v18, 14, v17
        v_sub_u32 v16, v16, v18
        s_bfe_u32 s3, s2, 0x20001
        {"s_lshl_b32 s3, s3, 3" if E("REMAP", "0") == "1" else "s_mul_i32 s3, s3, 14"}
        {"s_lshr_b32 s3, 0x1c280e00, s3" if E("REMAP", "0") == "1" else ""}
        {"s_and_b32 s3, s3, 0xff" if E("REMAP", "0") == "1" else ""}
        v_add_u32 v16, s3, v16
        v_min_u32 v16, 53, v16
        v_lshlrev_b32 v16, 7, v16
        v_add_u32 v17, {3*64}, v17
        v_cmp_gt_u32 vcc, 3840, v16
        v_mul_u32_u24 v18, 3840, v17
        v_mul_u32_u24 v19, 3072, v17
        v_add_u32 v18, v18, v16
        v_add_u32 v19, v19, v16
        v_subrev_u32 v19, 3840, v19
        v_cndmask_b32 v20, v19, v18, vcc
        v_mov_b32 v18, s12
        v_mov_b32 v21, s13
        v_mov_b32 v16, s6
        v_mov_b32 v17, s7
        v_cndmask_b32 v18, v18, v16, vcc
        v_cndmask_b32 v21, v21, v17, vcc
        v_mov_b32 v22, {64*3072}
        v_mov_b32 v16, {64*3840}
        v_cndmask_b32 v22, v22, v16, vcc
        L_{name}_pfa:
        v_add_co_u32 v20, vcc, v18, v20
        s_nop 1
        v_addc_co_u32 v21, vcc, 0, v21, vcc
        """)
        a(pf() * int(E("NPF1", "1")))
    for g in range(2):
        for i in range(5):
            a(f"buffer_load_dwordx4 {vr(32+20*g+4*i,4)}, v6, s[20:23], s{sXG if g==0 else sWG} offen offset:{i*256}")
    EARLY = E("EARLY", "1") == "1"
    if EARLY:
        a(f"""
        s_cmp_lt_u32 s{sST}, 8
        s_cbranch_scc1 L_{name}_noearly
        v_lshlrev_b32 v2, 4, v{vLane}
        s_lshl_b32 s{sM0X}, s{sW}, 10
        s_sub_u32 s3, s{sST}, 8
        s_mul_i32 s{sWB}, s3, 81920
        """)
        a(srd(24, "s14", "s15", 1536*1280))
        for j in range(10):
            a(f"""
            s_add_u32 s3, s{sM0X}, {j*8192}
            s_mov_b32 m0, s3
            s_add_u32 s3, s3, s{sWB}
            buffer_load_dwordx4 v2, s[24:27], s3 offen lds
            """)
        a(f"""
        s_waitcnt vmcnt(10)
        s_branch L_{name}_early1
        L_{name}_noearly:
        s_waitcnt vmcnt(0)
        L_{name}_early1:
        """)
    for g in range(2):
        if not EARLY: a(f"s_waitcnt vmcnt({5 if g == 0 else 0})")
        su, sq = 8 + 4*g, 10 + 4*g
        a(f"v_mov_b32 v{su}, 0\nv_mov_b32 v{su+1}, 0\nv_mov_b32 v{sq}, 0\nv_mov_b32 v{sq+1}, 0")
        for r in range(20):
            x = 32 + 20*g + r; t = 16 + 2*(r & 1)
            a(f"v_lshlrev_b32 v{t}, 16, v{x}\nv_and_b32 v{t+1}, 0xffff0000, v{x}")
            a(f"v_pk_add_f32 {vr(su,2)}, {vr(su,2)}, {vr(t,2)}\nv_pk_fma_f32 {vr(sq,2)}, {vr(t,2)}, {vr(t,2)}, {vr(sq,2)}")
        a(f"v_add_f32 v{su}, v{su}, v{su+1}\nv_add_f32 v{sq}, v{sq}, v{sq+1}")
    for sh in (8, 4, 2, 1):
        a("s_nop 1")
        for r in (8, 10, 12, 14):
            a(f"v_add_f32_dpp v{r}, v{r}, v{r} row_ror:{sh} row_mask:0xf bank_mask:0xf")
    a(f"s_mov_b32 s{sT1}, {hexf(1.0/640)}")
    for g in range(2):
        su, sq = 8 + 4*g, 10 + 4*g
        a(f"""
        v_mul_f32 v{su}, s{sT1}, v{su}
        v_mul_f32 v{sq}, s{sT1}, v{sq}
        v_fma_f32 v{sq}, -v{su}, v{su}, v{sq}
        v_max_f32 v{sq}, 0, v{sq}
        v_add_f32 v{sq}, {hexf(1e-5)}, v{sq}
        v_rsq_f32 v{sq}, v{sq}
        s_nop 0
        v_mul_f32 v{su}, v{su}, v{sq}
        v_sub_f32 v{su}, 0, v{su}
        """)
    a(f"""
    v_lshlrev_b32 v7, 2, v4
    s_lshl_b32 s{sT0}, s{sT0}, 2
    s_add_u32 s{sT0}, s{sT0}, {STA_OFF}
    s_add_u32 s{sT1}, s{sT0}, 8192
    s_mov_b32 s60, 0x00010001
    s_mov_b32 s61, 0x00010001
    s_mov_b64 exec, s[60:61]
    buffer_store_dword v10, v7, s[28:31], s{sT0} offen sc0 sc1
    buffer_store_dword v8, v7, s[28:31], s{sT1} offen sc0 sc1
    buffer_store_dword v14, v7, s[28:31], s{sT0} offen offset:16 sc0 sc1
    buffer_store_dword v12, v7, s[28:31], s{sT1} offen offset:16 sc0 sc1
    s_mov_b64 exec, -1
    s_waitcnt vmcnt(0)
    s_barrier
    """)
    a(f"""
    s_cmp_lg_u32 s{sW}, 0
    s_cbranch_scc1 L_{name}_relay
    s_lshr_b32 s{sT0}, s{sST}, 2
    s_lshl_b32 s{sT0}, s{sT0}, 2
    v_mov_b32 v7, s{sT0}
    v_mov_b32 v8, 1
    s_mov_b64 exec, 1
    buffer_atomic_add v8, v7, s[{DBG}:{DBG+3}], 0 offen sc1
    s_mov_b64 exec, -1
    L_{name}_relay:
    """)
    if not fused:
        a(f"""
        s_cmp_lg_u32 s{sST}, 39
        s_cbranch_scc1 L_{name}_nz
        v_and_b32 v7, 63, v0
        v_lshlrev_b32 v7, 8, v7
        v_mov_b32 v8, 0
        s_mov_b32 s{sT0}, {FLG_OFF}
        buffer_store_dword v8, v7, s[28:31], s{sT0} offen
        L_{name}_nz:
        """)
    NP2 = (7 - int(E("NPF1", "1"))) if SPF else 0
    a(f"""
    s_cmp_ge_u32 s{sST}, 8
    s_cbranch_scc1 L_{name}_rjob
    """)
    a(pf() * NP2)
    a(f"""
    s_branch {("L_" + name + "_sdone") if fused else ("L_" + name + "_exit")}
    L_{name}_rjob:
    s_sub_u32 s{sST}, s{sST}, 8
    v_lshlrev_b32 v2, 4, v{vLane}
    v_lshrrev_b32 v10, 5, v{vLane}
    v_and_b32 v5, 15, v{vLane}
    v_lshrrev_b32 v6, 2, v5
    v_and_b32 v5, 3, v5
    v_lshlrev_b32 v5, 3, v5
    v_bfe_u32 v11, v{vLane}, 4, 1
    v_lshl_add_u32 v11, v11, 5, v5
    s_lshl_b32 s{sT1}, s{sW}, 10
    s_cmp_ge_u32 s{sST}, 24
    s_cbranch_scc1 L_{name}_rwo
    """)
    if not EARLY:
        a(srd(20, "s14", "s15", 1536*1280))
        a(f"s_mul_i32 s{sWG}, s{sST}, 81920")
        for j in range(10):
            a(f"""
            s_add_u32 s{sT0}, s{sT1}, {j*8192}
            s_mov_b32 m0, s{sT0}
            s_add_u32 s{sT0}, s{sT0}, s{sWG}
            buffer_load_dwordx4 v2, s[20:23], s{sT0} offen lds
            """)
    a(pf() * NP2)
    a(f"""
    v_lshl_add_u32 v4, v10, 2, v6
    v_mul_u32_u24 v4, 1280, v4
    v_add_u32 v4, v4, v11
    s_lshr_b32 s{sT0}, s{sW}, 1
    s_mul_i32 s{sT1}, s{sT0}, 20480
    s_and_b32 s{sFA}, s{sW}, 1
    s_mul_i32 s{sFA}, s{sFA}, 10
    s_lshl_b32 s{sLD}, s{sFA}, 6
    s_add_u32 s{sT1}, s{sT1}, s{sLD}
    v_add_u32 v4, s{sT1}, v4
    v_add_u32 v5, {8*1280}, v4
    s_lshl_b32 s3, s{sST}, 2
    s_add_u32 s3, s3, s{sT0}
    s_mul_i32 s3, s3, 20
    s_add_u32 s3, s3, s{sFA}
    s_lshl_b32 s3, s3, 10
    s_add_u32 s{sXG}, s3, {W2F_OFF}
    {"s_nop 0" if EARLY else "s_waitcnt vmcnt(" + str(NP2) + ")"}
    {"s_nop 0" if EARLY else "s_barrier"}
    """)
    for j in range(10):
        a(f"ds_read_b64_tr_b16 {vr(32+4*j,2)}, v4 offset:{j*64}\nds_read_b64_tr_b16 {vr(34+4*j,2)}, v5 offset:{j*64}")
    a("s_waitcnt lgkmcnt(0)")
    for j in range(10):
        a(f"buffer_store_dwordx4 {vr(32+4*j,4)}, v2, s[28:31], s{sXG} offen{ST}")
        if j < 9: a(f"s_add_u32 s{sXG}, s{sXG}, 1024")
    a(f"s_branch {DONE}")
    a(f"L_{name}_rwo:")
    a(srd(20, "s8", "s9", 640*1280))
    a(f"s_sub_u32 s{sST}, s{sST}, 24\ns_mul_i32 s{sWG}, s{sST}, 102400")
    for j in range(13):
        if j == 12:
            a(f"s_cmp_ge_u32 s{sW}, 4\ns_cbranch_scc1 L_{name}_rwo1")
        a(f"""
        s_add_u32 s{sT0}, s{sT1}, {j*8192}
        s_mov_b32 m0, s{sT0}
        s_add_u32 s{sT0}, s{sT0}, s{sWG}
        buffer_load_dwordx4 v2, s[20:23], s{sT0} offen lds
        """)
    a(f"L_{name}_rwo1:")
    base0 = [0, 8, 20, 28, 16]; base1 = [4, 12, 24, 32, 36]
    a("s_waitcnt vmcnt(0)\ns_barrier")
    a(f"s_mov_b32 s{sDX}, 0")
    a(f"""
    L_{name}_rwl:
    s_lshl_b32 s{sT0}, s{sDX}, 3
    s_add_u32 s{sT0}, s{sT0}, s{sW}
    s_cmp_ge_u32 s{sT0}, 100
    s_cbranch_scc1 {DONE}
    s_mul_i32 s{sT1}, s{sT0}, 3277
    s_lshr_b32 s{sT1}, s{sT1}, 16
    s_mul_i32 s3, s{sT1}, 20
    s_sub_u32 s3, s{sT0}, s3
    s_mul_i32 s{sXG}, s{sST}, 100
    s_add_u32 s{sXG}, s{sXG}, s{sT0}
    s_lshl_b32 s{sXG}, s{sXG}, 10
    s_add_u32 s{sXG}, s{sXG}, {WOF_OFF}
    s_lshl_b32 s3, s3, 6
    s_lshl_b32 s{sT1}, s{sT1}, 1
    v_add_u32 v7, s{sT1}, v10
    v_mul_u32_u24 v8, 52429, v7
    v_lshrrev_b32 v8, 18, v8
    v_mul_u32_u24 v9, 5, v8
    v_sub_u32 v9, v7, v9
    v_mul_u32_u24 v8, 40, v8
    v_lshlrev_b32 v12, 3, v9
    v_cmp_lt_u32 vcc, 1, v9
    v_add_u32 v13, 4, v12
    s_nop 0
    v_cndmask_b32 v12, v12, v13, vcc
    v_cmp_eq_u32 vcc, 4, v9
    v_add_u32 v13, 4, v12
    v_mov_b32 v14, 36
    v_cndmask_b32 v12, v12, 16, vcc
    v_cndmask_b32 v13, v13, v14, vcc
    v_add3_u32 v12, v12, v8, v6
    v_add3_u32 v13, v13, v8, v6
    v_mul_u32_u24 v12, 1280, v12
    v_mul_u32_u24 v13, 1280, v13
    v_add3_u32 v12, v12, v11, s3
    v_add3_u32 v13, v13, v11, s3
    ds_read_b64_tr_b16 v[32:33], v12
    ds_read_b64_tr_b16 v[34:35], v13
    s_add_u32 s{sDX}, s{sDX}, 1
    s_waitcnt lgkmcnt(0)
    buffer_store_dwordx4 v[32:35], v2, s[28:31], s{sXG} offen{ST}
    s_nop 1
    s_branch L_{name}_rwl
    """)
    if fused:
        a(f"""
        L_{name}_sdone:
        s_mov_b32 s{sKS}, 0
        s_branch L_{name}_spoll
        {DONE}:
        s_mov_b32 s{sKS}, 1
        L_{name}_spoll:
        s_waitcnt vmcnt(0)
        s_barrier
        s_cmp_lg_u32 s{sW}, 0
        s_cbranch_scc1 L_{name}_sbar
        v_mov_b32 v7, 0
        s_mov_b32 s{sT1}, 0
        L_{name}_ipoll:
        buffer_load_dword v8, v7, s[{DBG}:{DBG+3}], 0 offen sc1
        s_add_u32 s{sT1}, s{sT1}, 1
        s_waitcnt vmcnt(0)
        v_readfirstlane_b32 s{sT0}, v8
        s_cmp_ge_u32 s{sT0}, {NSTAT}
        s_cbranch_scc1 L_{name}_igot
        s_cmp_ge_u32 s{sT1}, 0x40000
        s_cbranch_scc1 L_{name}_igot
        s_sleep 8
        s_branch L_{name}_ipoll
        L_{name}_igot:
        s_cmp_eq_u32 s{sKS}, 0
        s_cbranch_scc1 L_{name}_sbar
        v_lshlrev_b32 v7, 8, v{vLane}
        v_mov_b32 v8, 1
        s_mov_b32 s3, {FLG_OFF + 88*256}
        s_mov_b64 exec, 0xff
        buffer_atomic_add v8, v7, s[28:31], s3 offen sc1
        s_mov_b64 exec, -1
        L_{name}_sbar:
        s_barrier
        s_branch {fused}
        """)
    a(f"L_{name}_end:")
    if DIAG:
        a(stamp(4)); a("s_waitcnt vmcnt(0)"); a(stamp(5)); a(stamp_flush(0, 8, 28))
    if fused:
        a(f"""
        s_waitcnt vmcnt(0)
        s_barrier
        s_cmp_lg_u32 s{sW}, 0
        s_cbranch_scc1 {fused}
        s_add_u32 s{sT0}, s{sCT}, 64
        s_add_u32 s{sT1}, s{sTB}, 80
        s_cmp_ge_u32 s{sCT}, 15
        s_cselect_b32 s{sT0}, s{sT1}, s{sT0}
        s_lshl_b32 s{sT0}, s{sT0}, 8
        s_add_u32 s{sT0}, s{sT0}, {FLG_OFF}
        v_mov_b32 v7, 0
        v_mov_b32 v8, 1
        s_mov_b64 exec, 1
        buffer_atomic_add v8, v7, s[28:31], s{sT0} offen sc1
        s_mov_b64 exec, -1
        s_branch {fused}
        """)
    a(f"L_{name}_exit:\ns_endpgm")
    if not fused: a(kernel_desc(name, 200))
    return a.text()
```

```python
from common import *
from ffn_parts import *
SLOT = 22528
ONES = 3*SLOT
PART = ONES + 10240
K2_LDS = PART + 4*PBUF
ST = " sc0 sc1" if E("WT", "0") == "1" else ""
def k2(name, fused=None):
    a = Asm()
    SC = " sc1" if fused else ""
    if fused: a(f"{fused}:\ns_waitcnt vmcnt(0)")
    else: a(kernel_head(name))
    sW, sHead, sT, sF, sC, sT0, sT1, sSlot, sCQ, sOdd = 32, 33, 34, 35, 36, 37, 38, 39, 44, 45
    sMaskV = 40
    sOk = 42
    sKG, sK2G, sVG, sA, sB, sBW, sTF, sFQ, sPass = 46, 47, 48, 49, 50, 51, 52, 53, 54
    vLane, vL16 = 1, 2
    if not fused:
        a(f"""
        s_cmp_ge_u32 s2, 256
        s_cbranch_scc1 L_{name}_exit
        """)
    a(stamp(0))
    a(f"""
    s_load_dwordx2 s[4:5], s[0:1], 64
    s_load_dwordx2 s[6:7], s[0:1], 0
    s_load_dwordx4 s[12:15], s[0:1], 48
    v_lshrrev_b32 v2, 6, v0
    v_and_b32 v{vLane}, 63, v0
    v_readfirstlane_b32 s{sW}, v2
    s_and_b32 s{sT0}, s2, 7
    s_lshr_b32 s{sT1}, s2, 3
    s_lshl_b32 s{sHead}, s{sT0}, 2
    s_and_b32 s3, s{sT1}, 3
    s_add_u32 s{sHead}, s{sHead}, s3
    s_mul_i32 s{sF}, s{sHead}, 5
    s_add_u32 s{sF}, s{sF}, 1
    s_lshr_b32 s{sF}, s{sF}, 1
    s_and_b32 s{sOdd}, s{sHead}, 1
    s_cmp_eq_u32 s{sOdd}, 0
    s_cselect_b32 s3, 2, -1
    s_add_u32 s{sCQ}, s{sF}, s3
    s_lshl_b32 s{sF}, s{sF}, 9
    s_lshl_b32 s{sCQ}, s{sCQ}, 9
    s_lshl_b32 s{sOdd}, s{sOdd}, 3
    v_lshlrev_b32 v{vL16}, 4, v{vLane}
    v_and_b32 v3, 31, v{vLane}
    v_lshrrev_b32 v11, 5, v{vLane}
    s_cmp_ge_u32 s{sW}, 4
    s_cbranch_scc1 L_{name}_bg
    """)
    vK1, vK2, vV, vM01 = 4, 5, 6, 7
    Q1 = [12, 16]; Q2 = [20, 22]
    K1 = [24, 28]; K2 = [32, 34]; V1 = [36, 40]; V2 = [44, 48]; P1, P2 = 52, 56
    SS = [64, 80]; O = [96, 112]; CM = [128, 144]
    a(f"""
    s_lshr_b32 s{sT}, s{sT1}, 2
    s_lshl_b32 s{sT}, s{sT}, 3
    s_lshl_b32 s3, s{sW}, 1
    s_add_u32 s{sT}, s{sT}, s3
    v_lshlrev_b32 v{vK2}, 4, v3
    v_lshl_add_u32 v{vK1}, v11, 9, v{vK2}
    v_add_u32 v{vK2}, s{sOdd}, v{vK2}
    s_mul_i32 s3, s{sT}, 40960
    s_add_u32 s{sT0}, s3, s{sF}
    s_add_u32 s{sT1}, s3, s{sCQ}
    v_mov_b32 v{Q2[0]}, 0
    v_mov_b32 v{Q2[0]+1}, 0
    v_mov_b32 v{Q2[1]}, 0
    v_mov_b32 v{Q2[1]+1}, 0
    s_waitcnt lgkmcnt(0)
    """)
    a(srd(8, "s4", "s5", WS_SIZE))
    a(f"""
    s_add_u32 s{sA}, s{sT0}, 40960
    s_add_u32 s{sB}, s{sT1}, 40960
    {"s_barrier" if fused else ""}
    buffer_load_dwordx4 {vr(Q1[0],4)}, v{vK1}, s[8:11], s{sT0} offen{SC}
    buffer_load_dwordx4 {vr(Q1[1],4)}, v{vK1}, s[8:11], s{sA} offen{SC}
    s_mov_b64 exec, 0xffffffff
    buffer_load_dwordx2 {vr(Q2[0],2)}, v{vK2}, s[8:11], s{sT1} offen{SC}
    buffer_load_dwordx2 {vr(Q2[1],2)}, v{vK2}, s[8:11], s{sB} offen{SC}
    s_mov_b64 exec, -1
    s_setprio {E('APRIO', '2')}
    s_mov_b32 s{sMaskV}, 0x000fffff
    s_mov_b32 s{sMaskV+1}, 0x000fffff
    v_mul_u32_u24 v{vV}, 320, v11
    v_lshl_add_u32 v{vV}, v3, 4, v{vV}
    v_cmp_eq_u32 vcc, 20, v3
    v_mov_b32 v11, {ONES-12288+(0 if E('ONESALL') else 16)}
    v_mov_b32 v8, {ONES-12288}
    v_cndmask_b32 v11, v11, v8, vcc
    v_cmp_gt_u32 vcc, 20, v3
    v_mov_b32 v{vM01}, 0
    s_nop 0
    v_cndmask_b32 v{vV}, v11, v{vV}, vcc
    v_cndmask_b32 v{vM01}, v{vM01}, 1, vcc
    """)
    for r in range(4): a(f"v_mov_b32 v{V2[1]+r}, 0\nv_mov_b32 v{P2+r}, 0")
    for q in range(2):
        for r in range(16): a(f"v_mov_b32 v{O[q]+r}, 0")
    a(f"""
    s_mov_b32 s{sC}, 0
    s_mov_b32 s{sSlot}, 0
    s_waitcnt vmcnt(0)
    s_barrier
    """)
    a(stamp(1))
    def rd_k1(p, j): return f"ds_read_b128 {vr(K1[p],4)}, v{vK1} offset:{j*1024}\n"
    def rd_k2(p, j): return f"ds_read_b64 {vr(K2[p],2)}, v{vK2} offset:{8192+j*512}\n"
    def rd_v1(p, j): return f"ds_read_b128 {vr(V1[p],4)}, v{vV} offset:{12288+j*1280}\n"
    def rd_v2(p, j): return f"ds_read_b128 {vr(V2[p],4)}, v{vV} offset:{12288+j*1280+640}\n"
    a(rd_k1(0,0) + rd_k2(0,0) + rd_v1(0,0) + rd_v2(0,0))
    a("s_waitcnt lgkmcnt(2)")
    for q in range(2): a(mfma(SS[q], K1[0], Q1[q], "0"))
    for q in range(2): a(mfma8(SS[q], K2[0], Q2[q]))
    a("s_nop 10")
    for q in range(2):
        S0 = SS[q]; t = 3 if q == 0 else 11
        a(f"v_max3_f32 v{t}, v{S0}, v{S0+1}, v{S0+2}")
        for r in range(3, 15, 2): a(f"v_max3_f32 v{t}, v{t}, v{S0+r}, v{S0+r+1}")
        a(f"v_max_f32 v{t}, v{t}, v{S0+15}")
    a(f"""
    v_mov_b32 v{P1}, v3
    v_mov_b32 v{P1+1}, v11
    s_nop 1
    v_permlane32_swap_b32 v3, v{P1}
    v_permlane32_swap_b32 v11, v{P1+1}
    v_max_f32 v3, v3, v{P1}
    v_max_f32 v11, v11, v{P1+1}
    """)
    for r in range(16): a(f"v_sub_f32 v{CM[0]+r}, 0, v3")
    for r in range(16): a(f"v_sub_f32 v{CM[1]+r}, 0, v11")
    a("s_waitcnt lgkmcnt(0)\ns_nop 0")
    a(mfma(SS[0], K1[0], Q1[0], CM[0])); a(mfma8(SS[0], K2[0], Q2[0]))
    a("s_nop 11")
    a(stamp(2))
    if E("CHUNKST"): a(f"v_mov_b32 v250, 0\nv_lshlrev_b32 v249, 2, v{vLane}")
    L = f"L_{name}_loop"
    if E("INSTREAM"): a(f"s_mov_b32 s{sT1}, {HF_OFF}")
    al = E("ALIGN", "0")
    if al != "0": a(".p2align 6")
    if al == "3": a("s_nop 0")
    a(f"{L}:")
    if E("CHUNKST"): a(f"s_memtime s[84:85]\ns_waitcnt lgkmcnt(0)\ns_mov_b32 m0, s{sC}\ns_nop 0\nv_writelane_b32 v250, s84, m0")
    for n in range(16):
        j, q = n >> 1, n & 1
        p, pn = j & 1, (j + 1) & 1
        Sc, qn = SS[q], 1 - q
        Sn = SS[qn]
        def e(r): return f"v_exp_f32 v{Sc+r}, v{Sc+r}\n"
        def c(P, i, r): return f"v_cvt_pk_bf16_f32 v{P+i}, v{Sc+r}, v{Sc+r+1}\n"
        nx = (j + 1) & 7
        if q == 1: a("s_waitcnt lgkmcnt(0)" + ("\ns_nop 0" if E("ALIGN") == "2" else ""))
        kq = p if q == 0 else pn
        INS = E("INSTREAM")
        def rds():
            if q != 0: return ""
            t = ""
            if j == 7:
                t += f"""
                s_barrier
                s_cmp_eq_u32 s{sSlot}, 2
                s_cselect_b32 s{sT0}, {(-2*SLOT) & 0xffffffff}, {SLOT}
                s_cselect_b32 s{sSlot}, -1, s{sSlot}
                s_add_u32 s{sSlot}, s{sSlot}, 1
                v_add_u32 v{vK1}, s{sT0}, v{vK1}
                v_add_u32 v{vK2}, s{sT0}, v{vK2}
                v_mad_i32_i24 v{vV}, v{vM01}, s{sT0}, v{vV}
                """
            return t + rd_k1(pn, nx) + rd_k2(pn, nx) + rd_v1(pn, nx) + rd_v2(pn, nx)
        if INS and n < 15:
            FA, FF_ = 160, 240
            f = n % 5
            a(mfma(Sn, K1[kq], Q1[qn], CM[qn]))
            a(e(0)+e(1)+e(2)+e(3))
            a(mfma(O[qn], V2[pn if q == 0 else p], P2))
            a(rds())
            a(e(4)+e(5)+e(6)+c(P1,0,0)+c(P1,1,2))
            a(mfma8(Sn, K2[kq], Q2[qn]))
            a(e(7)+e(8)+e(9)+c(P1,2,4)+c(P1,3,6))
            if f == 0 and INS != "2": a("s_waitcnt vmcnt(0)")
            a(mfma(FA + 16*f, FF_, FF_ + 4))
            if f == 0 and INS != "2":
                for k in range(6): a(f"buffer_load_dwordx4 {vr(248, 4)}, v{vL16}, s[8:11], s{sT1} offen offset:{(k%4)*1024}")
            a(e(10)+e(11)+e(12)+c(P2,0,8)+c(P2,1,10))
            a(mfma(O[q], V1[p], P1))
            a(e(13)+e(14)+e(15)+c(P2,2,12)+c(P2,3,14))
        else:
            a(mfma(Sn, K1[kq], Q1[qn], "0" if E("NOCM") else CM[qn]))
            a(e(0)+e(1)+e(2)+e(3)+c(P1,0,0)+c(P1,1,2))
            a(mfma(O[qn], V2[pn if q == 0 else p], P2))
            a(rds())
            a(e(4)+e(5)+e(6)+e(7)+c(P1,2,4)+c(P1,3,6))
            a(mfma8(Sn, K2[kq], Q2[qn]))
            a(e(8)+e(9)+e(10)+e(11)+c(P2,0,8)+c(P2,1,10))
            a(mfma(O[q], V1[p], P1))
            a(e(12)+e(13)+e(14)+e(15)+c(P2,2,12)+c(P2,3,14))
    a(f"""
    s_add_u32 s{sC}, s{sC}, 1
    s_cmp_lt_u32 s{sC}, 8
    s_cbranch_scc1 {L}
    s_nop 0
    """)
    a(mfma(O[1], V2[1], P2))
    if E("CHUNKST"):
        a(f"""
        s_memtime s[84:85]
        s_waitcnt lgkmcnt(0)
        v_writelane_b32 v250, s84, 8
        s_lshl_b32 s3, s2, 2
        s_add_u32 s3, s3, s{sW}
        s_lshl_b32 s3, s3, 8
        s_add_u32 s3, s3, {DIAG_OFF + 0xC0000}
        s_mov_b32 s10, 0x3000000
        s_mov_b64 exec, 0xffff
        buffer_store_dword v250, v2, s[8:11], s3 offen
        s_mov_b64 exec, -1
        """)
    a(stamp(3))
    a(f"""
    s_mov_b32 s{sPass}, 0
    s_lshr_b32 s{sA}, s{sHead}, 1
    s_mul_i32 s{sA}, s{sA}, 5
    s_mul_i32 s3, s{sT}, 80
    s_add_u32 s{sA}, s{sA}, s3
    s_lshl_b32 s{sA}, s{sA}, 9
    s_add_u32 s{sA}, s{sA}, {OF_OFF}
    s_add_u32 s{sB}, s{sA}, s{sOdd}
    s_lshl_b32 s3, s{sOdd}, 7
    s_add_u32 s{sA}, s{sA}, s3
    v_and_b32 v9, 31, v{vLane}
    v_lshrrev_b32 v8, 5, v{vLane}
    v_lshlrev_b32 v9, 4, v9
    v_lshl_add_u32 v8, v8, 9, v9
    s_waitcnt lgkmcnt(0)
    """)
    O0 = O[0]
    a(f"""
    L_{name}_norm:
    v_mov_b32 v3, v{O0+8}
    v_mov_b32 v11, v{O0+8}
    s_mov_b32 s{sT0}, {hexf(2.0**-40)}
    s_mov_b32 s{sT1}, {hexf(2.0**60)}
    v_permlane32_swap_b32 v3, v11
    v_pk_add_f32 v[60:61], {vr(O0,2)}, {vr(O0+2,2)}
    v_rcp_f32 v10, v11
    v_pk_add_f32 v[62:63], {vr(O0+4,2)}, {vr(O0+6,2)}
    v_med3_f32 v3, v11, s{sT0}, v11
    v_pk_add_f32 v[60:61], v[60:61], {vr(O0+8,2)}
    v_pk_add_f32 v[62:63], v[62:63], {vr(O0+10,2)}
    v_min_f32 v3, s{sT1}, v11
    v_max_f32 v3, s{sT0}, v3
    v_pk_add_f32 v[60:61], v[60:61], v[62:63]
    v_cmp_eq_f32 s[{sOk}:{sOk+1}], v3, v11
    v_add_f32 v60, v60, v61
    s_movk_i32 s3, 0x1f8
    v_cmp_class_f32 vcc, v60, s3
    s_and_b64 s[{sOk}:{sOk+1}], s[{sOk}:{sOk+1}], vcc
    s_cmp_eq_u64 s[{sOk}:{sOk+1}], -1
    {"s_nop 0" if E("NOSLOW") else "s_cbranch_scc0 L_"+name+"_slow"}
    L_{name}_fin:
    """)
    for p in range(6): a(f"v_pk_mul_f32 {vr(O0+2*p,2)}, {vr(O0+2*p,2)}, v[10:11] op_sel_hi:[1,0]")
    for p in range(6): a(f"v_cvt_pk_bf16_f32 v{O0+p}, v{O0+2*p}, v{O0+2*p+1}")
    a(f"""
    s_nop 0
    v_permlane32_swap_b32 v{O0}, v{O0+2}
    v_permlane32_swap_b32 v{O0+1}, v{O0+3}
    buffer_store_dwordx4 {vr(O0,4)}, v8, s[8:11], s{sA} offen sc0 sc1
    s_mov_b64 exec, 0xffffffff
    buffer_store_dwordx2 {vr(O0+4,2)}, v9, s[8:11], s{sB} offen offset:2048 sc0 sc1
    s_mov_b64 exec, -1
    s_cmp_lg_u32 s{sPass}, 0
    s_cbranch_scc1 L_{name}_aend
    s_mov_b32 s{sPass}, 1
    s_add_u32 s{sA}, s{sA}, 40960
    s_add_u32 s{sB}, s{sB}, 40960
    """)
    for r in range(12): a(f"v_mov_b32 v{O[0]+r}, v{O[1]+r}")
    for r in range(4): a(f"v_mov_b32 v{Q1[0]+r}, v{Q1[1]+r}")
    for r in range(2): a(f"v_mov_b32 v{Q2[0]+r}, v{Q2[1]+r}")
    a(f"s_branch L_{name}_norm")
    a(f"L_{name}_aend:")
    if DIAG: a(stamp(4))
    a(f"""
    s_lshl_b32 s{sT0}, s{sT}, 8
    s_add_u32 s{sT0}, s{sT0}, {FLG_OFF}
    s_add_u32 s{sT1}, s{sT0}, 256
    v_mov_b32 v8, 0
    v_mov_b32 v9, 1
    s_waitcnt vmcnt(0)
    s_mov_b64 exec, 1
    buffer_atomic_add v9, v8, s[8:11], s{sT0} offen sc1
    buffer_atomic_add v9, v8, s[8:11], s{sT1} offen sc1
    s_mov_b64 exec, -1
    """)
    if DIAG:
        a(stamp(5)); a(stamp_flush(1, 6, 8))
    a("s_endpgm")
    vM, vAl, vTm = 128, 129, 130
    a(f"""
    L_{name}_slow:
    v_and_b32 v10, 31, v{vLane}
    v_lshrrev_b32 v11, 5, v{vLane}
    v_lshlrev_b32 v{vK2}, 4, v10
    v_lshl_add_u32 v{vK1}, v11, 9, v{vK2}
    v_add_u32 v{vK2}, s{sOdd}, v{vK2}
    v_mul_u32_u24 v{vV}, 320, v11
    v_lshl_add_u32 v{vV}, v10, 4, v{vV}
    v_mov_b32 v{vM}, 0xff800000
    v_mov_b32 v3, 0x3f803f80
    """)
    for r in range(4): a(f"v_mov_b32 v{V1[0]+r}, v3\nv_mov_b32 v{V2[0]+r}, v3")
    for r in range(16): a(f"v_mov_b32 v{O0+r}, 0")
    S0 = SS[0]
    a(f"""
    s_mov_b32 s{sC}, 0
    s_add_u32 s{sKG}, s{sF}, {KF_OFF}
    s_add_u32 s{sK2G}, s{sCQ}, {KF_OFF}
    s_mul_i32 s{sVG}, s{sHead}, {128*640}
    s_add_u32 s{sVG}, s{sVG}, {VF_OFF}
    L_{name}_sl:
    buffer_load_dwordx4 {vr(K1[0],4)}, v{vK1}, s[8:11], s{sKG} offen{SC}
    buffer_load_dwordx2 {vr(K2[0],2)}, v{vK2}, s[8:11], s{sK2G} offen{SC}
    s_mov_b64 exec, s[{sMaskV}:{sMaskV+1}]
    buffer_load_dwordx4 {vr(V1[0],4)}, v{vV}, s[8:11], s{sVG} offen{SC}
    buffer_load_dwordx4 {vr(V2[0],4)}, v{vV}, s[8:11], s{sVG} offen offset:640{SC}
    s_mov_b64 exec, -1
    s_waitcnt vmcnt(2)
    """)
    a(mfma(S0, K1[0], Q1[0], "0")); a(mfma8(S0, K2[0], Q2[0]))
    a("s_nop 11")
    a(f"v_max3_f32 v{vTm}, v{S0}, v{S0+1}, v{S0+2}")
    for r in range(3, 15, 2): a(f"v_max3_f32 v{vTm}, v{vTm}, v{S0+r}, v{S0+r+1}")
    a(f"""
    v_max3_f32 v{vTm}, v{vTm}, v{S0+15}, v{vM}
    v_mov_b32 v3, v{vTm}
    s_nop 1
    v_permlane32_swap_b32 v{vTm}, v3
    v_max_f32 v{vTm}, v{vTm}, v3
    v_sub_f32 v{vAl}, v{vM}, v{vTm}
    v_exp_f32 v{vAl}, v{vAl}
    v_mov_b32 v{vM}, v{vTm}
    """)
    for r in range(16): a(f"v_sub_f32 v{S0+r}, v{S0+r}, v{vM}")
    for r in range(16): a(f"v_exp_f32 v{S0+r}, v{S0+r}")
    for r in range(16): a(f"v_mul_f32 v{O0+r}, v{O0+r}, v{vAl}")
    for i in range(4): a(f"v_cvt_pk_bf16_f32 v{P1+i}, v{S0+2*i}, v{S0+2*i+1}")
    for i in range(4): a(f"v_cvt_pk_bf16_f32 v{P2+i}, v{S0+8+2*i}, v{S0+8+2*i+1}")
    a("s_waitcnt vmcnt(0)\ns_nop 0")
    a(mfma(O0, V1[0], P1)); a(mfma(O0, V2[0], P2))
    a(f"""
    s_add_u32 s{sKG}, s{sKG}, 40960
    s_add_u32 s{sK2G}, s{sK2G}, 40960
    s_add_u32 s{sVG}, s{sVG}, 1280
    s_add_u32 s{sC}, s{sC}, 1
    s_cmp_lt_u32 s{sC}, 64
    s_nop 6
    s_cbranch_scc1 L_{name}_sl
    s_nop 3
    v_mov_b32 v3, v{O0+8}
    v_mov_b32 v11, v{O0+8}
    s_nop 1
    v_permlane32_swap_b32 v3, v11
    v_rcp_f32 v10, v11
    s_nop 0
    s_branch L_{name}_fin
    """)
    vK2D, vL16b = 3, 19
    ACC = [96 + 16*f for f in range(5)]
    FR = lambda b: 24 + 24*b
    a(f"""
    L_{name}_bg:
    s_setprio {E("BPRIO", "0")}
    s_sub_u32 s{sBW}, s{sW}, 4
    v_mul_u32_u24 v{vK2D}, 40960, v11
    v_and_b32 v4, 31, v{vLane}
    v_lshl_add_u32 v{vK2D}, v4, 4, v{vK2D}
    v_add_u32 v{vL16b}, 4096, v{vL16}
    s_mul_i32 s3, s{sBW}, {2*40960}
    s_add_u32 s3, s3, {KF_OFF}
    s_add_u32 s{sKG}, s3, s{sF}
    s_add_u32 s{sK2G}, s3, s{sCQ}
    s_mul_i32 s{sVG}, s{sHead}, {128*640}
    s_mul_i32 s3, s{sBW}, 2560
    s_add_u32 s{sVG}, s{sVG}, s3
    s_add_u32 s{sVG}, s{sVG}, {VF_OFF}
    s_and_b32 s{sFQ}, s2, 1
    s_lshl_b32 s{sFQ}, s{sFQ}, 1
    s_and_b32 s3, s{sT1}, 1
    s_add_u32 s{sFQ}, s{sFQ}, s3
    s_bfe_u32 s{sTF}, s2, 0x20001
    s_lshl_b32 s{sTF}, s{sTF}, 4
    s_lshr_b32 s3, s{sT1}, 1
    s_add_u32 s{sTF}, s{sTF}, s3
    s_waitcnt lgkmcnt(0)
    """)
    a(srd(8, "s4", "s5", WS_SIZE))
    def gate(label, setup, sleep):
        return setup + f"""
        s_mov_b32 s{sT1}, 0
        s_mov_b32 s{sT0}, {FLG_OFF}
        {label}:
        buffer_load_dword v9, v8, s[8:11], s{sT0} offen sc1
        s_add_u32 s{sT1}, s{sT1}, 1
        s_waitcnt vmcnt(0)
        v_cmp_ge_u32 vcc, v9, v10
        s_cmp_eq_u64 vcc, -1
        s_cbranch_scc1 {label}_ok
        s_cmp_ge_u32 s{sT1}, 0x40000
        s_cbranch_scc1 {label}_ok
        s_sleep {sleep}
        s_branch {label}
        {label}_ok:
        """
    if fused:
        a(f"s_cmp_lg_u32 s{sBW}, 0\ns_cbranch_scc1 L_{name}_gA")
        a(gate(f"L_{name}_pA", f"""
        s_lshr_b32 s{sT0}, s{sF}, 9
        s_lshr_b32 s{sT1}, s{sCQ}, 9
        s_min_u32 s3, s{sT0}, s{sT1}
        s_lshr_b32 s3, s3, 4
        s_add_u32 s{sT0}, s{sT0}, 1
        s_max_u32 s{sT0}, s{sT0}, s{sT1}
        s_lshr_b32 s{sT0}, s{sT0}, 4
        s_add_u32 s3, s3, 64
        s_add_u32 s{sT0}, s{sT0}, 64
        v_mov_b32 v8, s3
        v_writelane_b32 v8, s{sT0}, 1
        s_add_u32 s3, s3, 5
        s_add_u32 s{sT0}, s{sT0}, 5
        v_writelane_b32 v8, s3, 2
        v_writelane_b32 v8, s{sT0}, 3
        s_mul_i32 s3, s{sHead}, 20
        s_add_u32 s{sT0}, s3, 19
        s_lshr_b32 s3, s3, 7
        s_lshr_b32 s{sT0}, s{sT0}, 7
        s_add_u32 s3, s3, 74
        s_add_u32 s{sT0}, s{sT0}, 74
        v_writelane_b32 v8, s3, 4
        v_writelane_b32 v8, s{sT0}, 5
        v_mov_b32 v10, 8
        v_lshlrev_b32 v8, 8, v8
        """, 2))
        a(f"L_{name}_gA:\ns_barrier")
    vq = VmQ()
    def dma(c):
        sl = (c % 3) * SLOT
        t = f"""
        s_lshl_b32 s{sT0}, s{sBW}, 11
        s_add_u32 m0, s{sT0}, {sl}
        s_add_u32 s{sT1}, s{sKG}, 40960
        buffer_load_dwordx4 v{vL16}, s[8:11], s{sKG} offen{SC} lds
        s_add_u32 m0, s{sT0}, {sl+1024}
        s_lshl_b32 s{sT0}, s{sBW}, 10
        buffer_load_dwordx4 v{vL16}, s[8:11], s{sT1} offen{SC} lds
        s_add_u32 m0, s{sT0}, {sl+8192}
        s_mul_i32 s{sT0}, s{sBW}, 2560
        buffer_load_dwordx4 v{vK2D}, s[8:11], s{sK2G} offen{SC} lds
        s_add_u32 m0, s{sT0}, {sl+12288}
        s_add_u32 s{sT1}, s{sVG}, 1024
        buffer_load_dwordx4 v{vL16}, s[8:11], s{sVG} offen{SC} lds
        s_add_u32 m0, s{sT0}, {sl+12288+1024}
        s_add_u32 s{sKG}, s{sKG}, {8*40960}
        buffer_load_dwordx4 v{vL16}, s[8:11], s{sT1} offen{SC} lds
        s_add_u32 m0, s{sT0}, {sl+12288+2048}
        s_add_u32 s{sT1}, s{sVG}, 2048
        s_mov_b64 exec, 0xffffffff
        buffer_load_dwordx4 v{vL16}, s[8:11], s{sT1} offen{SC} lds
        s_mov_b64 exec, -1
        s_add_u32 s{sK2G}, s{sK2G}, {8*40960}
        s_add_u32 s{sVG}, s{sVG}, 10240
        """
        vq.issue(f"D{c}", 6)
        return t
    WP, AO, A4, GF, X = 24, 184, 200, 216, 236
    vOq = 4
    OL, X4L, W4L = 40960, 81920, 0
    sXO, sX4 = 55, 56
    a(dma(0))
    a(f"""
    s_mul_i32 s{sA}, s{sTF}, 96
    s_mul_i32 s3, s{sBW}, 24
    s_add_u32 s{sA}, s{sA}, s3
    s_lshl_b32 s{sA}, s{sA}, 10
    s_add_u32 s{sA}, s{sA}, {HF_OFF}
    s_mul_i32 s{sB}, s3, 20
    s_mul_i32 s3, s{sFQ}, 5
    s_add_u32 s{sB}, s{sB}, s3
    s_lshl_b32 s{sB}, s{sB}, 10
    s_add_u32 s{sB}, s{sB}, {W2F_OFF}
    v_lshrrev_b32 v4, 2, v{vLane}
    v_mul_u32_u24 v4, 640, v4
    v_and_b32 v5, 3, v{vLane}
    v_lshl_add_u32 v4, v5, 2, v4
    v_add_u32 v4, {ONES}, v4
    v_mov_b32 v5, 0x3f803f80
    v_mov_b32 v6, 0
    ds_write_b32 v4, v5
    ds_write_b32 v4, v6 offset:16
    """)
    a(dma(1)); a(dma(2))
    def ld(s):
        vq.issue(f"L{s}", 6)
        return gemm_loads(FR(s % 3), vL16, vL16b, 8, sA, sB, SC)
    a(vq.wait("D0")); a("s_waitcnt lgkmcnt(0)\ns_barrier")
    if fused:
        a(gate(f"L_{name}_pB", f"""
        s_lshr_b32 s3, s{sTF}, 3
        s_add_u32 s3, s3, 80
        s_and_b32 s{sT0}, s2, 7
        s_add_u32 s{sT0}, s{sT0}, 88
        v_mov_b32 v8, s3
        v_writelane_b32 v8, s{sT0}, 1
        v_mov_b32 v10, 12
        v_writelane_b32 v10, 32, 1
        v_lshlrev_b32 v8, 8, v8
        """, 4))
        vq.q = []
        if E("CPF2", "0") == "1":
            a(f"""
            s_cmp_ge_u32 s2, 16
            s_cbranch_scc1 L_{name}_nocpf
            s_cmp_ge_u32 s{sBW}, 2
            s_cbranch_scc1 L_{name}_nocpf
            v_lshl_add_u32 v11, s{sBW}, 6, v{vLane}
            """)
            a(code_prefetch("b", None, f"L_{name}_bg", sBW, 11, 2, 13))
            a(f"s_waitcnt vmcnt(0)\nL_{name}_nocpf:")
    if not E("NOFFN"):
        for s in range(3): a(ld(s))
    s = 0
    for c in range(8):
        FS = [int(x) for x in E("FSCHED", "3,4,4,4,4,5").split(",")]
        PWC = len(FS)
        assert sum(FS) == 24 and len(FS) <= 6
        if c < len(FS) and not E("NOFFN"):
            for k in range(FS[c]):
                a(vq.wait(f"L{s}"))
                a(gemm_comp(FR(s % 3), ACC, s == 0))
                if s + 3 < 24: a(ld(s + 3))
                s += 1
        if c == int(E("PWC", "5")):
            a(partial_write(ACC, vLane, sBW, sT0, PART))
            a("s_waitcnt lgkmcnt(0)")
        if c == 6:
            a(f"""
            v_and_b32 v4, 31, v{vLane}
            v_lshrrev_b32 v5, 5, v{vLane}
            """)
            a(srd(16, "s6", "s7", S*D*2))
            a(srd(20, "s12", "s13", S*D*2))
            a(f"""
            v_mul_u32_u24 v12, 1280, v4
            v_lshl_add_u32 v13, v5, 4, v12
            v_lshl_add_u32 v12, v5, 3, v12
            v_mul_u32_u24 v15, {PSTR}, v4
            v_lshl_add_u32 v15, v5, 4, v15
            s_mul_i32 s{sXO}, s{sTF}, {32*1280}
            s_mul_i32 s3, s{sFQ}, 320
            s_add_u32 s{sXO}, s{sXO}, s3
            s_lshl_b32 s3, s{sBW}, 4
            s_add_u32 s{sX4}, s{sXO}, s3
            s_add_u32 s{sX4}, s{sX4}, 256
            s_lshl_b32 s3, s{sBW}, 6
            s_add_u32 s{sXO}, s{sXO}, s3
            """)
            for i in range(4): a(f"buffer_load_dwordx2 {vr(X+2*i,2)}, v12, s[16:19], s{sXO} offen offset:{16*i}")
            a(f"buffer_load_dwordx2 {vr(X+8,2)}, v12, s[16:19], s{sX4} offen")
            vq.issue("X", 5)
        if c in (6, 7):
            for qd in ((0, 1) if c == 6 else (2, 3)):
                a(f"""
                s_add_u32 s3, s{sBW}, {qd}
                s_and_b32 s3, s3, 3
                s_mul_i32 s{sB}, s3, {10*20*1024}
                s_mul_i32 s{sT0}, s{sFQ}, 5
                s_add_u32 s{sT0}, s{sT0}, s{sBW}
                s_lshl_b32 s{sT0}, s{sT0}, 10
                s_add_u32 s{sB}, s{sB}, s{sT0}
                s_add_u32 s{sB}, s{sB}, {WOF_OFF}
                s_mul_i32 s3, s3, 10240
                s_add_u32 s3, s3, {OL}
                v_add_u32 v{vOq+qd}, s3, v{vL16}
                """)
                for j in range(10):
                    a(f"buffer_load_dwordx4 {vr(WP+4*(10*qd+j),4)}, v{vL16}, s[8:11], s{sB} offen{SC}")
                    if j < 9: a(f"s_add_u32 s{sB}, s{sB}, {20*1024}")
                vq.issue("W", 10)
        if c <= 6: a(vq.wait(f"D{c+1}"))
        a("s_barrier")
        if c + 3 <= 7: a(dma(c + 3))
    a(f"""
    s_mul_i32 s{sB}, s{sBW}, {10*20*1024}
    s_mul_i32 s{sT0}, s{sFQ}, 5
    s_add_u32 s{sT0}, s{sT0}, 4
    s_lshl_b32 s{sT0}, s{sT0}, 10
    s_add_u32 s{sB}, s{sB}, s{sT0}
    s_add_u32 s{sB}, s{sB}, {WOF_OFF}
    s_mul_i32 s{sT0}, s{sBW}, 10240
    s_add_u32 s{sT0}, s{sT0}, {W4L}
    v_add_u32 v14, s{sT0}, v{vL16}
    """)
    for j in range(10):
        a(f"s_add_u32 m0, s{sT0}, {j*1024}\ns_nop 0\nbuffer_load_dwordx4 v{vL16}, s[8:11], s{sB} offen{SC} lds")
        if j < 9: a(f"s_add_u32 s{sB}, s{sB}, {20*1024}")
    a(f"""
    s_lshl_b32 s{sT0}, s{sBW}, 7
    s_add_u32 s{sT0}, s{sT0}, {PART}
    v_add_u32 v16, s{sT0}, v15
    s_lshl_b32 s{sT0}, s{sBW}, 5
    s_add_u32 s{sT0}, s{sT0}, {PART+512}
    v_add_u32 v15, s{sT0}, v15
    """)
    TB = [184, 200]
    def grd(i):
        b = TB[i & 1]
        return "".join((f"ds_read_b128 {vr(b+4*w,4)}, v16 offset:{w*PBUF+32*i}\n" if i < 4 else f"ds_read_b128 {vr(b+4*w,4)}, v15 offset:{w*PBUF}\n") for w in range(4))
    a(grd(0))
    for i in range(5):
        b = TB[i & 1]; d = GF + 4*i
        if i < 4: a(grd(i + 1))
        a(f"s_waitcnt lgkmcnt({4 if i < 4 else 0})")
        for e in range(4): a(f"v_add_f32 v{b+e}, v{b+e}, v{b+4+e}\nv_add_f32 v{b+8+e}, v{b+8+e}, v{b+12+e}")
        for e in range(4): a(f"v_add_f32 v{d+e}, v{b+e}, v{b+8+e}")
    a(f"s_mov_b32 s{sT0}, {hexf(-1.4426950408889634)}")
    GT = 8
    for r in range(0, 20, 4):
        for e in range(4): a(f"v_mul_f32 v{GT+e}, s{sT0}, v{GF+r+e}")
        for e in range(4): a(f"v_exp_f32 v{GT+e}, v{GT+e}")
        for e in range(4): a(f"v_add_f32 v{GT+e}, 1.0, v{GT+e}")
        for e in range(4): a(f"v_rcp_f32 v{GT+e}, v{GT+e}")
        for e in range(4): a(f"v_mul_f32 v{GF+r+e}, v{GF+r+e}, v{GT+e}")
    a(f"""
    s_cmp_lg_u32 s{sBW}, 0
    s_cbranch_scc1 L_{name}_ready
    s_lshl_b32 s{sT0}, s{sTF}, 8
    s_add_u32 s{sT0}, s{sT0}, {FLG_OFF}
    v_mov_b32 v8, 0
    s_mov_b32 s{sT1}, 0
    L_{name}_poll:
    buffer_load_dword v9, v8, s[8:11], s{sT0} offen sc1
    s_add_u32 s{sT1}, s{sT1}, 1
    s_waitcnt vmcnt(0)
    v_readfirstlane_b32 s3, v9
    s_cmp_ge_u32 s3, 32
    s_cbranch_scc1 L_{name}_ready
    s_cmp_ge_u32 s{sT1}, 0x40000
    s_cbranch_scc1 L_{name}_ready
    s_sleep {E('SLP', '2')}
    s_branch L_{name}_poll
    L_{name}_ready:
    s_waitcnt vmcnt(0) lgkmcnt(0)
    s_barrier
    """)
    if DIAG: a(stamp(1))
    a(f"""
    s_mul_i32 s{sA}, s{sTF}, 40
    s_mul_i32 s3, s{sBW}, 10
    s_add_u32 s{sA}, s{sA}, s3
    s_lshl_b32 s{sA}, s{sA}, 10
    s_add_u32 s{sA}, s{sA}, {OF_OFF}
    s_mul_i32 s{sT0}, s{sBW}, 10240
    s_add_u32 s{sT0}, s{sT0}, {OL}
    """)
    for j in range(10):
        a(f"s_add_u32 m0, s{sT0}, {j*1024}\ns_nop 0\nbuffer_load_dwordx4 v{vL16}, s[8:11], s{sA} offen sc1 lds")
        if j < 9: a(f"s_add_u32 s{sA}, s{sA}, 1024")
    OB = [246, 250]; W4 = [8, 16]
    def rdo(u): return f"ds_read_b128 {vr(OB[u & 1],4)}, v{vOq + u//10} offset:{(u % 10)*1024}\n"
    def rdw(u): return f"ds_read_b128 {vr(W4[u & 1],4)}, v14 offset:{u*1024}\n"
    a("s_waitcnt vmcnt(8)")
    a(rdo(0) + rdw(0))
    for u in range(40):
        nxt = ""
        if u + 1 < 10 and (u + 1) % 2 == 0: a(f"s_waitcnt vmcnt({max(0, 10 - (u + 1) - 2)})")
        if u + 1 == 10: a("s_waitcnt vmcnt(0)\ns_barrier")
        if u + 1 < 40: nxt = rdo(u + 1) + (rdw(u + 1) if u + 1 < 10 else "")
        a(nxt)
        cnt = (1 if u + 1 < 40 else 0) + (1 if u + 1 < 10 else 0)
        a(f"s_waitcnt lgkmcnt({cnt})")
        a(mfma(AO, WP + 4*u, OB[u & 1], "0" if u == 0 else None))
        if u < 10: a(mfma(A4, W4[u & 1], OB[u & 1], "0" if u == 0 else None))
    if DIAG: a(stamp(2))
    a(f"""
    s_lshl_b32 s{sT0}, s{sBW}, 12
    s_add_u32 s{sT0}, s{sT0}, {X4L}
    v_add_u32 v14, s{sT0}, v{vL16}
    s_lshl_b32 s{sT0}, s{sBW}, 10
    s_add_u32 s{sT0}, s{sT0}, {X4L}
    v_add_u32 v15, s{sT0}, v{vL16}
    """)
    for i in range(4): a(f"ds_write_b128 v14, {vr(A4+4*i,4)} offset:{i*1024}")
    a("s_waitcnt lgkmcnt(0)\ns_barrier")
    for w in range(4): a(f"ds_read_b128 {vr(24+4*w,4)}, v15 offset:{w*4096}")
    def fin(sreg, g, x, d):
        t = f"""
        v_lshlrev_b32 v40, 16, v{x}
        v_and_b32 v41, 0xffff0000, v{x}
        v_lshlrev_b32 v42, 16, v{x+1}
        v_and_b32 v43, 0xffff0000, v{x+1}
        """
        for e in range(4): t += f"v_fma_f32 v{40+e}, v{sreg+e}, v{g+e}, v{40+e}\n"
        t += f"v_cvt_pk_bf16_f32 v{d}, v40, v41\nv_cvt_pk_bf16_f32 v{d+1}, v42, v43\n"
        return t
    for i in range(4): a(fin(AO+4*i, GF+4*i, X+2*i, 48+2*i))
    a(f"""
    v_permlane32_swap_b32 v48, v50
    v_permlane32_swap_b32 v49, v51
    v_permlane32_swap_b32 v52, v54
    v_permlane32_swap_b32 v53, v55
    buffer_store_dwordx4 v[48:51], v13, s[20:23], s{sXO} offen
    buffer_store_dwordx4 v[52:55], v13, s[20:23], s{sXO} offen offset:32
    s_waitcnt lgkmcnt(0)
    """)
    for e in range(4): a(f"v_add_f32 v{24+e}, v{24+e}, v{28+e}\nv_add_f32 v{32+e}, v{32+e}, v{36+e}")
    for e in range(4): a(f"v_add_f32 v{24+e}, v{24+e}, v{32+e}")
    a(fin(24, GF+16, X+8, 56))
    a(f"buffer_store_dwordx2 v[56:57], v12, s[20:23], s{sX4} offen")
    if DIAG: a(stamp(3))
    a(f"L_{name}_end:")
    a(d2_end())
    if DIAG:
        a(stamp(4)); a("s_waitcnt vmcnt(0)"); a(stamp(5)); a(stamp_flush(1, 6, 8))
    a(f"L_{name}_exit:\ns_endpgm")
    if not fused: a(kernel_desc(name, 254))
    return a.text()
```

```python
from common import *
CSL = 147456
K1_LDS = CSL + 512
XS, WS0 = 32768, 98304
ST = {"0": "", "1": " sc0 sc1", "2": " nt", "3": " sc1", "4": " sc0 sc1 nt"}[E("WT", "1")]
def k1(name, fused=None, sym=None):
    a = Asm()
    a(kernel_head(sym or name))
    NSTAT = 5 if fused else 4
    DONE = f"L_{name}_rdone" if fused else f"L_{name}_exit"
    sW, sTB, sCT, sLD, sXB, sWB, sM0X, sKS, sST, sT0, sT1, sCur = 32,33,34,35,36,37,38,39,40,41,42,43
    sScale, sWM, sWN, sFA, sDX, sDW, sXG, sWG, sP, sLD6, sMX, sMW = 45,46,47,48,49,50,51,52,53,54,60,61
    DBG = 56
    vLane = 1
    vXD, vWD = 194, 198
    vXA, vWA = 4, 8
    vCs, vTmp = 12, 14
    vEA = 16
    vAB = 24
    vPoll, vPollA = 28, 29
    FR = [32, 48]
    ACC = lambda ft, tt: 64 + (ft*2+tt)*16
    VST = 128
    a(f"""
    s_cmp_ge_u32 s2, 256
    s_cbranch_scc1 L_{name}_exit
    """)
    if E("PERM"):
        a(f"s_mul_i32 s2, s2, {int(E('PERM'))}\ns_add_u32 s2, s2, 77\ns_and_b32 s2, s2, 255")
    a(stamp(0))
    a(d2_start())
    a(f"""
    s_load_dwordx4 s[4:7], s[0:1], 0
    s_load_dwordx2 s[8:9], s[0:1], 16
    s_load_dwordx4 s[12:15], s[0:1], 32
    s_load_dwordx2 s[16:17], s[0:1], 64
    s_load_dwordx2 s[18:19], s[0:1], 56
    v_lshrrev_b32 v2, 6, v0
    v_and_b32 v{vLane}, 63, v0
    v_readfirstlane_b32 s{sW}, v2
    """)
    if fused and E("CPF0", "0") == "1":
        a(f"""
        s_cmp_ge_u32 s2, 8
        s_cbranch_scc1 L_{name}_nocpf0
        s_cmp_lg_u32 s{sW}, 7
        s_cbranch_scc1 L_{name}_nocpf0
        """)
        a(code_prefetch("c", sym, sym, sW, vLane, 1, 29))
        a(f"L_{name}_nocpf0:")
    a(f"""
    s_and_b32 s{sT0}, s2, 7
    s_lshr_b32 s{sT1}, s2, 3
    s_and_b32 s{sKS}, s{sT1}, 3
    s_and_b32 s3, s{sT0}, 1
    s_lshl_b32 s3, s3, 2
    s_add_u32 s{sTB}, s{sKS}, s3
    """)
    if E("REMAP", "0") == "1":
        a(f"""
        s_lshr_b32 s{sLD}, s{sT0}, 1
        s_lshl_b32 s3, s{sLD}, 3
        s_lshr_b32 s{sCT}, 0x0e140700, s3
        s_and_b32 s{sCT}, s{sCT}, 0xff
        s_lshr_b32 s3, s{sT1}, 2
        s_add_u32 s{sCT}, s{sCT}, s3
        s_cmp_eq_u32 s{sLD}, 3
        s_cselect_b32 s{sLD}, 6, 7
        s_cmp_ge_u32 s3, s{sLD}
        s_cbranch_scc1 L_{name}_spare
        """)
    else:
        a(f"""
        s_lshr_b32 s{sCT}, s{sT0}, 1
        s_mul_i32 s{sCT}, s{sCT}, 7
        s_lshr_b32 s3, s{sT1}, 2
        s_add_u32 s{sCT}, s{sCT}, s3
        s_cmp_ge_u32 s3, 7
        s_cbranch_scc1 L_{name}_spare
        s_cmp_ge_u32 s{sCT}, 27
        s_cbranch_scc1 L_{name}_spare
        """)
    rot = E("ROT", "0")
    if rot == "1":
        a(f"""
        s_mul_i32 s3, s3, 3
        s_mul_i32 s{sKS}, s{sKS}, 5
        s_lshr_b32 s{sKS}, s{sKS}, 1
        s_add_u32 s{sKS}, s{sKS}, s3
        s_cmp_ge_u32 s{sKS}, 20
        s_cselect_b32 s3, 20, 0
        s_sub_u32 s{sKS}, s{sKS}, s3
        s_cmp_ge_u32 s{sKS}, 10
        s_cselect_b32 s3, 10, 0
        s_sub_u32 s{sKS}, s{sKS}, s3
        """)
    elif rot == "2":
        a(f"""
        s_add_u32 s3, s3, s{sKS}
        s_and_b32 s3, s3, 1
        s_mul_i32 s{sKS}, s3, 5
        """)
    else:
        a(f"s_mov_b32 s{sKS}, 0")
    a(f"""
    s_cmp_ge_u32 s{sCT}, 15
    s_cselect_b32 s{sLD}, 3072, 3840
    s_cselect_b32 s3, 15, 0
    s_sub_u32 s3, s{sCT}, s3
    s_lshl_b32 s{sWB}, s3, 8
    s_mul_i32 s{sXB}, s{sTB}, {256*1280}
    s_lshl_b32 s{sM0X}, s{sW}, 10
    s_lshl_b32 s{sLD6}, s{sLD}, 6
    s_and_b32 s{sWM}, s{sW}, 3
    s_lshr_b32 s{sWN}, s{sW}, 2
    s_and_b32 s{sFA}, s{sW}, 1
    s_lshr_b32 s{sP}, s{sWM}, 1
    v_lshrrev_b32 v12, 4, v{vLane}
    s_lshl_b32 s3, s{sW}, 2
    v_add_u32 v13, s3, v12
    v_xor_b32 v5, v13, v{vLane}
    v_and_b32 v5, 7, v5
    v_lshrrev_b32 v4, 3, v{vLane}
    v_lshl_add_u32 v4, s{sW}, 3, v4
    v_mul_u32_u24 v4, 1280, v4
    v_lshl_add_u32 v{vXD}, v5, 4, v4
    v_add_u32 v{vXD+1}, {64*1280}, v{vXD}
    v_add_u32 v{vXD+2}, {128*1280}, v{vXD}
    v_add_u32 v{vXD+3}, {192*1280}, v{vXD}
    v_lshlrev_b32 v5, 2, v12
    v_xor_b32 v5, v5, v{vLane}
    v_and_b32 v5, 15, v5
    v_mul_u32_u24 v4, s{sLD}, v13
    v_lshl_add_u32 v{vWD}, v5, 4, v4
    s_lshl_b32 s3, s{sLD}, 5
    v_add_u32 v{vWD+1}, s3, v{vWD}
    v_and_b32 v192, 31, v{vLane}
    v_lshrrev_b32 v193, 5, v{vLane}
    v_bfe_u32 v14, v{vLane}, 1, 3
    s_lshl_b32 s3, s{sP}, 1
    v_add_u32 v15, s3, v193
    v_xor_b32 v14, v14, v15
    v_lshl_add_u32 v15, s{sWM}, 6, v192
    v_lshlrev_b32 v15, 7, v15
    v_lshl_add_u32 v{vXA}, v14, 4, v15
    v_xor_b32 v{vXA+1}, 32, v{vXA}
    v_xor_b32 v{vXA+2}, 64, v{vXA}
    v_xor_b32 v{vXA+3}, 0x60, v{vXA}
    v_bfe_u32 v14, v{vLane}, 2, 2
    v_lshl_add_u32 v15, v193, 3, v14
    s_lshl_b32 s{sT0}, s{sP}, 4
    v_add_u32 v15, s{sT0}, v15
    s_lshl_b32 s3, s{sWN}, 1
    s_add_u32 s3, s3, s{sFA}
    v_xor_b32 v14, s3, v14
    v_lshlrev_b32 v14, 6, v14
    v_lshl_add_u32 v15, v15, 8, v14
    v_and_b32 v14, 1, v12
    v_lshl_add_u32 v15, v14, 5, v15
    v_and_b32 v14, 3, v{vLane}
    v_lshl_add_u32 v15, v14, 3, v15
    v_add_u32 v{vWA}, {WS0}, v15
    v_xor_b32 v{vWA+1}, 0x1000, v{vWA}
    v_xor_b32 v{vWA+2}, 64, v{vWA}
    v_xor_b32 v{vWA+3}, 0x1040, v{vWA}
    v_and_b32 v14, 127, v0
    v_lshlrev_b32 v14, 2, v14
    v_add_u32 v14, {CSL}, v14
    v_mov_b32 v{vCs}, 0
    v_mov_b32 v{vCs+1}, 0
    ds_write_b32 v14, v{vCs}
    s_mov_b32 s{sST}, 0
    s_mov_b32 s{sCur}, 0
    s_mov_b32 s{sScale}, 0xffff0000
    s_waitcnt lgkmcnt(0)
    """)
    a(stamp(6))
    a(srd(20, "s4", "s5", S*D*2))
    a(f"""
    s_cmp_ge_u32 s{sCT}, 15
    s_cselect_b32 s24, s12, s6
    s_cselect_b32 s25, s13, s7
    s_cselect_b32 s26, {640*3072}, {640*3840}
    s_mov_b32 s27, 0x00020000
    v_mov_b32 v{vPollA}, 0
    v_mov_b32 v{vEA}, 0
    v_mov_b32 v{vEA+1}, 0
    """)
    a(srd(28, "s16", "s17", WS_SIZE))
    a(srd(DBG, "s18", "s19", 256))
    def issue_pre():
        t = f"s_lshl_b32 s{sXG}, s{sKS}, 7\ns_add_u32 s{sXG}, s{sXG}, s{sXB}\n"
        t += f"s_mul_i32 s{sWG}, s{sLD6}, s{sKS}\ns_add_u32 s{sWG}, s{sWG}, s{sWB}\n"
        t += f"s_add_u32 s{sKS}, s{sKS}, 1\ns_cmp_ge_u32 s{sKS}, 10\ns_cselect_b32 s{sKS}, 0, s{sKS}\n"
        return t
    def dma_m0(i): return f"s_add_u32 m0, s{sMX}, {i*8192}\n" if i < 4 else f"s_add_u32 m0, s{sMW}, {(i-4)*8192}\n"
    def dma_ld(i):
        if i < 4: return f"buffer_load_dwordx4 v{vXD+i}, s[20:23], s{sXG} offen lds\n"
        return f"buffer_load_dwordx4 v{vWD+i-4}, s[24:27], s{sWG} offen lds\n"
    def issue():
        t = issue_pre()
        for i in range(6): t += dma_m0(i) + "s_nop 0\n" + dma_ld(i)
        return t
    def slot_m0(slot_sgpr=None, slot=None):
        if slot is not None:
            return f"s_add_u32 s{sMX}, s{sM0X}, {slot*XS}\ns_add_u32 s{sMW}, s{sM0X}, {WS0+slot*16384}\n"
        return (f"s_lshl_b32 s{sMX}, s{slot_sgpr}, 15\ns_add_u32 s{sMX}, s{sMX}, s{sM0X}\n"
                f"s_lshl_b32 s{sMW}, s{slot_sgpr}, 14\ns_add_u32 s{sMW}, s{sMW}, s{sM0X}\ns_add_u32 s{sMW}, s{sMW}, {WS0}\n")
    if E("PF", "0") != "0":
        PF0 = int(E("PF0", "3"))
        a(f"""
        s_add_u32 s{sT0}, s{sW}, {PF0}
        s_cmp_ge_u32 s{sT0}, 10
        s_cbranch_scc1 L_{name}_nopf
        s_lshr_b32 s{sT1}, s2, 3
        s_mul_i32 s3, s{sT1}, 37
        v_add_u32 v14, s3, v{vLane}
        v_min_u32 v14, 0x3ff, v14
        s_and_b32 s3, s2, 1
        s_lshl_b32 s3, s3, 10
        v_add_u32 v14, s3, v14
        v_mul_u32_u24 v14, 1280, v14
        s_lshl_b32 s3, s{sT0}, 7
        s_mov_b32 exec_hi, 0x1f
        buffer_load_dword v30, v14, s[20:23], s3 offen
        s_mov_b64 exec, 0xffffffff
        s_lshl_b32 s3, s{sT1}, 5
        v_add_u32 v14, s3, v{vLane}
        v_mul_u32_u24 v15, 4682, v14
        v_lshrrev_b32 v15, 16, v15
        v_mul_u32_u24 v18, 14, v15
        v_sub_u32 v14, v14, v18
        s_lshl_b32 s3, s{sT0}, 6
        v_add_u32 v15, s3, v15
        s_bfe_u32 s3, s2, 0x20001
        s_mul_i32 s3, s3, 14
        v_add_u32 v14, s3, v14
        v_min_u32 v14, 53, v14
        v_lshlrev_b32 v14, 7, v14
        v_cmp_gt_u32 vcc, 3840, v14
        v_mul_u32_u24 v18, 3840, v15
        v_mul_u32_u24 v19, 3072, v15
        v_add_u32 v18, v18, v14
        v_add_u32 v19, v19, v14
        v_subrev_u32 v19, 3840, v19
        v_cndmask_b32 v18, v19, v18, vcc
        v_mov_b32 v20, s12
        v_mov_b32 v21, s13
        v_mov_b32 v22, s6
        v_mov_b32 v23, s7
        v_cndmask_b32 v20, v20, v22, vcc
        v_cndmask_b32 v21, v21, v23, vcc
        v_add_co_u32 v20, vcc, v20, v18
        s_nop 1
        v_addc_co_u32 v21, vcc, 0, v21, vcc
        global_load_dword v31, v[20:21], off
        s_mov_b64 exec, -1
        L_{name}_nopf:
        """)
    NPRE = int(E("NPRE", "2"))
    a(f"L_{name}_pre:")
    a(slot_m0(slot_sgpr=sCur)); a(issue())
    a(f"""
    s_add_u32 s{sCur}, s{sCur}, 1
    s_cmp_lt_u32 s{sCur}, {NPRE}
    {"s_barrier" if E("PBAR", "1") == "1" else "s_nop 0"}
    s_cbranch_scc1 L_{name}_pre
    """)
    if NPRE == 2: a(slot_m0(slot_sgpr=sCur) + issue_pre())
    a(f"s_mov_b32 s{sCur}, 0")
    a(stamp(7))
    def late_setup(orient):
        t = f"""
        s_lshl_b32 s{sT0}, s{sTB}, 2
        v_mov_b32 v{vPollA}, s{sT0}
        """
        if orient == 1:
            t += f"""
            s_mov_b32 s{sT1}, 52429
            s_sub_u32 s3, s{sCT}, 10
            s_lshl_b32 s3, s3, 7
            s_lshl_b32 s{sT0}, s{sWN}, 6
            s_add_u32 s3, s3, s{sT0}
            v_mul_u32_u24 v24, 320, v193
            """
            for ft in range(2):
                t += f"""
                s_xor_b32 s{sT0}, s{sFA}, {ft}
                s_lshl_b32 s{sT0}, s{sT0}, 5
                s_add_u32 s{sT0}, s{sT0}, s3
                v_add_u32 v30, s{sT0}, v192
                v_mul_u32_u24 v31, s{sT1}, v30
                v_lshrrev_b32 v31, 20, v31
                v_mul_u32_u24 v25, 20, v31
                v_sub_u32 v25, v30, v25
                v_mul_u32_u24 v31, {128*640}, v31
                v_lshl_add_u32 v31, v25, 4, v31
                v_add_u32 v{vEA+ft}, v31, v24
                """
        return t
    def reads(s, fs):
        if E("NOREAD"): return [""] * 6
        b = FR[fs]
        t = [f"ds_read_b128 {vr(b,4)}, v{vXA+s}\n", f"ds_read_b128 {vr(b+4,4)}, v{vXA+s} offset:4096\n"]
        for ft in range(2):
            o = (s >> 1) * 8192
            t.append(f"ds_read_b64_tr_b16 {vr(b+8+ft*4,2)}, v{vWA+ft*2+(s&1)} offset:{o}\n")
            t.append(f"ds_read_b64_tr_b16 {vr(b+10+ft*4,2)}, v{vWA+ft*2+(s&1)} offset:{o+1024}\n")
        return t
    def compute(s, fs, orient, zero=False, rd=None, extra=None):
        b = FR[fs]; X = [b, b+4]; W = [b+8, b+12]
        t = ""; k = 0
        for ft in range(2):
            for tt in range(2):
                c = "0" if zero else None
                if orient == 0: t += mfma(ACC(ft,tt), W[ft], X[tt], c) + "\n"
                else: t += mfma(ACC(ft,tt), X[tt], W[ft], c) + "\n"
                if extra: t += extra[k]
                elif rd and k < 3: t += rd[2*k] + rd[2*k+1]
                if (s & 1) == 0 and not E("NOCS"):
                    t += f"v_lshlrev_b32 v{vTmp}, 16, v{W[0]+k}\nv_and_b32 v{vTmp+1}, s{sScale}, v{W[0]+k}\n"
                    t += f"v_add_f32 v{vCs}, v{vCs}, v{vTmp}\nv_add_f32 v{vCs+1}, v{vCs+1}, v{vTmp+1}\n"
                k += 1
        return t
    def dma_extra(rd):
        return [dma_m0(0) + rd[0] + dma_ld(0) + dma_m0(1) + rd[1] + dma_ld(1),
                dma_m0(2) + rd[2] + dma_ld(2) + dma_m0(3) + rd[3] + dma_ld(3),
                dma_m0(4) + rd[4] + dma_ld(4) + dma_m0(5) + rd[5] + dma_ld(5), ""]
    a(f"""
    s_waitcnt vmcnt({6*(NPRE-1)})
    s_barrier
    """)
    a(stamp(1))
    a("".join(reads(0, 0)))
    a(f"""
    s_cmp_ge_u32 s{sCT}, 10
    s_cbranch_scc0 L_{name}_ent0
    s_cmp_lt_u32 s{sCT}, 15
    s_cbranch_scc1 L_{name}_ent1
    """)
    def rotate_s():
        return f"""s_cmp_eq_u32 s{sCur}, 2
        s_cselect_b32 s{sDX}, {-2*XS & 0xffffffff}, {XS}
        s_cselect_b32 s{sDW}, {-2*16384 & 0xffffffff}, 16384
        s_cselect_b32 s{sCur}, -1, s{sCur}
        s_add_u32 s{sCur}, s{sCur}, 1
        """
    def rotate_v(lo, hi):
        t = ""
        for r in range(lo, hi):
            t += f"v_add_u32 v{vXA+r}, s{sDX}, v{vXA+r}\nv_add_u32 v{vWA+r}, s{sDW}, v{vWA+r}\n"
        return t
    for orient in range(2):
        L = f"L_{name}_loop{orient}"
        a(f"L_{name}_ent{orient}:")
        a("s_waitcnt lgkmcnt(0)")
        if NPRE == 2: a(compute(0, 0, orient, zero=True, extra=dma_extra(reads(1, 1))))
        else: a(compute(0, 0, orient, zero=True, rd=reads(1, 1)))
        a(f"s_branch {L}_k1")
        a(f"{L}:")
        a("s_waitcnt lgkmcnt(0)")
        a(compute(0, 0, orient, rd=reads(1, 1)))
        a(f"{L}_k1:")
        a("s_waitcnt lgkmcnt(0)")
        r2 = reads(2, 0)
        a(compute(1, 1, orient, extra=[r2[0] + r2[1] + slot_m0(slot_sgpr=sCur), r2[2] + r2[3] + issue_pre(), r2[4] + r2[5] + rotate_s(), ""]))
        a("s_waitcnt lgkmcnt(0)")
        r3 = reads(3, 1)
        a(compute(2, 0, orient, extra=[r3[0] + r3[1], r3[2] + r3[3], r3[4] + r3[5], rotate_v(0, 4)]))
        a(f"""
        s_cmp_ge_u32 s{sST}, 7
        s_cbranch_scc1 {L}_tail
        s_waitcnt vmcnt(6) lgkmcnt(0)
        s_barrier
        """)
        a(compute(3, 1, orient, extra=dma_extra(reads(0, 0))))
        a(f"""
        s_add_u32 s{sST}, s{sST}, 1
        s_branch {L}
        {L}_tail:
        s_cmp_ge_u32 s{sST}, 9
        s_cbranch_scc1 {L}_last
        s_cmp_ge_u32 s{sST}, 8
        s_cbranch_scc1 {L}_w0
        s_waitcnt vmcnt(6) lgkmcnt(0)
        s_barrier
        """)
        a(late_setup(orient))
        a(f"""
        buffer_load_dword v{vPoll}, v{vPollA}, s[{DBG}:{DBG+3}], 0 offen sc1
        s_branch {L}_go
        {L}_w0:
        s_waitcnt vmcnt(0) lgkmcnt(0)
        s_barrier
        s_mov_b32 s{sT1}, 0
        {L}_spin:
        v_readfirstlane_b32 s{sT0}, v{vPoll}
        s_add_u32 s{sT1}, s{sT1}, 1
        s_cmp_ge_u32 s{sT0}, {0 if E("NOSPARE") else NSTAT}
        s_cbranch_scc1 {L}_got
        s_cmp_ge_u32 s{sT1}, 0x40000
        s_cbranch_scc1 {L}_got
        s_sleep 2
        buffer_load_dword v{vPoll}, v{vPollA}, s[{DBG}:{DBG+3}], 0 offen sc1
        s_waitcnt vmcnt(0)
        s_branch {L}_spin
        {L}_got:
        s_lshl_b32 s{sT0}, s{sTB}, 10
        s_lshl_b32 s{sT1}, s{sWM}, 8
        s_add_u32 s{sT0}, s{sT0}, s{sT1}
        s_add_u32 s{sT0}, s{sT0}, {STA_OFF}
        s_add_u32 s{sT1}, s{sT0}, 8192
        """)
        if orient == 0:
            a(f"""
            v_lshlrev_b32 v30, 2, v192
            buffer_load_dword v{vAB}, v30, s[28:31], s{sT0} offen sc1
            buffer_load_dword v{vAB+1}, v30, s[28:31], s{sT1} offen sc1
            buffer_load_dword v{vAB+2}, v30, s[28:31], s{sT0} offen offset:128 sc1
            buffer_load_dword v{vAB+3}, v30, s[28:31], s{sT1} offen offset:128 sc1
            """)
        else:
            a("v_lshlrev_b32 v30, 4, v193")
            for tt in range(2):
                for i in range(4):
                    a(f"buffer_load_dwordx4 {vr(VST+32*tt+4*i,4)}, v30, s[28:31], s{sT0} offen offset:{tt*128+i*32} sc1")
                    a(f"buffer_load_dwordx4 {vr(VST+32*tt+16+4*i,4)}, v30, s[28:31], s{sT1} offen offset:{tt*128+i*32} sc1")
        a(f"{L}_go:")
        a(compute(3, 1, orient, rd=reads(0, 0)))
        a(f"""
        s_add_u32 s{sST}, s{sST}, 1
        s_branch {L}
        {L}_last:
        s_waitcnt lgkmcnt(0)
        """)
        a(compute(3, 1, orient))
        if orient == 0: a(f"s_branch L_{name}_stats")
    a(f"L_{name}_stats:")
    a(stamp(2))
    a(f"""
    v_add_f32 v{vCs}, v{vCs}, v{vCs+1}
    v_mov_b32 v{vTmp}, v{vCs}
    s_lshl_b32 s{sT0}, s{sWN}, 6
    s_lshl_b32 s{sT1}, s{sFA}, 5
    s_add_u32 s{sT0}, s{sT0}, s{sT1}
    v_mov_b32 v13, v{vCs}
    s_nop 1
    v_permlane32_swap_b32 v13, v{vTmp}
    v_add_u32 v30, s{sT0}, v192
    v_lshlrev_b32 v30, 2, v30
    v_add_u32 v30, {CSL}, v30
    v_add_f32 v13, v13, v{vTmp}
    s_mov_b64 exec, 0xffffffff
    ds_add_f32 v30, v13
    s_mov_b64 exec, -1
    s_lshl_b32 s{sT0}, s{sTB}, 3
    s_lshl_b32 s{sT1}, s{sWM}, 1
    s_add_u32 s{sST}, s{sT0}, s{sT1}
    s_waitcnt lgkmcnt(0)
    s_barrier
    """)
    a(stamp(3))
    a(f"""
    s_cmp_ge_u32 s{sCT}, 10
    s_cbranch_scc0 L_{name}_epiT
    s_cmp_lt_u32 s{sCT}, 15
    s_cbranch_scc1 L_{name}_epiV
    L_{name}_epiT:
    s_lshl_b32 s{sT0}, s{sWN}, 8
    v_lshlrev_b32 v30, 4, v193
    v_add_u32 v30, s{sT0}, v30
    v_add_u32 v30, {CSL}, v30
    s_lshl_b32 s{sT0}, s{sFA}, 7
    v_add_u32 v31, s{sT0}, v30
    s_xor_b32 s{sT0}, s{sT0}, 128
    v_add_u32 v30, s{sT0}, v30
    """)
    for i in range(4): a(f"ds_read_b128 {vr(32+4*i,4)}, v31 offset:{i*32}")
    for i in range(4): a(f"ds_read_b128 {vr(48+4*i,4)}, v30 offset:{i*32}")
    def norm_pair_tok(accreg, csreg, ab, tmp):
        return (f"v_pk_mul_f32 {vr(tmp,2)}, {vr(csreg,2)}, {vr(ab,2)} op_sel:[0,1] op_sel_hi:[1,1]\n"
                f"v_pk_fma_f32 {vr(accreg,2)}, {vr(accreg,2)}, {vr(ab,2)}, {vr(tmp,2)} op_sel:[0,0,0] op_sel_hi:[1,0,1]\n")
    a(f"""
    s_cmp_lt_u32 s{sCT}, 5
    s_cselect_b32 s{sScale}, {hexf(QSCALE)}, 1.0
    s_cselect_b32 s{sXG}, {QF_OFF}, {KF_OFF}
    s_cselect_b32 s3, 0, 5
    s_sub_u32 s3, s{sCT}, s3
    s_lshl_b32 s3, s3, 4
    s_lshl_b32 s{sT0}, s{sWN}, 3
    s_add_u32 s3, s3, s{sT0}
    s_mul_i32 s{sT0}, s{sST}, 80
    s_add_u32 s3, s3, s{sT0}
    s_lshl_b32 s3, s3, 9
    s_add_u32 s{sXG}, s{sXG}, s3
    v_lshlrev_b32 v{vEA}, 4, v192
    v_lshl_add_u32 v{vEA}, v193, 9, v{vEA}
    s_waitcnt vmcnt(0)
    """)
    for r in range(4): a(f"v_mul_f32 v{vAB+r}, s{sScale}, v{vAB+r}")
    a(f"""
    s_cmp_ge_u32 s{sCT}, 15
    s_cbranch_scc1 L_{name}_epiH
    s_waitcnt lgkmcnt(0)
    """)
    for ft in range(2):
        for tt in range(2):
            ab = vAB + 2*tt
            a(f"""
            s_xor_b32 s{sT0}, s{sFA}, {ft}
            s_lshl_b32 s{sT0}, s{sT0}, 11
            s_add_u32 s{sT0}, s{sT0}, s{sXG}
            """)
            if tt: a(f"s_add_u32 s{sT0}, s{sT0}, {80*512}")
            for half in range(2):
                A0 = ACC(ft,tt) + 8*half
                for i in range(2):
                    A = A0 + 4*i; C = 32 + ft*16 + 8*half + 4*i
                    a(norm_pair_tok(A, C, ab, 28)); a(norm_pair_tok(A+2, C+2, ab, 30))
                for p in range(4): a(f"v_cvt_pk_bf16_f32 v{A0+p}, v{A0+2*p}, v{A0+2*p+1}")
                a(f"s_nop 0\nv_permlane32_swap_b32 v{A0}, v{A0+2}\nv_permlane32_swap_b32 v{A0+1}, v{A0+3}")
                a(f"buffer_store_dwordx4 {vr(A0,4)}, v{vEA}, s[28:31], s{sT0} offen offset:{half*1024}{ST}")
    a(f"s_branch L_{name}_end")
    a(f"L_{name}_epiH:")
    a(f"""
    s_mul_i32 s{sT0}, s{sST}, 96
    s_sub_u32 s3, s{sCT}, 15
    s_lshl_b32 s3, s3, 3
    s_add_u32 s{sT0}, s{sT0}, s3
    s_lshl_b32 s3, s{sWN}, 2
    s_add_u32 s{sT0}, s{sT0}, s3
    s_lshl_b32 s{sT0}, s{sT0}, 10
    s_add_u32 s{sXG}, s{sT0}, {HF_OFF}
    v_lshlrev_b32 v4, 4, v{vLane}
    s_waitcnt lgkmcnt(0)
    """)
    for ft in range(2):
        for tt in range(2):
            ab = vAB + 2*tt
            a(f"""
            s_xor_b32 s{sT0}, s{sFA}, {ft}
            s_lshl_b32 s{sT0}, s{sT0}, 11
            s_add_u32 s{sT0}, s{sT0}, s{sXG}
            s_add_u32 s{sT0}, s{sT0}, {tt*96*1024}
            """)
            for half in range(2):
                A0 = ACC(ft,tt) + 8*half
                for i in range(2):
                    A = A0 + 4*i; C = 32 + ft*16 + 8*half + 4*i
                    a(norm_pair_tok(A, C, ab, 28)); a(norm_pair_tok(A+2, C+2, ab, 30))
                for p in range(4):
                    a(f"v_cvt_pk_bf16_f32 v{A0+p}, v{A0+2*p}, v{A0+2*p+1}")
                for p in range(4):
                    a(f"v_pk_max_i16 v{A0+p}, v{A0+p}, 0")
                a(f"buffer_store_dwordx4 {vr(A0,4)}, v4, s[28:31], s{sT0} offen offset:{half*1024}{ST}")
    a(f"s_branch L_{name}_end")
    a(f"L_{name}_epiV:")
    a(f"""
    s_lshl_b32 s{sT0}, s{sWN}, 6
    v_add_u32 v30, s{sT0}, v192
    v_lshlrev_b32 v30, 2, v30
    v_add_u32 v30, {CSL}, v30
    s_lshl_b32 s{sT1}, s{sFA}, 7
    v_add_u32 v31, s{sT1}, v30
    s_xor_b32 s{sT1}, s{sT1}, 128
    v_add_u32 v30, s{sT1}, v30
    ds_read_b32 v24, v31
    ds_read_b32 v26, v30
    s_mul_i32 s{sT0}, s{sST}, 1280
    s_add_u32 s{sXG}, s{sT0}, {VF_OFF}
    s_waitcnt vmcnt(0) lgkmcnt(0)
    """)
    for tt in range(2):
        if tt == 1: a(f"s_add_u32 s{sXG}, s{sXG}, 1280")
        for ft in range(2):
            cs = 24 + 2*ft
            A0 = ACC(ft,tt)
            for p in range(8):
                A = A0 + 2*p
                tmp = 28 + 2*(p & 1)
                a(f"v_pk_mul_f32 {vr(tmp,2)}, {vr(VST+32*tt+16+2*p,2)}, {vr(cs,2)} op_sel:[0,0] op_sel_hi:[1,0]")
                a(f"v_pk_fma_f32 {vr(A,2)}, {vr(A,2)}, {vr(VST+32*tt+2*p,2)}, {vr(tmp,2)}")
            for p in range(8): a(f"v_cvt_pk_bf16_f32 v{A0+p}, v{A0+2*p}, v{A0+2*p+1}")
            a(f"buffer_store_dwordx4 {vr(A0,4)}, v{vEA+ft}, s[28:31], s{sXG} offen{ST}")
            a(f"buffer_store_dwordx4 {vr(A0+4,4)}, v{vEA+ft}, s[28:31], s{sXG} offen offset:640{ST}")
    a(f"s_branch L_{name}_end")
    a(f"L_{name}_spare:")
    if E("NOSPARE"): a(f"s_branch L_{name}_exit")
    a(f"""
    s_and_b32 s{sT0}, s2, 7
    s_lshr_b32 s{sT1}, s2, 3
    s_cmp_ge_u32 s{sT1}, 28
    s_cbranch_scc1 L_{name}_sp1
    s_sub_u32 s{sT0}, s{sT0}, 6
    s_lshl_b32 s{sT0}, s{sT0}, 2
    s_add_u32 s{sT0}, s{sT0}, s{sT1}
    s_add_u32 s{sST}, s{sT0}, 8
    s_branch L_{name}_sp2
    L_{name}_sp1:
    s_lshl_b32 s{sT0}, s{sT0}, 2
    s_add_u32 s{sT0}, s{sT0}, s{sT1}
    s_sub_u32 s{sST}, s{sT0}, 28
    L_{name}_sp2:
    v_mov_b32 v20, 0
    v_mov_b32 v21, 0
    v_mov_b32 v22, 0
    v_lshrrev_b32 v4, 4, v{vLane}
    v_and_b32 v5, 15, v{vLane}
    v_mul_u32_u24 v6, 1280, v4
    v_lshl_add_u32 v6, v5, 4, v6
    """)
    if fused and E("CPF", "1") == "1" and E("CPFE", "0") == "1":
        a(f"""
        s_and_b32 s3, s{sST}, 3
        s_cmp_lg_u32 s3, 0
        s_cbranch_scc1 L_{name}_nocpf
        s_cmp_ge_u32 s{sST}, 32
        s_cbranch_scc1 L_{name}_nocpf
        s_cmp_ge_u32 s{sW}, 4
        s_cbranch_scc1 L_{name}_nocpf
        """)
        a(code_prefetch("a", sym, sym, sW, 0, 4, 25))
        a(f"L_{name}_nocpf:")
    a("s_waitcnt lgkmcnt(0)")
    a(srd(28, "s16", "s17", WS_SIZE))
    a(srd(DBG, "s18", "s19", 256))
    if fused and E("CPF", "1") == "1" and E("CPFE", "0") != "1":
        a(f"""
        s_and_b32 s3, s{sST}, 3
        s_cmp_lg_u32 s3, 0
        s_cbranch_scc1 L_{name}_nocpf
        s_cmp_ge_u32 s{sST}, 32
        s_cbranch_scc1 L_{name}_nocpf
        s_cmp_ge_u32 s{sW}, 4
        s_cbranch_scc1 L_{name}_nocpf
        """)
        a(code_prefetch("a", sym, sym, sW, 0, 4, 25))
        a(f"L_{name}_nocpf:")
    if E("TLBW", "0") == "1":
        a(f"""
        s_load_dwordx2 s[62:63], s[0:1], 48
        v_and_b32 v7, 15, v{vLane}
        v_lshlrev_b32 v7, 21, v7
        v_min_u32 v7, {WS_SIZE-4}, v7
        buffer_load_dword v25, v7, s[28:31], 0 offen
        s_waitcnt lgkmcnt(0)
        """)
        a(srd(20, "s62", "s63", S*D*2))
        a(f"""
        v_and_b32 v7, 1, v{vLane}
        v_lshlrev_b32 v7, 21, v7
        buffer_load_dword v26, v7, s[20:23], 0 offen
        """)
    if fused:
        a(f"""
        s_cmp_lg_u32 s{sST}, 39
        s_cbranch_scc1 L_{name}_noinit
        s_cmp_ge_u32 s{sW}, 2
        s_cbranch_scc1 L_{name}_init1
        v_lshlrev_b32 v7, 8, v0
        v_mov_b32 v8, 0
        s_mov_b32 s3, {FLG_OFF}
        buffer_store_dword v8, v7, s[28:31], s3 offen sc0 sc1
        s_waitcnt vmcnt(0)
        L_{name}_init1:
        s_barrier
        s_cmp_lg_u32 s{sW}, 0
        s_cbranch_scc1 L_{name}_noinit
        v_lshlrev_b32 v7, 2, v{vLane}
        v_mov_b32 v8, 1
        s_mov_b64 exec, 0xff
        buffer_atomic_add v8, v7, s[{DBG}:{DBG+3}], 0 offen sc1
        s_mov_b64 exec, -1
        L_{name}_noinit:
        """)
    a(f"""
    s_cmp_ge_u32 s{sST}, 32
    s_cbranch_scc1 L_{name}_relay
    """)
    a(srd(20, "s4", "s5", S*D*2))
    a(f"""
    s_lshl_b32 s{sT0}, s{sST}, 6
    s_lshl_b32 s{sT1}, s{sW}, 3
    s_add_u32 s{sT0}, s{sT0}, s{sT1}
    s_mul_i32 s{sXG}, s{sT0}, 1280
    s_add_u32 s{sWG}, s{sXG}, {4*1280}
    """)
    SPF = E("SPF", "1") == "1"
    def pf():
        if not SPF: return ""
        return "global_load_dword v24, v[20:21], off\nv_add_co_u32 v20, vcc, v22, v20\ns_nop 1\nv_addc_co_u32 v21, vcc, 0, v21, vcc\n"
    if SPF:
        a(f"""
        s_and_b32 s3, s{sST}, 3
        s_lshl_b32 s3, s3, 3
        s_add_u32 s3, s3, s{sW}
        s_cmp_ge_u32 s3, 16
        s_cbranch_scc1 L_{name}_pfw
        v_lshl_add_u32 v20, s3, 6, v{vLane}
        s_and_b32 s3, s2, 1
        s_lshl_b32 s3, s3, 10
        v_add_u32 v20, s3, v20
        v_mul_u32_u24 v20, 1280, v20
        v_add_u32 v20, {3*128}, v20
        v_mov_b32 v22, 128
        v_mov_b32 v18, s4
        v_mov_b32 v21, s5
        s_branch L_{name}_pfa
        L_{name}_pfw:
        s_sub_u32 s3, s3, 16
        s_min_u32 s3, s3, 13
        v_lshl_add_u32 v16, s3, 6, v{vLane}
        v_mul_u32_u24 v17, 4682, v16
        v_lshrrev_b32 v17, 16, v17
        v_mul_u32_u24 v18, 14, v17
        v_sub_u32 v16, v16, v18
        s_bfe_u32 s3, s2, 0x20001
        {"s_lshl_b32 s3, s3, 3" if E("REMAP", "0") == "1" else "s_mul_i32 s3, s3, 14"}
        {"s_lshr_b32 s3, 0x1c280e00, s3" if E("REMAP", "0") == "1" else ""}
        {"s_and_b32 s3, s3, 0xff" if E("REMAP", "0") == "1" else ""}
        v_add_u32 v16, s3, v16
        v_min_u32 v16, 53, v16
        v_lshlrev_b32 v16, 7, v16
        v_add_u32 v17, {3*64}, v17
        v_cmp_gt_u32 vcc, 3840, v16
        v_mul_u32_u24 v18, 3840, v17
        v_mul_u32_u24 v19, 3072, v17
        v_add_u32 v18, v18, v16
        v_add_u32 v19, v19, v16
        v_subrev_u32 v19, 3840, v19
        v_cndmask_b32 v20, v19, v18, vcc
        v_mov_b32 v18, s12
        v_mov_b32 v21, s13
        v_mov_b32 v16, s6
        v_mov_b32 v17, s7
        v_cndmask_b32 v18, v18, v16, vcc
        v_cndmask_b32 v21, v21, v17, vcc
        v_mov_b32 v22, {64*3072}
        v_mov_b32 v16, {64*3840}
        v_cndmask_b32 v22, v22, v16, vcc
        L_{name}_pfa:
        v_add_co_u32 v20, vcc, v18, v20
        s_nop 1
        v_addc_co_u32 v21, vcc, 0, v21, vcc
        """)
        a(pf() * int(E("NPF1", "1")))
    for g in range(2):
        for i in range(5):
            a(f"buffer_load_dwordx4 {vr(32+20*g+4*i,4)}, v6, s[20:23], s{sXG if g==0 else sWG} offen offset:{i*256}")
    EARLY = E("EARLY", "1") == "1"
    if EARLY:
        a(f"""
        s_cmp_lt_u32 s{sST}, 8
        s_cbranch_scc1 L_{name}_noearly
        v_lshlrev_b32 v2, 4, v{vLane}
        s_lshl_b32 s{sM0X}, s{sW}, 10
        s_sub_u32 s3, s{sST}, 8
        s_mul_i32 s{sWB}, s3, 81920
        """)
        a(srd(24, "s14", "s15", 1536*1280))
        for j in range(10):
            a(f"""
            s_add_u32 s3, s{sM0X}, {j*8192}
            s_mov_b32 m0, s3
            s_add_u32 s3, s3, s{sWB}
            buffer_load_dwordx4 v2, s[24:27], s3 offen lds
            """)
        a(f"""
        s_waitcnt vmcnt(10)
        s_branch L_{name}_early1
        L_{name}_noearly:
        s_waitcnt vmcnt(0)
        L_{name}_early1:
        """)
    for g in range(2):
        if not EARLY: a(f"s_waitcnt vmcnt({5 if g == 0 else 0})")
        su, sq = 8 + 4*g, 10 + 4*g
        a(f"v_mov_b32 v{su}, 0\nv_mov_b32 v{su+1}, 0\nv_mov_b32 v{sq}, 0\nv_mov_b32 v{sq+1}, 0")
        for r in range(20):
            x = 32 + 20*g + r; t = 16 + 2*(r & 1)
            a(f"v_lshlrev_b32 v{t}, 16, v{x}\nv_and_b32 v{t+1}, 0xffff0000, v{x}")
            a(f"v_pk_add_f32 {vr(su,2)}, {vr(su,2)}, {vr(t,2)}\nv_pk_fma_f32 {vr(sq,2)}, {vr(t,2)}, {vr(t,2)}, {vr(sq,2)}")
        a(f"v_add_f32 v{su}, v{su}, v{su+1}\nv_add_f32 v{sq}, v{sq}, v{sq+1}")
    for sh in (8, 4, 2, 1):
        a("s_nop 1")
        for r in (8, 10, 12, 14):
            a(f"v_add_f32_dpp v{r}, v{r}, v{r} row_ror:{sh} row_mask:0xf bank_mask:0xf")
    a(f"s_mov_b32 s{sT1}, {hexf(1.0/640)}")
    for g in range(2):
        su, sq = 8 + 4*g, 10 + 4*g
        a(f"""
        v_mul_f32 v{su}, s{sT1}, v{su}
        v_mul_f32 v{sq}, s{sT1}, v{sq}
        v_fma_f32 v{sq}, -v{su}, v{su}, v{sq}
        v_max_f32 v{sq}, 0, v{sq}
        v_add_f32 v{sq}, {hexf(1e-5)}, v{sq}
        v_rsq_f32 v{sq}, v{sq}
        s_nop 0
        v_mul_f32 v{su}, v{su}, v{sq}
        v_sub_f32 v{su}, 0, v{su}
        """)
    a(f"""
    v_lshlrev_b32 v7, 2, v4
    s_lshl_b32 s{sT0}, s{sT0}, 2
    s_add_u32 s{sT0}, s{sT0}, {STA_OFF}
    s_add_u32 s{sT1}, s{sT0}, 8192
    s_mov_b32 s60, 0x00010001
    s_mov_b32 s61, 0x00010001
    s_mov_b64 exec, s[60:61]
    buffer_store_dword v10, v7, s[28:31], s{sT0} offen sc0 sc1
    buffer_store_dword v8, v7, s[28:31], s{sT1} offen sc0 sc1
    buffer_store_dword v14, v7, s[28:31], s{sT0} offen offset:16 sc0 sc1
    buffer_store_dword v12, v7, s[28:31], s{sT1} offen offset:16 sc0 sc1
    s_mov_b64 exec, -1
    s_waitcnt vmcnt(0)
    s_barrier
    """)
    a(f"""
    s_cmp_lg_u32 s{sW}, 0
    s_cbranch_scc1 L_{name}_relay
    s_lshr_b32 s{sT0}, s{sST}, 2
    s_lshl_b32 s{sT0}, s{sT0}, 2
    v_mov_b32 v7, s{sT0}
    v_mov_b32 v8, 1
    s_mov_b64 exec, 1
    buffer_atomic_add v8, v7, s[{DBG}:{DBG+3}], 0 offen sc1
    s_mov_b64 exec, -1
    L_{name}_relay:
    """)
    if not fused:
        a(f"""
        s_cmp_lg_u32 s{sST}, 39
        s_cbranch_scc1 L_{name}_nz
        v_and_b32 v7, 63, v0
        v_lshlrev_b32 v7, 8, v7
        v_mov_b32 v8, 0
        s_mov_b32 s{sT0}, {FLG_OFF}
        buffer_store_dword v8, v7, s[28:31], s{sT0} offen
        L_{name}_nz:
        """)
    NP2 = (7 - int(E("NPF1", "1"))) if SPF else 0
    a(f"""
    s_cmp_ge_u32 s{sST}, 8
    s_cbranch_scc1 L_{name}_rjob
    """)
    a(pf() * NP2)
    a(f"""
    s_branch {("L_" + name + "_sdone") if fused else ("L_" + name + "_exit")}
    L_{name}_rjob:
    s_sub_u32 s{sST}, s{sST}, 8
    v_lshlrev_b32 v2, 4, v{vLane}
    v_lshrrev_b32 v10, 5, v{vLane}
    v_and_b32 v5, 15, v{vLane}
    v_lshrrev_b32 v6, 2, v5
    v_and_b32 v5, 3, v5
    v_lshlrev_b32 v5, 3, v5
    v_bfe_u32 v11, v{vLane}, 4, 1
    v_lshl_add_u32 v11, v11, 5, v5
    s_lshl_b32 s{sT1}, s{sW}, 10
    s_cmp_ge_u32 s{sST}, 24
    s_cbranch_scc1 L_{name}_rwo
    """)
    if not EARLY:
        a(srd(20, "s14", "s15", 1536*1280))
        a(f"s_mul_i32 s{sWG}, s{sST}, 81920")
        for j in range(10):
            a(f"""
            s_add_u32 s{sT0}, s{sT1}, {j*8192}
            s_mov_b32 m0, s{sT0}
            s_add_u32 s{sT0}, s{sT0}, s{sWG}
            buffer_load_dwordx4 v2, s[20:23], s{sT0} offen lds
            """)
    a(pf() * NP2)
    a(f"""
    v_lshl_add_u32 v4, v10, 2, v6
    v_mul_u32_u24 v4, 1280, v4
    v_add_u32 v4, v4, v11
    s_lshr_b32 s{sT0}, s{sW}, 1
    s_mul_i32 s{sT1}, s{sT0}, 20480
    s_and_b32 s{sFA}, s{sW}, 1
    s_mul_i32 s{sFA}, s{sFA}, 10
    s_lshl_b32 s{sLD}, s{sFA}, 6
    s_add_u32 s{sT1}, s{sT1}, s{sLD}
    v_add_u32 v4, s{sT1}, v4
    v_add_u32 v5, {8*1280}, v4
    s_lshl_b32 s3, s{sST}, 2
    s_add_u32 s3, s3, s{sT0}
    s_mul_i32 s3, s3, 20
    s_add_u32 s3, s3, s{sFA}
    s_lshl_b32 s3, s3, 10
    s_add_u32 s{sXG}, s3, {W2F_OFF}
    {"s_nop 0" if EARLY else "s_waitcnt vmcnt(" + str(NP2) + ")"}
    {"s_nop 0" if EARLY else "s_barrier"}
    """)
    for j in range(10):
        a(f"ds_read_b64_tr_b16 {vr(32+4*j,2)}, v4 offset:{j*64}\nds_read_b64_tr_b16 {vr(34+4*j,2)}, v5 offset:{j*64}")
    a("s_waitcnt lgkmcnt(0)")
    for j in range(10):
        a(f"buffer_store_dwordx4 {vr(32+4*j,4)}, v2, s[28:31], s{sXG} offen{ST}")
        if j < 9: a(f"s_add_u32 s{sXG}, s{sXG}, 1024")
    a(f"s_branch {DONE}")
    a(f"L_{name}_rwo:")
    a(srd(20, "s8", "s9", 640*1280))
    a(f"s_sub_u32 s{sST}, s{sST}, 24\ns_mul_i32 s{sWG}, s{sST}, 102400")
    for j in range(13):
        if j == 12:
            a(f"s_cmp_ge_u32 s{sW}, 4\ns_cbranch_scc1 L_{name}_rwo1")
        a(f"""
        s_add_u32 s{sT0}, s{sT1}, {j*8192}
        s_mov_b32 m0, s{sT0}
        s_add_u32 s{sT0}, s{sT0}, s{sWG}
        buffer_load_dwordx4 v2, s[20:23], s{sT0} offen lds
        """)
    a(f"L_{name}_rwo1:")
    base0 = [0, 8, 20, 28, 16]; base1 = [4, 12, 24, 32, 36]
    a("s_waitcnt vmcnt(0)\ns_barrier")
    a(f"s_mov_b32 s{sDX}, 0")
    a(f"""
    L_{name}_rwl:
    s_lshl_b32 s{sT0}, s{sDX}, 3
    s_add_u32 s{sT0}, s{sT0}, s{sW}
    s_cmp_ge_u32 s{sT0}, 100
    s_cbranch_scc1 {DONE}
    s_mul_i32 s{sT1}, s{sT0}, 3277
    s_lshr_b32 s{sT1}, s{sT1}, 16
    s_mul_i32 s3, s{sT1}, 20
    s_sub_u32 s3, s{sT0}, s3
    s_mul_i32 s{sXG}, s{sST}, 100
    s_add_u32 s{sXG}, s{sXG}, s{sT0}
    s_lshl_b32 s{sXG}, s{sXG}, 10
    s_add_u32 s{sXG}, s{sXG}, {WOF_OFF}
    s_lshl_b32 s3, s3, 6
    s_lshl_b32 s{sT1}, s{sT1}, 1
    v_add_u32 v7, s{sT1}, v10
    v_mul_u32_u24 v8, 52429, v7
    v_lshrrev_b32 v8, 18, v8
    v_mul_u32_u24 v9, 5, v8
    v_sub_u32 v9, v7, v9
    v_mul_u32_u24 v8, 40, v8
    v_lshlrev_b32 v12, 3, v9
    v_cmp_lt_u32 vcc, 1, v9
    v_add_u32 v13, 4, v12
    s_nop 0
    v_cndmask_b32 v12, v12, v13, vcc
    v_cmp_eq_u32 vcc, 4, v9
    v_add_u32 v13, 4, v12
    v_mov_b32 v14, 36
    v_cndmask_b32 v12, v12, 16, vcc
    v_cndmask_b32 v13, v13, v14, vcc
    v_add3_u32 v12, v12, v8, v6
    v_add3_u32 v13, v13, v8, v6
    v_mul_u32_u24 v12, 1280, v12
    v_mul_u32_u24 v13, 1280, v13
    v_add3_u32 v12, v12, v11, s3
    v_add3_u32 v13, v13, v11, s3
    ds_read_b64_tr_b16 v[32:33], v12
    ds_read_b64_tr_b16 v[34:35], v13
    s_add_u32 s{sDX}, s{sDX}, 1
    s_waitcnt lgkmcnt(0)
    buffer_store_dwordx4 v[32:35], v2, s[28:31], s{sXG} offen{ST}
    s_nop 1
    s_branch L_{name}_rwl
    """)
    if fused:
        a(f"""
        L_{name}_sdone:
        s_mov_b32 s{sKS}, 0
        s_branch L_{name}_spoll
        {DONE}:
        s_mov_b32 s{sKS}, 1
        L_{name}_spoll:
        s_waitcnt vmcnt(0)
        s_barrier
        s_cmp_lg_u32 s{sW}, 0
        s_cbranch_scc1 L_{name}_sbar
        v_mov_b32 v7, 0
        s_mov_b32 s{sT1}, 0
        L_{name}_ipoll:
        buffer_load_dword v8, v7, s[{DBG}:{DBG+3}], 0 offen sc1
        s_add_u32 s{sT1}, s{sT1}, 1
        s_waitcnt vmcnt(0)
        v_readfirstlane_b32 s{sT0}, v8
        s_cmp_ge_u32 s{sT0}, {NSTAT}
        s_cbranch_scc1 L_{name}_igot
        s_cmp_ge_u32 s{sT1}, 0x40000
        s_cbranch_scc1 L_{name}_igot
        s_sleep 8
        s_branch L_{name}_ipoll
        L_{name}_igot:
        s_cmp_eq_u32 s{sKS}, 0
        s_cbranch_scc1 L_{name}_sbar
        v_lshlrev_b32 v7, 8, v{vLane}
        v_mov_b32 v8, 1
        s_mov_b32 s3, {FLG_OFF + 88*256}
        s_mov_b64 exec, 0xff
        buffer_atomic_add v8, v7, s[28:31], s3 offen sc1
        s_mov_b64 exec, -1
        L_{name}_sbar:
        s_barrier
        s_branch {fused}
        """)
    a(f"L_{name}_end:")
    if DIAG:
        a(stamp(4)); a("s_waitcnt vmcnt(0)"); a(stamp(5)); a(stamp_flush(0, 8, 28))
    if fused:
        a(f"""
        s_waitcnt vmcnt(0)
        s_barrier
        s_cmp_lg_u32 s{sW}, 0
        s_cbranch_scc1 {fused}
        s_add_u32 s{sT0}, s{sCT}, 64
        s_add_u32 s{sT1}, s{sTB}, 80
        s_cmp_ge_u32 s{sCT}, 15
        s_cselect_b32 s{sT0}, s{sT1}, s{sT0}
        s_lshl_b32 s{sT0}, s{sT0}, 8
        s_add_u32 s{sT0}, s{sT0}, {FLG_OFF}
        v_mov_b32 v7, 0
        v_mov_b32 v8, 1
        s_mov_b64 exec, 1
        buffer_atomic_add v8, v7, s[28:31], s{sT0} offen sc1
        s_mov_b64 exec, -1
        s_branch {fused}
        """)
    a(f"L_{name}_exit:\ns_endpgm")
    if not fused: a(kernel_desc(name, 200))
    return a.text()
```

```python
from valu_gen import kernel, mf
def mf8(d,a,b): return f"    v_mfma_f32_32x32x8bf16_1k v[{d}:{d+15}], v[{a}:{a+1}], v[{b}:{b+1}], v[{d}:{d+15}]\n"
def mfc(d,a,b,c): return f"    v_mfma_f32_32x32x16_bf16 v[{d}:{d+15}], v[{a}:{a+3}], v[{b}:{b+3}], v[{c}:{c+15}]\n"
Q1=[4,8]; Q2=[12,14]; K1=[16,20]; K2=[24,26]; V1=[28,32]; V2=[36,40]; P1,P2=44,48
SS=[52,68]; O=[84,100]; CM=[84,100]
def body(lds):
    s=""
    for n in range(8):
        j,q=n>>1,n&1; p,pn=j&1,(j+1)&1; Sc,qn=SS[q],1-q; Sn=SS[qn]
        e=lambda r: f"    v_exp_f32 v{Sc+r}, v{Sc+r}\n"
        c=lambda P,i,r: f"    v_cvt_pk_bf16_f32 v{P+i}, v{Sc+r}, v{Sc+r+1}\n"
        if q==1 and lds: s+="    s_waitcnt lgkmcnt(0)\n"
        kq = p if q==0 else pn
        s+=f"    v_mfma_f32_32x32x16_bf16 v[{Sn}:{Sn+15}], v[{K1[kq]}:{K1[kq]+3}], v[{Q1[qn]}:{Q1[qn]+3}], 0\n"
        s+=e(0)+e(1)+e(2)+e(3)+c(P1,0,0)+c(P1,1,2)
        s+=mf(O[qn],V2[pn if q==0 else p],P2)
        if q==0 and lds:
            s+=f"    ds_read_b128 v[{K1[pn]}:{K1[pn]+3}], v120 offset:{j*1024}\n    ds_read_b64 v[{K2[pn]}:{K2[pn]+1}], v121 offset:{4096+j*512}\n"
            s+=f"    ds_read_b128 v[{V1[pn]}:{V1[pn]+3}], v120 offset:{8192+j*1024}\n    ds_read_b128 v[{V2[pn]}:{V2[pn]+3}], v120 offset:{12288+j*1024}\n"
        s+=e(4)+e(5)+e(6)+e(7)+c(P1,2,4)+c(P1,3,6)
        s+=mf8(Sn,K2[kq],Q2[qn])
        s+=e(8)+e(9)+e(10)+e(11)+c(P2,0,8)+c(P2,1,10)
        s+=mf(O[q],V1[p],P1)
        s+=e(12)+e(13)+e(14)+e(15)+c(P2,2,12)+c(P2,3,14)
    return s
def init(rand):
    s = "    v_and_b32 v120, 63, v127\n    v_lshlrev_b32 v121, 3, v120\n    v_lshlrev_b32 v120, 4, v120\n    v_mov_b32 v118, 0x9e3779b1\n"
    for i in range(4, 118):
        if rand and i < 52:
            s += f"    v_add_u32 v119, {i*7919+13}, v127\n    v_mul_lo_u32 v119, v119, v118\n    v_lshrrev_b32 v117, 13, v119\n    v_xor_b32 v119, v119, v117\n    v_mul_lo_u32 v119, v119, v118\n    v_and_b32 v119, 0x807f807f, v119\n    v_or_b32 v{i}, 0x3e803e80, v119\n"
        else: s += f"    v_mov_b32 v{i}, 0\n"
    if rand:
        s += "    v_lshlrev_b32 v116, 2, v127\n"
        for k in range(16):
            s += f"    v_add_u32 v119, {k*104729+7}, v127\n    v_mul_lo_u32 v119, v119, v118\n    v_lshrrev_b32 v117, 11, v119\n    v_xor_b32 v119, v119, v117\n    v_mul_lo_u32 v119, v119, v118\n    v_and_b32 v119, 0x807f807f, v119\n    v_or_b32 v119, 0x3e803e80, v119\n    ds_write_b32 v116, v119 offset:{k*1024}\n"
        s += "    s_waitcnt lgkmcnt(0)\n"
    return s
ks = {}
for rand in (0,1):
    for lds in (0,1):
        ks[f"r{rand}_l{lds}"] = (body(lds), init(rand))
out = '.amdgcn_target "amdgcn-amd-amdhsa--gfx950"\n'
for n,(b,i) in ks.items(): out += kernel("k_"+n, b, init=i, iters=100)
open("att3.s","w").write(out)
open("att3_names.txt","w").write("\n".join("k_"+n for n in ks))
```

```python
from common import *
CSL = 147456
K1_LDS = CSL + 512
XS, WS0 = 32768, 98304
ST = {"0": "", "1": " sc0 sc1", "2": " nt", "3": " sc1", "4": " sc0 sc1 nt"}[E("WT", "1")]
def k1(name, fused=None, sym=None):
    a = Asm()
    a(kernel_head(sym or name))
    NSTAT = 5 if fused else 4
    DONE = f"L_{name}_rdone" if fused else f"L_{name}_exit"
    sW, sTB, sCT, sLD, sXB, sWB, sM0X, sKS, sST, sT0, sT1, sCur = 32,33,34,35,36,37,38,39,40,41,42,43
    sScale, sWM, sWN, sFA, sDX, sDW, sXG, sWG, sP, sLD6, sMX, sMW = 45,46,47,48,49,50,51,52,53,54,60,61
    DBG = 56
    vLane = 1
    vXD, vWD = 194, 198
    vXA, vWA = 4, 8
    vCs, vTmp = 12, 14
    vEA = 16
    vAB = 24
    vPoll, vPollA = 28, 29
    FR = [32, 48]
    ACC = lambda ft, tt: 64 + (ft*2+tt)*16
    VST = 128
    a(f"""
    s_cmp_ge_u32 s2, 256
    s_cbranch_scc1 L_{name}_exit
    """)
    if E("PERM"):
        a(f"s_mul_i32 s2, s2, {int(E('PERM'))}\ns_add_u32 s2, s2, 77\ns_and_b32 s2, s2, 255")
    a(stamp(0))
    a(d2_start())
    a(f"""
    s_load_dwordx4 s[4:7], s[0:1], 0
    s_load_dwordx2 s[8:9], s[0:1], 16
    s_load_dwordx4 s[12:15], s[0:1], 32
    s_load_dwordx2 s[16:17], s[0:1], 64
    s_load_dwordx2 s[18:19], s[0:1], 56
    v_lshrrev_b32 v2, 6, v0
    v_and_b32 v{vLane}, 63, v0
    v_readfirstlane_b32 s{sW}, v2
    """)
    if fused and E("CPF0", "0") == "1":
        a(f"""
        s_cmp_ge_u32 s2, 8
        s_cbranch_scc1 L_{name}_nocpf0
        s_cmp_lg_u32 s{sW}, 7
        s_cbranch_scc1 L_{name}_nocpf0
        """)
        a(code_prefetch("c", sym, sym, sW, vLane, 1, 29))
        a(f"L_{name}_nocpf0:")
    a(f"""
    s_and_b32 s{sT0}, s2, 7
    s_lshr_b32 s{sT1}, s2, 3
    s_and_b32 s{sKS}, s{sT1}, 3
    s_and_b32 s3, s{sT0}, 1
    s_lshl_b32 s3, s3, 2
    s_add_u32 s{sTB}, s{sKS}, s3
    """)
    if E("REMAP", "0") == "1":
        a(f"""
        s_lshr_b32 s{sLD}, s{sT0}, 1
        s_lshl_b32 s3, s{sLD}, 3
        s_lshr_b32 s{sCT}, 0x0e140700, s3
        s_and_b32 s{sCT}, s{sCT}, 0xff
        s_lshr_b32 s3, s{sT1}, 2
        s_add_u32 s{sCT}, s{sCT}, s3
        s_cmp_eq_u32 s{sLD}, 3
        s_cselect_b32 s{sLD}, 6, 7
        s_cmp_ge_u32 s3, s{sLD}
        s_cbranch_scc1 L_{name}_spare
        """)
    else:
        a(f"""
        s_lshr_b32 s{sCT}, s{sT0}, 1
        s_mul_i32 s{sCT}, s{sCT}, 7
        s_lshr_b32 s3, s{sT1}, 2
        s_add_u32 s{sCT}, s{sCT}, s3
        s_cmp_ge_u32 s3, 7
        s_cbranch_scc1 L_{name}_spare
        s_cmp_ge_u32 s{sCT}, 27
        s_cbranch_scc1 L_{name}_spare
        """)
    rot = E("ROT", "0")
    if rot == "1":
        a(f"""
        s_mul_i32 s3, s3, 3
        s_mul_i32 s{sKS}, s{sKS}, 5
        s_lshr_b32 s{sKS}, s{sKS}, 1
        s_add_u32 s{sKS}, s{sKS}, s3
        s_cmp_ge_u32 s{sKS}, 20
        s_cselect_b32 s3, 20, 0
        s_sub_u32 s{sKS}, s{sKS}, s3
        s_cmp_ge_u32 s{sKS}, 10
        s_cselect_b32 s3, 10, 0
        s_sub_u32 s{sKS}, s{sKS}, s3
        """)
    elif rot == "2":
        a(f"""
        s_add_u32 s3, s3, s{sKS}
        s_and_b32 s3, s3, 1
        s_mul_i32 s{sKS}, s3, 5
        """)
    else:
        a(f"s_mov_b32 s{sKS}, 0")
    a(f"""
    s_cmp_ge_u32 s{sCT}, 15
    s_cselect_b32 s{sLD}, 3072, 3840
    s_cselect_b32 s3, 15, 0
    s_sub_u32 s3, s{sCT}, s3
    s_lshl_b32 s{sWB}, s3, 8
    s_mul_i32 s{sXB}, s{sTB}, {256*1280}
    s_lshl_b32 s{sM0X}, s{sW}, 10
    s_lshl_b32 s{sLD6}, s{sLD}, 6
    s_and_b32 s{sWM}, s{sW}, 3
    s_lshr_b32 s{sWN}, s{sW}, 2
    s_and_b32 s{sFA}, s{sW}, 1
    s_lshr_b32 s{sP}, s{sWM}, 1
    v_lshrrev_b32 v12, 4, v{vLane}
    s_lshl_b32 s3, s{sW}, 2
    v_add_u32 v13, s3, v12
    v_xor_b32 v5, v13, v{vLane}
    v_and_b32 v5, 7, v5
    v_lshrrev_b32 v4, 3, v{vLane}
    v_lshl_add_u32 v4, s{sW}, 3, v4
    v_mul_u32_u24 v4, 1280, v4
    v_lshl_add_u32 v{vXD}, v5, 4, v4
    v_add_u32 v{vXD+1}, {64*1280}, v{vXD}
    v_add_u32 v{vXD+2}, {128*1280}, v{vXD}
    v_add_u32 v{vXD+3}, {192*1280}, v{vXD}
    v_lshlrev_b32 v5, 2, v12
    v_xor_b32 v5, v5, v{vLane}
    v_and_b32 v5, 15, v5
    v_mul_u32_u24 v4, s{sLD}, v13
    v_lshl_add_u32 v{vWD}, v5, 4, v4
    s_lshl_b32 s3, s{sLD}, 5
    v_add_u32 v{vWD+1}, s3, v{vWD}
    v_and_b32 v192, 31, v{vLane}
    v_lshrrev_b32 v193, 5, v{vLane}
    v_bfe_u32 v14, v{vLane}, 1, 3
    s_lshl_b32 s3, s{sP}, 1
    v_add_u32 v15, s3, v193
    v_xor_b32 v14, v14, v15
    v_lshl_add_u32 v15, s{sWM}, 6, v192
    v_lshlrev_b32 v15, 7, v15
    v_lshl_add_u32 v{vXA}, v14, 4, v15
    v_xor_b32 v{vXA+1}, 32, v{vXA}
    v_xor_b32 v{vXA+2}, 64, v{vXA}
    v_xor_b32 v{vXA+3}, 0x60, v{vXA}
    v_bfe_u32 v14, v{vLane}, 2, 2
    v_lshl_add_u32 v15, v193, 3, v14
    s_lshl_b32 s{sT0}, s{sP}, 4
    v_add_u32 v15, s{sT0}, v15
    s_lshl_b32 s3, s{sWN}, 1
    s_add_u32 s3, s3, s{sFA}
    v_xor_b32 v14, s3, v14
    v_lshlrev_b32 v14, 6, v14
    v_lshl_add_u32 v15, v15, 8, v14
    v_and_b32 v14, 1, v12
    v_lshl_add_u32 v15, v14, 5, v15
    v_and_b32 v14, 3, v{vLane}
    v_lshl_add_u32 v15, v14, 3, v15
    v_add_u32 v{vWA}, {WS0}, v15
    v_xor_b32 v{vWA+1}, 0x1000, v{vWA}
    v_xor_b32 v{vWA+2}, 64, v{vWA}
    v_xor_b32 v{vWA+3}, 0x1040, v{vWA}
    v_and_b32 v14, 127, v0
    v_lshlrev_b32 v14, 2, v14
    v_add_u32 v14, {CSL}, v14
    v_mov_b32 v{vCs}, 0
    v_mov_b32 v{vCs+1}, 0
    ds_write_b32 v14, v{vCs}
    s_mov_b32 s{sST}, 0
    s_mov_b32 s{sCur}, 0
    s_mov_b32 s{sScale}, 0xffff0000
    s_waitcnt lgkmcnt(0)
    """)
    a(stamp(6))
    a(srd(20, "s4", "s5", S*D*2))
    a(f"""
    s_cmp_ge_u32 s{sCT}, 15
    s_cselect_b32 s24, s12, s6
    s_cselect_b32 s25, s13, s7
    s_cselect_b32 s26, {640*3072}, {640*3840}
    s_mov_b32 s27, 0x00020000
    v_mov_b32 v{vPollA}, 0
    v_mov_b32 v{vEA}, 0
    v_mov_b32 v{vEA+1}, 0
    """)
    a(srd(28, "s16", "s17", WS_SIZE))
    a(srd(DBG, "s18", "s19", 256))
    def issue_pre():
        t = f"s_lshl_b32 s{sXG}, s{sKS}, 7\ns_add_u32 s{sXG}, s{sXG}, s{sXB}\n"
        t += f"s_mul_i32 s{sWG}, s{sLD6}, s{sKS}\ns_add_u32 s{sWG}, s{sWG}, s{sWB}\n"
        t += f"s_add_u32 s{sKS}, s{sKS}, 1\ns_cmp_ge_u32 s{sKS}, 10\ns_cselect_b32 s{sKS}, 0, s{sKS}\n"
        return t
    def dma_m0(i): return f"s_add_u32 m0, s{sMX}, {i*8192}\n" if i < 4 else f"s_add_u32 m0, s{sMW}, {(i-4)*8192}\n"
    def dma_ld(i):
        if i < 4: return f"buffer_load_dwordx4 v{vXD+i}, s[20:23], s{sXG} offen lds\n"
        return f"buffer_load_dwordx4 v{vWD+i-4}, s[24:27], s{sWG} offen lds\n"
    def issue():
        t = issue_pre()
        for i in range(6): t += dma_m0(i) + "s_nop 0\n" + dma_ld(i)
        return t
    def slot_m0(slot_sgpr=None, slot=None):
        if slot is not None:
            return f"s_add_u32 s{sMX}, s{sM0X}, {slot*XS}\ns_add_u32 s{sMW}, s{sM0X}, {WS0+slot*16384}\n"
        return (f"s_lshl_b32 s{sMX}, s{slot_sgpr}, 15\ns_add_u32 s{sMX}, s{sMX}, s{sM0X}\n"
                f"s_lshl_b32 s{sMW}, s{slot_sgpr}, 14\ns_add_u32 s{sMW}, s{sMW}, s{sM0X}\ns_add_u32 s{sMW}, s{sMW}, {WS0}\n")
    if E("PF", "0") != "0":
        PF0 = int(E("PF0", "3"))
        a(f"""
        s_add_u32 s{sT0}, s{sW}, {PF0}
        s_cmp_ge_u32 s{sT0}, 10
        s_cbranch_scc1 L_{name}_nopf
        s_lshr_b32 s{sT1}, s2, 3
        s_mul_i32 s3, s{sT1}, 37
        v_add_u32 v14, s3, v{vLane}
        v_min_u32 v14, 0x3ff, v14
        s_and_b32 s3, s2, 1
        s_lshl_b32 s3, s3, 10
        v_add_u32 v14, s3, v14
        v_mul_u32_u24 v14, 1280, v14
        s_lshl_b32 s3, s{sT0}, 7
        s_mov_b32 exec_hi, 0x1f
        buffer_load_dword v30, v14, s[20:23], s3 offen
        s_mov_b64 exec, 0xffffffff
        s_lshl_b32 s3, s{sT1}, 5
        v_add_u32 v14, s3, v{vLane}
        v_mul_u32_u24 v15, 4682, v14
        v_lshrrev_b32 v15, 16, v15
        v_mul_u32_u24 v18, 14, v15
        v_sub_u32 v14, v14, v18
        s_lshl_b32 s3, s{sT0}, 6
        v_add_u32 v15, s3, v15
        s_bfe_u32 s3, s2, 0x20001
        s_mul_i32 s3, s3, 14
        v_add_u32 v14, s3, v14
        v_min_u32 v14, 53, v14
        v_lshlrev_b32 v14, 7, v14
        v_cmp_gt_u32 vcc, 3840, v14
        v_mul_u32_u24 v18, 3840, v15
        v_mul_u32_u24 v19, 3072, v15
        v_add_u32 v18, v18, v14
        v_add_u32 v19, v19, v14
        v_subrev_u32 v19, 3840, v19
        v_cndmask_b32 v18, v19, v18, vcc
        v_mov_b32 v20, s12
        v_mov_b32 v21, s13
        v_mov_b32 v22, s6
        v_mov_b32 v23, s7
        v_cndmask_b32 v20, v20, v22, vcc
        v_cndmask_b32 v21, v21, v23, vcc
        v_add_co_u32 v20, vcc, v20, v18
        s_nop 1
        v_addc_co_u32 v21, vcc, 0, v21, vcc
        global_load_dword v31, v[20:21], off
        s_mov_b64 exec, -1
        L_{name}_nopf:
        """)
    NPRE = int(E("NPRE", "2"))
    a(f"L_{name}_pre:")
    a(slot_m0(slot_sgpr=sCur)); a(issue())
    a(f"""
    s_add_u32 s{sCur}, s{sCur}, 1
    s_cmp_lt_u32 s{sCur}, {NPRE}
    {"s_barrier" if E("PBAR", "1") == "1" else "s_nop 0"}
    s_cbranch_scc1 L_{name}_pre
    """)
    if NPRE <= 2: a(slot_m0(slot_sgpr=sCur) + issue_pre())
    a(f"s_mov_b32 s{sCur}, 0")
    a(stamp(7))
    def late_setup(orient):
        t = f"""
        s_lshl_b32 s{sT0}, s{sTB}, 2
        v_mov_b32 v{vPollA}, s{sT0}
        """
        if orient == 1:
            t += f"""
            s_mov_b32 s{sT1}, 52429
            s_sub_u32 s3, s{sCT}, 10
            s_lshl_b32 s3, s3, 7
            s_lshl_b32 s{sT0}, s{sWN}, 6
            s_add_u32 s3, s3, s{sT0}
            v_mul_u32_u24 v24, 320, v193
            """
            for ft in range(2):
                t += f"""
                s_xor_b32 s{sT0}, s{sFA}, {ft}
                s_lshl_b32 s{sT0}, s{sT0}, 5
                s_add_u32 s{sT0}, s{sT0}, s3
                v_add_u32 v30, s{sT0}, v192
                v_mul_u32_u24 v31, s{sT1}, v30
                v_lshrrev_b32 v31, 20, v31
                v_mul_u32_u24 v25, 20, v31
                v_sub_u32 v25, v30, v25
                v_mul_u32_u24 v31, {128*640}, v31
                v_lshl_add_u32 v31, v25, 4, v31
                v_add_u32 v{vEA+ft}, v31, v24
                """
        return t
    def reads(s, fs):
        if E("NOREAD"): return [""] * 6
        b = FR[fs]
        t = [f"ds_read_b128 {vr(b,4)}, v{vXA+s}\n", f"ds_read_b128 {vr(b+4,4)}, v{vXA+s} offset:4096\n"]
        for ft in range(2):
            o = (s >> 1) * 8192
            t.append(f"ds_read_b64_tr_b16 {vr(b+8+ft*4,2)}, v{vWA+ft*2+(s&1)} offset:{o}\n")
            t.append(f"ds_read_b64_tr_b16 {vr(b+10+ft*4,2)}, v{vWA+ft*2+(s&1)} offset:{o+1024}\n")
        return t
    def compute(s, fs, orient, zero=False, rd=None, extra=None):
        b = FR[fs]; X = [b, b+4]; W = [b+8, b+12]
        t = ""; k = 0
        for ft in range(2):
            for tt in range(2):
                c = "0" if zero else None
                if orient == 0: t += mfma(ACC(ft,tt), W[ft], X[tt], c) + "\n"
                else: t += mfma(ACC(ft,tt), X[tt], W[ft], c) + "\n"
                if extra: t += extra[k]
                elif rd and k < 3: t += rd[2*k] + rd[2*k+1]
                if (s & 1) == 0 and not E("NOCS"):
                    t += f"v_lshlrev_b32 v{vTmp}, 16, v{W[0]+k}\nv_and_b32 v{vTmp+1}, s{sScale}, v{W[0]+k}\n"
                    t += f"v_add_f32 v{vCs}, v{vCs}, v{vTmp}\nv_add_f32 v{vCs+1}, v{vCs+1}, v{vTmp+1}\n"
                k += 1
        return t
    def dma_extra(rd):
        return [dma_m0(0) + rd[0] + dma_ld(0) + dma_m0(1) + rd[1] + dma_ld(1),
                dma_m0(2) + rd[2] + dma_ld(2) + dma_m0(3) + rd[3] + dma_ld(3),
                dma_m0(4) + rd[4] + dma_ld(4) + dma_m0(5) + rd[5] + dma_ld(5), ""]
    a(f"""
    s_waitcnt vmcnt({6*(NPRE-1)})
    s_barrier
    """)
    a(stamp(1))
    a("".join(reads(0, 0)))
    a(f"""
    s_cmp_ge_u32 s{sCT}, 10
    s_cbranch_scc0 L_{name}_ent0
    s_cmp_lt_u32 s{sCT}, 15
    s_cbranch_scc1 L_{name}_ent1
    """)
    def rotate_s():
        return f"""s_cmp_eq_u32 s{sCur}, 2
        s_cselect_b32 s{sDX}, {-2*XS & 0xffffffff}, {XS}
        s_cselect_b32 s{sDW}, {-2*16384 & 0xffffffff}, 16384
        s_cselect_b32 s{sCur}, -1, s{sCur}
        s_add_u32 s{sCur}, s{sCur}, 1
        """
    def rotate_v(lo, hi):
        t = ""
        for r in range(lo, hi):
            t += f"v_add_u32 v{vXA+r}, s{sDX}, v{vXA+r}\nv_add_u32 v{vWA+r}, s{sDW}, v{vWA+r}\n"
        return t
    for orient in range(2):
        L = f"L_{name}_loop{orient}"
        a(f"L_{name}_ent{orient}:")
        a("s_waitcnt lgkmcnt(0)")
        if NPRE == 2: a(compute(0, 0, orient, zero=True, extra=dma_extra(reads(1, 1))))
        elif NPRE == 1:
            ex = dma_extra(reads(1, 1)); ex[3] += slot_m0(slot=2) + issue_pre()
            a(compute(0, 0, orient, zero=True, extra=ex))
            a("s_waitcnt lgkmcnt(0)")
            ex = dma_extra(reads(2, 0)); ex[3] += slot_m0(slot_sgpr=sCur) + issue_pre() + rotate_s()
            a(compute(1, 1, orient, extra=ex))
            a(f"s_branch {L}_k2")
        else: a(compute(0, 0, orient, zero=True, rd=reads(1, 1)))
        if NPRE != 1: a(f"s_branch {L}_k1")
        a(f"{L}:")
        a("s_waitcnt lgkmcnt(0)")
        a(compute(0, 0, orient, rd=reads(1, 1)))
        a(f"{L}_k1:")
        a("s_waitcnt lgkmcnt(0)")
        r2 = reads(2, 0)
        a(compute(1, 1, orient, extra=[r2[0] + r2[1] + slot_m0(slot_sgpr=sCur), r2[2] + r2[3] + issue_pre(), r2[4] + r2[5] + rotate_s(), ""]))
        a(f"{L}_k2:")
        a("s_waitcnt lgkmcnt(0)")
        r3 = reads(3, 1)
        a(compute(2, 0, orient, extra=[r3[0] + r3[1], r3[2] + r3[3], r3[4] + r3[5], rotate_v(0, 4)]))
        a(f"""
        s_cmp_ge_u32 s{sST}, 7
        s_cbranch_scc1 {L}_tail
        s_waitcnt vmcnt(6) lgkmcnt(0)
        s_barrier
        """)
        a(compute(3, 1, orient, extra=dma_extra(reads(0, 0))))
        a(f"""
        s_add_u32 s{sST}, s{sST}, 1
        s_branch {L}
        {L}_tail:
        s_cmp_ge_u32 s{sST}, 9
        s_cbranch_scc1 {L}_last
        s_cmp_ge_u32 s{sST}, 8
        s_cbranch_scc1 {L}_w0
        s_waitcnt vmcnt(6) lgkmcnt(0)
        s_barrier
        """)
        a(late_setup(orient))
        a(f"""
        buffer_load_dword v{vPoll}, v{vPollA}, s[{DBG}:{DBG+3}], 0 offen sc1
        s_branch {L}_go
        {L}_w0:
        s_waitcnt vmcnt(0) lgkmcnt(0)
        s_barrier
        s_mov_b32 s{sT1}, 0
        {L}_spin:
        v_readfirstlane_b32 s{sT0}, v{vPoll}
        s_add_u32 s{sT1}, s{sT1}, 1
        s_cmp_ge_u32 s{sT0}, {0 if E("NOSPARE") else NSTAT}
        s_cbranch_scc1 {L}_got
        s_cmp_ge_u32 s{sT1}, 0x40000
        s_cbranch_scc1 {L}_got
        s_sleep 2
        buffer_load_dword v{vPoll}, v{vPollA}, s[{DBG}:{DBG+3}], 0 offen sc1
        s_waitcnt vmcnt(0)
        s_branch {L}_spin
        {L}_got:
        s_lshl_b32 s{sT0}, s{sTB}, 10
        s_lshl_b32 s{sT1}, s{sWM}, 8
        s_add_u32 s{sT0}, s{sT0}, s{sT1}
        s_add_u32 s{sT0}, s{sT0}, {STA_OFF}
        s_add_u32 s{sT1}, s{sT0}, 8192
        """)
        if orient == 0:
            a(f"""
            v_lshlrev_b32 v30, 2, v192
            buffer_load_dword v{vAB}, v30, s[28:31], s{sT0} offen sc1
            buffer_load_dword v{vAB+1}, v30, s[28:31], s{sT1} offen sc1
            buffer_load_dword v{vAB+2}, v30, s[28:31], s{sT0} offen offset:128 sc1
            buffer_load_dword v{vAB+3}, v30, s[28:31], s{sT1} offen offset:128 sc1
            """)
        else:
            a("v_lshlrev_b32 v30, 4, v193")
            for tt in range(2):
                for i in range(4):
                    a(f"buffer_load_dwordx4 {vr(VST+32*tt+4*i,4)}, v30, s[28:31], s{sT0} offen offset:{tt*128+i*32} sc1")
                    a(f"buffer_load_dwordx4 {vr(VST+32*tt+16+4*i,4)}, v30, s[28:31], s{sT1} offen offset:{tt*128+i*32} sc1")
        a(f"{L}_go:")
        a(compute(3, 1, orient, rd=reads(0, 0)))
        a(f"""
        s_add_u32 s{sST}, s{sST}, 1
        s_branch {L}
        {L}_last:
        s_waitcnt lgkmcnt(0)
        """)
        a(compute(3, 1, orient))
        if orient == 0: a(f"s_branch L_{name}_stats")
    a(f"L_{name}_stats:")
    a(stamp(2))
    a(f"""
    v_add_f32 v{vCs}, v{vCs}, v{vCs+1}
    v_mov_b32 v{vTmp}, v{vCs}
    s_lshl_b32 s{sT0}, s{sWN}, 6
    s_lshl_b32 s{sT1}, s{sFA}, 5
    s_add_u32 s{sT0}, s{sT0}, s{sT1}
    v_mov_b32 v13, v{vCs}
    s_nop 1
    v_permlane32_swap_b32 v13, v{vTmp}
    v_add_u32 v30, s{sT0}, v192
    v_lshlrev_b32 v30, 2, v30
    v_add_u32 v30, {CSL}, v30
    v_add_f32 v13, v13, v{vTmp}
    s_mov_b64 exec, 0xffffffff
    ds_add_f32 v30, v13
    s_mov_b64 exec, -1
    s_lshl_b32 s{sT0}, s{sTB}, 3
    s_lshl_b32 s{sT1}, s{sWM}, 1
    s_add_u32 s{sST}, s{sT0}, s{sT1}
    s_waitcnt lgkmcnt(0)
    s_barrier
    """)
    a(stamp(3))
    a(f"""
    s_cmp_ge_u32 s{sCT}, 10
    s_cbranch_scc0 L_{name}_epiT
    s_cmp_lt_u32 s{sCT}, 15
    s_cbranch_scc1 L_{name}_epiV
    L_{name}_epiT:
    s_lshl_b32 s{sT0}, s{sWN}, 8
    v_lshlrev_b32 v30, 4, v193
    v_add_u32 v30, s{sT0}, v30
    v_add_u32 v30, {CSL}, v30
    s_lshl_b32 s{sT0}, s{sFA}, 7
    v_add_u32 v31, s{sT0}, v30
    s_xor_b32 s{sT0}, s{sT0}, 128
    v_add_u32 v30, s{sT0}, v30
    """)
    for i in range(4): a(f"ds_read_b128 {vr(32+4*i,4)}, v31 offset:{i*32}")
    for i in range(4): a(f"ds_read_b128 {vr(48+4*i,4)}, v30 offset:{i*32}")
    def norm_pair_tok(accreg, csreg, ab, tmp):
        return (f"v_pk_mul_f32 {vr(tmp,2)}, {vr(csreg,2)}, {vr(ab,2)} op_sel:[0,1] op_sel_hi:[1,1]\n"
                f"v_pk_fma_f32 {vr(accreg,2)}, {vr(accreg,2)}, {vr(ab,2)}, {vr(tmp,2)} op_sel:[0,0,0] op_sel_hi:[1,0,1]\n")
    a(f"""
    s_cmp_lt_u32 s{sCT}, 5
    s_cselect_b32 s{sScale}, {hexf(QSCALE)}, 1.0
    s_cselect_b32 s{sXG}, {QF_OFF}, {KF_OFF}
    s_cselect_b32 s3, 0, 5
    s_sub_u32 s3, s{sCT}, s3
    s_lshl_b32 s3, s3, 4
    s_lshl_b32 s{sT0}, s{sWN}, 3
    s_add_u32 s3, s3, s{sT0}
    s_mul_i32 s{sT0}, s{sST}, 80
    s_add_u32 s3, s3, s{sT0}
    s_lshl_b32 s3, s3, 9
    s_add_u32 s{sXG}, s{sXG}, s3
    v_lshlrev_b32 v{vEA}, 4, v192
    v_lshl_add_u32 v{vEA}, v193, 9, v{vEA}
    s_waitcnt vmcnt(0)
    """)
    for r in range(4): a(f"v_mul_f32 v{vAB+r}, s{sScale}, v{vAB+r}")
    a(f"""
    s_cmp_ge_u32 s{sCT}, 15
    s_cbranch_scc1 L_{name}_epiH
    s_waitcnt lgkmcnt(0)
    """)
    for ft in range(2):
        for tt in range(2):
            ab = vAB + 2*tt
            a(f"""
            s_xor_b32 s{sT0}, s{sFA}, {ft}
            s_lshl_b32 s{sT0}, s{sT0}, 11
            s_add_u32 s{sT0}, s{sT0}, s{sXG}
            """)
            if tt: a(f"s_add_u32 s{sT0}, s{sT0}, {80*512}")
            for half in range(2):
                A0 = ACC(ft,tt) + 8*half
                for i in range(2):
                    A = A0 + 4*i; C = 32 + ft*16 + 8*half + 4*i
                    a(norm_pair_tok(A, C, ab, 28)); a(norm_pair_tok(A+2, C+2, ab, 30))
                for p in range(4): a(f"v_cvt_pk_bf16_f32 v{A0+p}, v{A0+2*p}, v{A0+2*p+1}")
                a(f"s_nop 0\nv_permlane32_swap_b32 v{A0}, v{A0+2}\nv_permlane32_swap_b32 v{A0+1}, v{A0+3}")
                a(f"buffer_store_dwordx4 {vr(A0,4)}, v{vEA}, s[28:31], s{sT0} offen offset:{half*1024}{ST}")
    a(f"s_branch L_{name}_end")
    a(f"L_{name}_epiH:")
    a(f"""
    s_mul_i32 s{sT0}, s{sST}, 96
    s_sub_u32 s3, s{sCT}, 15
    s_lshl_b32 s3, s3, 3
    s_add_u32 s{sT0}, s{sT0}, s3
    s_lshl_b32 s3, s{sWN}, 2
    s_add_u32 s{sT0}, s{sT0}, s3
    s_lshl_b32 s{sT0}, s{sT0}, 10
    s_add_u32 s{sXG}, s{sT0}, {HF_OFF}
    v_lshlrev_b32 v4, 4, v{vLane}
    s_waitcnt lgkmcnt(0)
    """)
    for ft in range(2):
        for tt in range(2):
            ab = vAB + 2*tt
            a(f"""
            s_xor_b32 s{sT0}, s{sFA}, {ft}
            s_lshl_b32 s{sT0}, s{sT0}, 11
            s_add_u32 s{sT0}, s{sT0}, s{sXG}
            s_add_u32 s{sT0}, s{sT0}, {tt*96*1024}
            """)
            for half in range(2):
                A0 = ACC(ft,tt) + 8*half
                for i in range(2):
                    A = A0 + 4*i; C = 32 + ft*16 + 8*half + 4*i
                    a(norm_pair_tok(A, C, ab, 28)); a(norm_pair_tok(A+2, C+2, ab, 30))
                for p in range(4):
                    a(f"v_cvt_pk_bf16_f32 v{A0+p}, v{A0+2*p}, v{A0+2*p+1}")
                for p in range(4):
                    a(f"v_pk_max_i16 v{A0+p}, v{A0+p}, 0")
                a(f"buffer_store_dwordx4 {vr(A0,4)}, v4, s[28:31], s{sT0} offen offset:{half*1024}{ST}")
    a(f"s_branch L_{name}_end")
    a(f"L_{name}_epiV:")
    a(f"""
    s_lshl_b32 s{sT0}, s{sWN}, 6
    v_add_u32 v30, s{sT0}, v192
    v_lshlrev_b32 v30, 2, v30
    v_add_u32 v30, {CSL}, v30
    s_lshl_b32 s{sT1}, s{sFA}, 7
    v_add_u32 v31, s{sT1}, v30
    s_xor_b32 s{sT1}, s{sT1}, 128
    v_add_u32 v30, s{sT1}, v30
    ds_read_b32 v24, v31
    ds_read_b32 v26, v30
    s_mul_i32 s{sT0}, s{sST}, 1280
    s_add_u32 s{sXG}, s{sT0}, {VF_OFF}
    s_waitcnt vmcnt(0) lgkmcnt(0)
    """)
    for tt in range(2):
        if tt == 1: a(f"s_add_u32 s{sXG}, s{sXG}, 1280")
        for ft in range(2):
            cs = 24 + 2*ft
            A0 = ACC(ft,tt)
            for p in range(8):
                A = A0 + 2*p
                tmp = 28 + 2*(p & 1)
                a(f"v_pk_mul_f32 {vr(tmp,2)}, {vr(VST+32*tt+16+2*p,2)}, {vr(cs,2)} op_sel:[0,0] op_sel_hi:[1,0]")
                a(f"v_pk_fma_f32 {vr(A,2)}, {vr(A,2)}, {vr(VST+32*tt+2*p,2)}, {vr(tmp,2)}")
            for p in range(8): a(f"v_cvt_pk_bf16_f32 v{A0+p}, v{A0+2*p}, v{A0+2*p+1}")
            a(f"buffer_store_dwordx4 {vr(A0,4)}, v{vEA+ft}, s[28:31], s{sXG} offen{ST}")
            a(f"buffer_store_dwordx4 {vr(A0+4,4)}, v{vEA+ft}, s[28:31], s{sXG} offen offset:640{ST}")
    a(f"s_branch L_{name}_end")
    a(f"L_{name}_spare:")
    if E("NOSPARE"): a(f"s_branch L_{name}_exit")
    a(f"""
    s_and_b32 s{sT0}, s2, 7
    s_lshr_b32 s{sT1}, s2, 3
    s_cmp_ge_u32 s{sT1}, 28
    s_cbranch_scc1 L_{name}_sp1
    s_sub_u32 s{sT0}, s{sT0}, 6
    s_lshl_b32 s{sT0}, s{sT0}, 2
    s_add_u32 s{sT0}, s{sT0}, s{sT1}
    s_add_u32 s{sST}, s{sT0}, 8
    s_branch L_{name}_sp2
    L_{name}_sp1:
    s_lshl_b32 s{sT0}, s{sT0}, 2
    s_add_u32 s{sT0}, s{sT0}, s{sT1}
    s_sub_u32 s{sST}, s{sT0}, 28
    L_{name}_sp2:
    v_mov_b32 v20, 0
    v_mov_b32 v21, 0
    v_mov_b32 v22, 0
    v_lshrrev_b32 v4, 4, v{vLane}
    v_and_b32 v5, 15, v{vLane}
    v_mul_u32_u24 v6, 1280, v4
    v_lshl_add_u32 v6, v5, 4, v6
    """)
    if fused and E("CPF", "1") == "1" and E("CPFE", "0") == "1":
        a(f"""
        s_and_b32 s3, s{sST}, 3
        s_cmp_lg_u32 s3, 0
        s_cbranch_scc1 L_{name}_nocpf
        s_cmp_ge_u32 s{sST}, 32
        s_cbranch_scc1 L_{name}_nocpf
        s_cmp_ge_u32 s{sW}, 4
        s_cbranch_scc1 L_{name}_nocpf
        """)
        a(code_prefetch("a", sym, sym, sW, 0, 4, 25))
        a(f"L_{name}_nocpf:")
    a("s_waitcnt lgkmcnt(0)")
    a(srd(28, "s16", "s17", WS_SIZE))
    a(srd(DBG, "s18", "s19", 256))
    if fused and E("CPF", "1") == "1" and E("CPFE", "0") != "1":
        a(f"""
        s_and_b32 s3, s{sST}, 3
        s_cmp_lg_u32 s3, 0
        s_cbranch_scc1 L_{name}_nocpf
        s_cmp_ge_u32 s{sST}, 32
        s_cbranch_scc1 L_{name}_nocpf
        s_cmp_ge_u32 s{sW}, 4
        s_cbranch_scc1 L_{name}_nocpf
        """)
        a(code_prefetch("a", sym, sym, sW, 0, 4, 25))
        a(f"L_{name}_nocpf:")
    if E("TLBW", "0") == "1":
        a(f"""
        s_load_dwordx2 s[62:63], s[0:1], 48
        v_and_b32 v7, 15, v{vLane}
        v_lshlrev_b32 v7, 21, v7
        v_min_u32 v7, {WS_SIZE-4}, v7
        buffer_load_dword v25, v7, s[28:31], 0 offen
        s_waitcnt lgkmcnt(0)
        """)
        a(srd(20, "s62", "s63", S*D*2))
        a(f"""
        v_and_b32 v7, 1, v{vLane}
        v_lshlrev_b32 v7, 21, v7
        buffer_load_dword v26, v7, s[20:23], 0 offen
        """)
    if fused:
        a(f"""
        s_cmp_lg_u32 s{sST}, 39
        s_cbranch_scc1 L_{name}_noinit
        s_cmp_ge_u32 s{sW}, 2
        s_cbranch_scc1 L_{name}_init1
        v_lshlrev_b32 v7, 8, v0
        v_mov_b32 v8, 0
        s_mov_b32 s3, {FLG_OFF}
        buffer_store_dword v8, v7, s[28:31], s3 offen sc0 sc1
        s_waitcnt vmcnt(0)
        L_{name}_init1:
        s_barrier
        s_cmp_lg_u32 s{sW}, 0
        s_cbranch_scc1 L_{name}_noinit
        v_lshlrev_b32 v7, 2, v{vLane}
        v_mov_b32 v8, 1
        s_mov_b64 exec, 0xff
        buffer_atomic_add v8, v7, s[{DBG}:{DBG+3}], 0 offen sc1
        s_mov_b64 exec, -1
        L_{name}_noinit:
        """)
    a(f"""
    s_cmp_ge_u32 s{sST}, 32
    s_cbranch_scc1 L_{name}_relay
    """)
    a(srd(20, "s4", "s5", S*D*2))
    a(f"""
    s_lshl_b32 s{sT0}, s{sST}, 6
    s_lshl_b32 s{sT1}, s{sW}, 3
    s_add_u32 s{sT0}, s{sT0}, s{sT1}
    s_mul_i32 s{sXG}, s{sT0}, 1280
    s_add_u32 s{sWG}, s{sXG}, {4*1280}
    """)
    SPF = E("SPF", "1") == "1"
    def pf():
        if not SPF: return ""
        return "global_load_dword v24, v[20:21], off\nv_add_co_u32 v20, vcc, v22, v20\ns_nop 1\nv_addc_co_u32 v21, vcc, 0, v21, vcc\n"
    if SPF:
        a(f"""
        s_and_b32 s3, s{sST}, 3
        s_lshl_b32 s3, s3, 3
        s_add_u32 s3, s3, s{sW}
        s_cmp_ge_u32 s3, 16
        s_cbranch_scc1 L_{name}_pfw
        v_lshl_add_u32 v20, s3, 6, v{vLane}
        s_and_b32 s3, s2, 1
        s_lshl_b32 s3, s3, 10
        v_add_u32 v20, s3, v20
        v_mul_u32_u24 v20, 1280, v20
        v_add_u32 v20, {3*128}, v20
        v_mov_b32 v22, 128
        v_mov_b32 v18, s4
        v_mov_b32 v21, s5
        s_branch L_{name}_pfa
        L_{name}_pfw:
        s_sub_u32 s3, s3, 16
        s_min_u32 s3, s3, 13
        v_lshl_add_u32 v16, s3, 6, v{vLane}
        v_mul_u32_u24 v17, 4682, v16
        v_lshrrev_b32 v17, 16, v17
        v_mul_u32_u24 v18, 14, v17
        v_sub_u32 v16, v16, v18
        s_bfe_u32 s3, s2, 0x20001
        {"s_lshl_b32 s3, s3, 3" if E("REMAP", "0") == "1" else "s_mul_i32 s3, s3, 14"}
        {"s_lshr_b32 s3, 0x1c280e00, s3" if E("REMAP", "0") == "1" else ""}
        {"s_and_b32 s3, s3, 0xff" if E("REMAP", "0") == "1" else ""}
        v_add_u32 v16, s3, v16
        v_min_u32 v16, 53, v16
        v_lshlrev_b32 v16, 7, v16
        v_add_u32 v17, {3*64}, v17
        v_cmp_gt_u32 vcc, 3840, v16
        v_mul_u32_u24 v18, 3840, v17
        v_mul_u32_u24 v19, 3072, v17
        v_add_u32 v18, v18, v16
        v_add_u32 v19, v19, v16
        v_subrev_u32 v19, 3840, v19
        v_cndmask_b32 v20, v19, v18, vcc
        v_mov_b32 v18, s12
        v_mov_b32 v21, s13
        v_mov_b32 v16, s6
        v_mov_b32 v17, s7
        v_cndmask_b32 v18, v18, v16, vcc
        v_cndmask_b32 v21, v21, v17, vcc
        v_mov_b32 v22, {64*3072}
        v_mov_b32 v16, {64*3840}
        v_cndmask_b32 v22, v22, v16, vcc
        L_{name}_pfa:
        v_add_co_u32 v20, vcc, v18, v20
        s_nop 1
        v_addc_co_u32 v21, vcc, 0, v21, vcc
        """)
        a(pf() * int(E("NPF1", "1")))
    for g in range(2):
        for i in range(5):
            a(f"buffer_load_dwordx4 {vr(32+20*g+4*i,4)}, v6, s[20:23], s{sXG if g==0 else sWG} offen offset:{i*256}")
    EARLY = E("EARLY", "1") == "1"
    if EARLY:
        a(f"""
        s_cmp_lt_u32 s{sST}, 8
        s_cbranch_scc1 L_{name}_noearly
        v_lshlrev_b32 v2, 4, v{vLane}
        s_lshl_b32 s{sM0X}, s{sW}, 10
        s_sub_u32 s3, s{sST}, 8
        s_mul_i32 s{sWB}, s3, 81920
        """)
        a(srd(24, "s14", "s15", 1536*1280))
        for j in range(10):
            a(f"""
            s_add_u32 s3, s{sM0X}, {j*8192}
            s_mov_b32 m0, s3
            s_add_u32 s3, s3, s{sWB}
            buffer_load_dwordx4 v2, s[24:27], s3 offen lds
            """)
        a(f"""
        s_waitcnt vmcnt(10)
        s_branch L_{name}_early1
        L_{name}_noearly:
        s_waitcnt vmcnt(0)
        L_{name}_early1:
        """)
    for g in range(2):
        if not EARLY: a(f"s_waitcnt vmcnt({5 if g == 0 else 0})")
        su, sq = 8 + 4*g, 10 + 4*g
        a(f"v_mov_b32 v{su}, 0\nv_mov_b32 v{su+1}, 0\nv_mov_b32 v{sq}, 0\nv_mov_b32 v{sq+1}, 0")
        for r in range(20):
            x = 32 + 20*g + r; t = 16 + 2*(r & 1)
            a(f"v_lshlrev_b32 v{t}, 16, v{x}\nv_and_b32 v{t+1}, 0xffff0000, v{x}")
            a(f"v_pk_add_f32 {vr(su,2)}, {vr(su,2)}, {vr(t,2)}\nv_pk_fma_f32 {vr(sq,2)}, {vr(t,2)}, {vr(t,2)}, {vr(sq,2)}")
        a(f"v_add_f32 v{su}, v{su}, v{su+1}\nv_add_f32 v{sq}, v{sq}, v{sq+1}")
    for sh in (8, 4, 2, 1):
        a("s_nop 1")
        for r in (8, 10, 12, 14):
            a(f"v_add_f32_dpp v{r}, v{r}, v{r} row_ror:{sh} row_mask:0xf bank_mask:0xf")
    a(f"s_mov_b32 s{sT1}, {hexf(1.0/640)}")
    for g in range(2):
        su, sq = 8 + 4*g, 10 + 4*g
        a(f"""
        v_mul_f32 v{su}, s{sT1}, v{su}
        v_mul_f32 v{sq}, s{sT1}, v{sq}
        v_fma_f32 v{sq}, -v{su}, v{su}, v{sq}
        v_max_f32 v{sq}, 0, v{sq}
        v_add_f32 v{sq}, {hexf(1e-5)}, v{sq}
        v_rsq_f32 v{sq}, v{sq}
        s_nop 0
        v_mul_f32 v{su}, v{su}, v{sq}
        v_sub_f32 v{su}, 0, v{su}
        """)
    a(f"""
    v_lshlrev_b32 v7, 2, v4
    s_lshl_b32 s{sT0}, s{sT0}, 2
    s_add_u32 s{sT0}, s{sT0}, {STA_OFF}
    s_add_u32 s{sT1}, s{sT0}, 8192
    s_mov_b32 s60, 0x00010001
    s_mov_b32 s61, 0x00010001
    s_mov_b64 exec, s[60:61]
    buffer_store_dword v10, v7, s[28:31], s{sT0} offen sc0 sc1
    buffer_store_dword v8, v7, s[28:31], s{sT1} offen sc0 sc1
    buffer_store_dword v14, v7, s[28:31], s{sT0} offen offset:16 sc0 sc1
    buffer_store_dword v12, v7, s[28:31], s{sT1} offen offset:16 sc0 sc1
    s_mov_b64 exec, -1
    s_waitcnt vmcnt(0)
    s_barrier
    """)
    a(f"""
    s_cmp_lg_u32 s{sW}, 0
    s_cbranch_scc1 L_{name}_relay
    s_lshr_b32 s{sT0}, s{sST}, 2
    s_lshl_b32 s{sT0}, s{sT0}, 2
    v_mov_b32 v7, s{sT0}
    v_mov_b32 v8, 1
    s_mov_b64 exec, 1
    buffer_atomic_add v8, v7, s[{DBG}:{DBG+3}], 0 offen sc1
    s_mov_b64 exec, -1
    L_{name}_relay:
    """)
    if not fused:
        a(f"""
        s_cmp_lg_u32 s{sST}, 39
        s_cbranch_scc1 L_{name}_nz
        v_and_b32 v7, 63, v0
        v_lshlrev_b32 v7, 8, v7
        v_mov_b32 v8, 0
        s_mov_b32 s{sT0}, {FLG_OFF}
        buffer_store_dword v8, v7, s[28:31], s{sT0} offen
        L_{name}_nz:
        """)
    NP2 = (7 - int(E("NPF1", "1"))) if SPF else 0
    a(f"""
    s_cmp_ge_u32 s{sST}, 8
    s_cbranch_scc1 L_{name}_rjob
    """)
    a(pf() * NP2)
    a(f"""
    s_branch {("L_" + name + "_sdone") if fused else ("L_" + name + "_exit")}
    L_{name}_rjob:
    s_sub_u32 s{sST}, s{sST}, 8
    v_lshlrev_b32 v2, 4, v{vLane}
    v_lshrrev_b32 v10, 5, v{vLane}
    v_and_b32 v5, 15, v{vLane}
    v_lshrrev_b32 v6, 2, v5
    v_and_b32 v5, 3, v5
    v_lshlrev_b32 v5, 3, v5
    v_bfe_u32 v11, v{vLane}, 4, 1
    v_lshl_add_u32 v11, v11, 5, v5
    s_lshl_b32 s{sT1}, s{sW}, 10
    s_cmp_ge_u32 s{sST}, 24
    s_cbranch_scc1 L_{name}_rwo
    """)
    if not EARLY:
        a(srd(20, "s14", "s15", 1536*1280))
        a(f"s_mul_i32 s{sWG}, s{sST}, 81920")
        for j in range(10):
            a(f"""
            s_add_u32 s{sT0}, s{sT1}, {j*8192}
            s_mov_b32 m0, s{sT0}
            s_add_u32 s{sT0}, s{sT0}, s{sWG}
            buffer_load_dwordx4 v2, s[20:23], s{sT0} offen lds
            """)
    a(pf() * NP2)
    a(f"""
    v_lshl_add_u32 v4, v10, 2, v6
    v_mul_u32_u24 v4, 1280, v4
    v_add_u32 v4, v4, v11
    s_lshr_b32 s{sT0}, s{sW}, 1
    s_mul_i32 s{sT1}, s{sT0}, 20480
    s_and_b32 s{sFA}, s{sW}, 1
    s_mul_i32 s{sFA}, s{sFA}, 10
    s_lshl_b32 s{sLD}, s{sFA}, 6
    s_add_u32 s{sT1}, s{sT1}, s{sLD}
    v_add_u32 v4, s{sT1}, v4
    v_add_u32 v5, {8*1280}, v4
    s_lshl_b32 s3, s{sST}, 2
    s_add_u32 s3, s3, s{sT0}
    s_mul_i32 s3, s3, 20
    s_add_u32 s3, s3, s{sFA}
    s_lshl_b32 s3, s3, 10
    s_add_u32 s{sXG}, s3, {W2F_OFF}
    {"s_nop 0" if EARLY else "s_waitcnt vmcnt(" + str(NP2) + ")"}
    {"s_nop 0" if EARLY else "s_barrier"}
    """)
    for j in range(10):
        a(f"ds_read_b64_tr_b16 {vr(32+4*j,2)}, v4 offset:{j*64}\nds_read_b64_tr_b16 {vr(34+4*j,2)}, v5 offset:{j*64}")
    a("s_waitcnt lgkmcnt(0)")
    for j in range(10):
        a(f"buffer_store_dwordx4 {vr(32+4*j,4)}, v2, s[28:31], s{sXG} offen{ST}")
        if j < 9: a(f"s_add_u32 s{sXG}, s{sXG}, 1024")
    a(f"s_branch {DONE}")
    a(f"L_{name}_rwo:")
    a(srd(20, "s8", "s9", 640*1280))
    a(f"s_sub_u32 s{sST}, s{sST}, 24\ns_mul_i32 s{sWG}, s{sST}, 102400")
    for j in range(13):
        if j == 12:
            a(f"s_cmp_ge_u32 s{sW}, 4\ns_cbranch_scc1 L_{name}_rwo1")
        a(f"""
        s_add_u32 s{sT0}, s{sT1}, {j*8192}
        s_mov_b32 m0, s{sT0}
        s_add_u32 s{sT0}, s{sT0}, s{sWG}
        buffer_load_dwordx4 v2, s[20:23], s{sT0} offen lds
        """)
    a(f"L_{name}_rwo1:")
    base0 = [0, 8, 20, 28, 16]; base1 = [4, 12, 24, 32, 36]
    a("s_waitcnt vmcnt(0)\ns_barrier")
    a(f"s_mov_b32 s{sDX}, 0")
    a(f"""
    L_{name}_rwl:
    s_lshl_b32 s{sT0}, s{sDX}, 3
    s_add_u32 s{sT0}, s{sT0}, s{sW}
    s_cmp_ge_u32 s{sT0}, 100
    s_cbranch_scc1 {DONE}
    s_mul_i32 s{sT1}, s{sT0}, 3277
    s_lshr_b32 s{sT1}, s{sT1}, 16
    s_mul_i32 s3, s{sT1}, 20
    s_sub_u32 s3, s{sT0}, s3
    s_mul_i32 s{sXG}, s{sST}, 100
    s_add_u32 s{sXG}, s{sXG}, s{sT0}
    s_lshl_b32 s{sXG}, s{sXG}, 10
    s_add_u32 s{sXG}, s{sXG}, {WOF_OFF}
    s_lshl_b32 s3, s3, 6
    s_lshl_b32 s{sT1}, s{sT1}, 1
    v_add_u32 v7, s{sT1}, v10
    v_mul_u32_u24 v8, 52429, v7
    v_lshrrev_b32 v8, 18, v8
    v_mul_u32_u24 v9, 5, v8
    v_sub_u32 v9, v7, v9
    v_mul_u32_u24 v8, 40, v8
    v_lshlrev_b32 v12, 3, v9
    v_cmp_lt_u32 vcc, 1, v9
    v_add_u32 v13, 4, v12
    s_nop 0
    v_cndmask_b32 v12, v12, v13, vcc
    v_cmp_eq_u32 vcc, 4, v9
    v_add_u32 v13, 4, v12
    v_mov_b32 v14, 36
    v_cndmask_b32 v12, v12, 16, vcc
    v_cndmask_b32 v13, v13, v14, vcc
    v_add3_u32 v12, v12, v8, v6
    v_add3_u32 v13, v13, v8, v6
    v_mul_u32_u24 v12, 1280, v12
    v_mul_u32_u24 v13, 1280, v13
    v_add3_u32 v12, v12, v11, s3
    v_add3_u32 v13, v13, v11, s3
    ds_read_b64_tr_b16 v[32:33], v12
    ds_read_b64_tr_b16 v[34:35], v13
    s_add_u32 s{sDX}, s{sDX}, 1
    s_waitcnt lgkmcnt(0)
    buffer_store_dwordx4 v[32:35], v2, s[28:31], s{sXG} offen{ST}
    s_nop 1
    s_branch L_{name}_rwl
    """)
    if fused:
        a(f"""
        L_{name}_sdone:
        s_mov_b32 s{sKS}, 0
        s_branch L_{name}_spoll
        {DONE}:
        s_mov_b32 s{sKS}, 1
        L_{name}_spoll:
        s_waitcnt vmcnt(0)
        s_barrier
        s_cmp_lg_u32 s{sW}, 0
        s_cbranch_scc1 L_{name}_sbar
        v_mov_b32 v7, 0
        s_mov_b32 s{sT1}, 0
        L_{name}_ipoll:
        buffer_load_dword v8, v7, s[{DBG}:{DBG+3}], 0 offen sc1
        s_add_u32 s{sT1}, s{sT1}, 1
        s_waitcnt vmcnt(0)
        v_readfirstlane_b32 s{sT0}, v8
        s_cmp_ge_u32 s{sT0}, {NSTAT}
        s_cbranch_scc1 L_{name}_igot
        s_cmp_ge_u32 s{sT1}, 0x40000
        s_cbranch_scc1 L_{name}_igot
        s_sleep 8
        s_branch L_{name}_ipoll
        L_{name}_igot:
        s_cmp_eq_u32 s{sKS}, 0
        s_cbranch_scc1 L_{name}_sbar
        v_lshlrev_b32 v7, 8, v{vLane}
        v_mov_b32 v8, 1
        s_mov_b32 s3, {FLG_OFF + 88*256}
        s_mov_b64 exec, 0xff
        buffer_atomic_add v8, v7, s[28:31], s3 offen sc1
        s_mov_b64 exec, -1
        L_{name}_sbar:
        s_barrier
        s_branch {fused}
        """)
    a(f"L_{name}_end:")
    if DIAG:
        a(stamp(4)); a("s_waitcnt vmcnt(0)"); a(stamp(5)); a(stamp_flush(0, 8, 28))
    if fused:
        a(f"""
        s_waitcnt vmcnt(0)
        s_barrier
        s_cmp_lg_u32 s{sW}, 0
        s_cbranch_scc1 {fused}
        s_add_u32 s{sT0}, s{sCT}, 64
        s_add_u32 s{sT1}, s{sTB}, 80
        s_cmp_ge_u32 s{sCT}, 15
        s_cselect_b32 s{sT0}, s{sT1}, s{sT0}
        s_lshl_b32 s{sT0}, s{sT0}, 8
        s_add_u32 s{sT0}, s{sT0}, {FLG_OFF}
        v_mov_b32 v7, 0
        v_mov_b32 v8, 1
        s_mov_b64 exec, 1
        buffer_atomic_add v8, v7, s[28:31], s{sT0} offen sc1
        s_mov_b64 exec, -1
        s_branch {fused}
        """)
    a(f"L_{name}_exit:\ns_endpgm")
    if not fused: a(kernel_desc(name, 200))
    return a.text()
```

```python
from common import *
from ffn_parts import *
SLOT = 22528
ONES = 3*SLOT
PART = ONES + 10240
K2_LDS = PART + 4*PBUF
ST = " sc0 sc1" if E("WT", "0") == "1" else ""
def k2(name, fused=None):
    a = Asm()
    SC = " sc1" if fused else ""
    if fused: a(f"{fused}:\ns_waitcnt vmcnt(0)")
    else: a(kernel_head(name))
    sW, sHead, sT, sF, sC, sT0, sT1, sSlot, sCQ, sOdd = 32, 33, 34, 35, 36, 37, 38, 39, 44, 45
    sMaskV = 40
    sOk = 42
    sKG, sK2G, sVG, sA, sB, sBW, sTF, sFQ, sPass = 46, 47, 48, 49, 50, 51, 52, 53, 54
    vLane, vL16 = 1, 2
    if not fused:
        a(f"""
        s_cmp_ge_u32 s2, 256
        s_cbranch_scc1 L_{name}_exit
        """)
    a(stamp(0))
    a(f"""
    s_load_dwordx2 s[4:5], s[0:1], 64
    s_load_dwordx2 s[6:7], s[0:1], 0
    s_load_dwordx4 s[12:15], s[0:1], 48
    v_lshrrev_b32 v2, 6, v0
    v_and_b32 v{vLane}, 63, v0
    v_readfirstlane_b32 s{sW}, v2
    s_and_b32 s{sT0}, s2, 7
    s_lshr_b32 s{sT1}, s2, 3
    s_lshl_b32 s{sHead}, s{sT0}, 2
    s_and_b32 s3, s{sT1}, 3
    s_add_u32 s{sHead}, s{sHead}, s3
    s_mul_i32 s{sF}, s{sHead}, 5
    s_add_u32 s{sF}, s{sF}, 1
    s_lshr_b32 s{sF}, s{sF}, 1
    s_and_b32 s{sOdd}, s{sHead}, 1
    s_cmp_eq_u32 s{sOdd}, 0
    s_cselect_b32 s3, 2, -1
    s_add_u32 s{sCQ}, s{sF}, s3
    s_lshl_b32 s{sF}, s{sF}, 9
    s_lshl_b32 s{sCQ}, s{sCQ}, 9
    s_lshl_b32 s{sOdd}, s{sOdd}, 3
    v_lshlrev_b32 v{vL16}, 4, v{vLane}
    v_and_b32 v3, 31, v{vLane}
    v_lshrrev_b32 v11, 5, v{vLane}
    s_cmp_ge_u32 s{sW}, 4
    s_cbranch_scc1 L_{name}_bg
    """)
    vK1, vK2, vV, vM01 = 4, 5, 6, 7
    Q1 = [12, 16]; Q2 = [20, 22]
    K1 = [24, 28]; K2 = [32, 34]; V1 = [36, 40]; V2 = [44, 48]; P1, P2 = 52, 56
    SS = [64, 80]; O = [96, 112]; CM = [128, 144]
    a(f"""
    s_lshr_b32 s{sT}, s{sT1}, 2
    s_lshl_b32 s{sT}, s{sT}, 3
    s_lshl_b32 s3, s{sW}, 1
    s_add_u32 s{sT}, s{sT}, s3
    v_lshlrev_b32 v{vK2}, 4, v3
    v_lshl_add_u32 v{vK1}, v11, 9, v{vK2}
    v_add_u32 v{vK2}, s{sOdd}, v{vK2}
    s_mul_i32 s3, s{sT}, 40960
    s_add_u32 s{sT0}, s3, s{sF}
    s_add_u32 s{sT1}, s3, s{sCQ}
    v_mov_b32 v{Q2[0]}, 0
    v_mov_b32 v{Q2[0]+1}, 0
    v_mov_b32 v{Q2[1]}, 0
    v_mov_b32 v{Q2[1]+1}, 0
    s_waitcnt lgkmcnt(0)
    """)
    a(srd(8, "s4", "s5", WS_SIZE))
    a(f"""
    s_add_u32 s{sA}, s{sT0}, 40960
    s_add_u32 s{sB}, s{sT1}, 40960
    {"s_barrier" if fused else ""}
    buffer_load_dwordx4 {vr(Q1[0],4)}, v{vK1}, s[8:11], s{sT0} offen{SC}
    buffer_load_dwordx4 {vr(Q1[1],4)}, v{vK1}, s[8:11], s{sA} offen{SC}
    s_mov_b64 exec, 0xffffffff
    buffer_load_dwordx2 {vr(Q2[0],2)}, v{vK2}, s[8:11], s{sT1} offen{SC}
    buffer_load_dwordx2 {vr(Q2[1],2)}, v{vK2}, s[8:11], s{sB} offen{SC}
    s_mov_b64 exec, -1
    s_setprio {E('APRIO', '2')}
    s_mov_b32 s{sMaskV}, 0x000fffff
    s_mov_b32 s{sMaskV+1}, 0x000fffff
    v_mul_u32_u24 v{vV}, 320, v11
    v_lshl_add_u32 v{vV}, v3, 4, v{vV}
    v_cmp_eq_u32 vcc, 20, v3
    v_mov_b32 v11, {ONES-12288+(0 if E('ONESALL') else 16)}
    v_mov_b32 v8, {ONES-12288}
    v_cndmask_b32 v11, v11, v8, vcc
    v_cmp_gt_u32 vcc, 20, v3
    v_mov_b32 v{vM01}, 0
    s_nop 0
    v_cndmask_b32 v{vV}, v11, v{vV}, vcc
    v_cndmask_b32 v{vM01}, v{vM01}, 1, vcc
    """)
    for r in range(4): a(f"v_mov_b32 v{V2[1]+r}, 0\nv_mov_b32 v{P2+r}, 0")
    for q in range(2):
        for r in range(16): a(f"v_mov_b32 v{O[q]+r}, 0")
    a(f"""
    s_mov_b32 s{sC}, 0
    s_mov_b32 s{sSlot}, 0
    s_waitcnt vmcnt(0)
    s_barrier
    """)
    a(stamp(1))
    def rd_k1(p, j): return f"ds_read_b128 {vr(K1[p],4)}, v{vK1} offset:{j*1024}\n"
    def rd_k2(p, j): return f"ds_read_b64 {vr(K2[p],2)}, v{vK2} offset:{8192+j*512}\n"
    def rd_v1(p, j): return f"ds_read_b128 {vr(V1[p],4)}, v{vV} offset:{12288+j*1280}\n"
    def rd_v2(p, j): return f"ds_read_b128 {vr(V2[p],4)}, v{vV} offset:{12288+j*1280+640}\n"
    a(rd_k1(0,0) + rd_k2(0,0) + rd_v1(0,0) + rd_v2(0,0))
    a("s_waitcnt lgkmcnt(2)")
    for q in range(2): a(mfma(SS[q], K1[0], Q1[q], "0"))
    for q in range(2): a(mfma8(SS[q], K2[0], Q2[q]))
    a("s_nop 10")
    for q in range(2):
        S0 = SS[q]; t = 3 if q == 0 else 11
        a(f"v_max3_f32 v{t}, v{S0}, v{S0+1}, v{S0+2}")
        for r in range(3, 15, 2): a(f"v_max3_f32 v{t}, v{t}, v{S0+r}, v{S0+r+1}")
        a(f"v_max_f32 v{t}, v{t}, v{S0+15}")
    a(f"""
    v_mov_b32 v{P1}, v3
    v_mov_b32 v{P1+1}, v11
    s_nop 1
    v_permlane32_swap_b32 v3, v{P1}
    v_permlane32_swap_b32 v11, v{P1+1}
    v_max_f32 v3, v3, v{P1}
    v_max_f32 v11, v11, v{P1+1}
    """)
    for r in range(16): a(f"v_sub_f32 v{CM[0]+r}, 0, v3")
    for r in range(16): a(f"v_sub_f32 v{CM[1]+r}, 0, v11")
    a("s_waitcnt lgkmcnt(0)\ns_nop 0")
    a(mfma(SS[0], K1[0], Q1[0], CM[0])); a(mfma8(SS[0], K2[0], Q2[0]))
    a("s_nop 11")
    a(stamp(2))
    if E("CHUNKST"): a(f"v_mov_b32 v250, 0\nv_lshlrev_b32 v249, 2, v{vLane}")
    L = f"L_{name}_loop"
    if E("INSTREAM"): a(f"s_mov_b32 s{sT1}, {HF_OFF}")
    al = E("ALIGN", "0")
    if al != "0": a(".p2align 6")
    if al == "3": a("s_nop 0")
    a(f"{L}:")
    if E("CHUNKST"): a(f"s_memtime s[84:85]\ns_waitcnt lgkmcnt(0)\ns_mov_b32 m0, s{sC}\ns_nop 0\nv_writelane_b32 v250, s84, m0")
    for n in range(16):
        j, q = n >> 1, n & 1
        p, pn = j & 1, (j + 1) & 1
        Sc, qn = SS[q], 1 - q
        Sn = SS[qn]
        def e(r): return f"v_exp_f32 v{Sc+r}, v{Sc+r}\n"
        def c(P, i, r): return f"v_cvt_pk_bf16_f32 v{P+i}, v{Sc+r}, v{Sc+r+1}\n"
        nx = (j + 1) & 7
        WD = E("WAITD", "0") == "1"
        if q == 1 and not WD: a("s_waitcnt lgkmcnt(0)" + ("\ns_nop 0" if E("ALIGN") == "2" else ""))
        kq = p if q == 0 else pn
        INS = E("INSTREAM")
        def rds():
            if q != 0: return ""
            t = ""
            if j == 7:
                t += f"""
                s_barrier
                s_cmp_eq_u32 s{sSlot}, 2
                s_cselect_b32 s{sT0}, {(-2*SLOT) & 0xffffffff}, {SLOT}
                s_cselect_b32 s{sSlot}, -1, s{sSlot}
                s_add_u32 s{sSlot}, s{sSlot}, 1
                v_add_u32 v{vK1}, s{sT0}, v{vK1}
                v_add_u32 v{vK2}, s{sT0}, v{vK2}
                v_mad_i32_i24 v{vV}, v{vM01}, s{sT0}, v{vV}
                """
            return t + rd_k1(pn, nx) + rd_k2(pn, nx) + rd_v1(pn, nx) + rd_v2(pn, nx)
        if INS and n < 15:
            FA, FF_ = 160, 240
            f = n % 5
            a(mfma(Sn, K1[kq], Q1[qn], CM[qn]))
            a(e(0)+e(1)+e(2)+e(3))
            a(mfma(O[qn], V2[pn if q == 0 else p], P2))
            a(rds())
            a(e(4)+e(5)+e(6)+c(P1,0,0)+c(P1,1,2))
            a(mfma8(Sn, K2[kq], Q2[qn]))
            a(e(7)+e(8)+e(9)+c(P1,2,4)+c(P1,3,6))
            if f == 0 and INS != "2": a("s_waitcnt vmcnt(0)")
            a(mfma(FA + 16*f, FF_, FF_ + 4))
            if f == 0 and INS != "2":
                for k in range(6): a(f"buffer_load_dwordx4 {vr(248, 4)}, v{vL16}, s[8:11], s{sT1} offen offset:{(k%4)*1024}")
            a(e(10)+e(11)+e(12)+c(P2,0,8)+c(P2,1,10))
            a(mfma(O[q], V1[p], P1))
            a(e(13)+e(14)+e(15)+c(P2,2,12)+c(P2,3,14))
        else:
            a(mfma(Sn, K1[kq], Q1[qn], "0" if E("NOCM") else CM[qn]))
            a(e(0)+e(1)+e(2)+e(3)+c(P1,0,0)+c(P1,1,2))
            a(mfma(O[qn], V2[pn if q == 0 else p], P2))
            a(rds())
            a(e(4)+e(5)+e(6)+e(7)+c(P1,2,4)+c(P1,3,6))
            a(mfma8(Sn, K2[kq], Q2[qn]))
            a(e(8)+e(9)+e(10)+e(11)+c(P2,0,8)+c(P2,1,10))
            a(mfma(O[q], V1[p], P1))
            if q == 0 and WD: a("s_waitcnt lgkmcnt(0)")
            a(e(12)+e(13)+e(14)+e(15)+c(P2,2,12)+c(P2,3,14))
    a(f"""
    s_add_u32 s{sC}, s{sC}, 1
    s_cmp_lt_u32 s{sC}, 8
    s_cbranch_scc1 {L}
    s_nop 0
    """)
    a(mfma(O[1], V2[1], P2))
    if E("CHUNKST"):
        a(f"""
        s_memtime s[84:85]
        s_waitcnt lgkmcnt(0)
        v_writelane_b32 v250, s84, 8
        s_lshl_b32 s3, s2, 2
        s_add_u32 s3, s3, s{sW}
        s_lshl_b32 s3, s3, 8
        s_add_u32 s3, s3, {DIAG_OFF + 0xC0000}
        s_mov_b32 s10, 0x3000000
        s_mov_b64 exec, 0xffff
        buffer_store_dword v250, v2, s[8:11], s3 offen
        s_mov_b64 exec, -1
        """)
    a(stamp(3))
    a(f"""
    s_mov_b32 s{sPass}, 0
    s_lshr_b32 s{sA}, s{sHead}, 1
    s_mul_i32 s{sA}, s{sA}, 5
    s_mul_i32 s3, s{sT}, 80
    s_add_u32 s{sA}, s{sA}, s3
    s_lshl_b32 s{sA}, s{sA}, 9
    s_add_u32 s{sA}, s{sA}, {OF_OFF}
    s_add_u32 s{sB}, s{sA}, s{sOdd}
    s_lshl_b32 s3, s{sOdd}, 7
    s_add_u32 s{sA}, s{sA}, s3
    v_and_b32 v9, 31, v{vLane}
    v_lshrrev_b32 v8, 5, v{vLane}
    v_lshlrev_b32 v9, 4, v9
    v_lshl_add_u32 v8, v8, 9, v9
    s_waitcnt lgkmcnt(0)
    """)
    O0 = O[0]
    a(f"""
    L_{name}_norm:
    v_mov_b32 v3, v{O0+8}
    v_mov_b32 v11, v{O0+8}
    s_mov_b32 s{sT0}, {hexf(2.0**-40)}
    s_mov_b32 s{sT1}, {hexf(2.0**60)}
    v_permlane32_swap_b32 v3, v11
    v_pk_add_f32 v[60:61], {vr(O0,2)}, {vr(O0+2,2)}
    v_rcp_f32 v10, v11
    v_pk_add_f32 v[62:63], {vr(O0+4,2)}, {vr(O0+6,2)}
    v_med3_f32 v3, v11, s{sT0}, v11
    v_pk_add_f32 v[60:61], v[60:61], {vr(O0+8,2)}
    v_pk_add_f32 v[62:63], v[62:63], {vr(O0+10,2)}
    v_min_f32 v3, s{sT1}, v11
    v_max_f32 v3, s{sT0}, v3
    v_pk_add_f32 v[60:61], v[60:61], v[62:63]
    v_cmp_eq_f32 s[{sOk}:{sOk+1}], v3, v11
    v_add_f32 v60, v60, v61
    s_movk_i32 s3, 0x1f8
    v_cmp_class_f32 vcc, v60, s3
    s_and_b64 s[{sOk}:{sOk+1}], s[{sOk}:{sOk+1}], vcc
    s_cmp_eq_u64 s[{sOk}:{sOk+1}], -1
    {"s_nop 0" if E("NOSLOW") else "s_cbranch_scc0 L_"+name+"_slow"}
    L_{name}_fin:
    """)
    for p in range(6): a(f"v_pk_mul_f32 {vr(O0+2*p,2)}, {vr(O0+2*p,2)}, v[10:11] op_sel_hi:[1,0]")
    for p in range(6): a(f"v_cvt_pk_bf16_f32 v{O0+p}, v{O0+2*p}, v{O0+2*p+1}")
    a(f"""
    s_nop 0
    v_permlane32_swap_b32 v{O0}, v{O0+2}
    v_permlane32_swap_b32 v{O0+1}, v{O0+3}
    buffer_store_dwordx4 {vr(O0,4)}, v8, s[8:11], s{sA} offen sc0 sc1
    s_mov_b64 exec, 0xffffffff
    buffer_store_dwordx2 {vr(O0+4,2)}, v9, s[8:11], s{sB} offen offset:2048 sc0 sc1
    s_mov_b64 exec, -1
    s_cmp_lg_u32 s{sPass}, 0
    s_cbranch_scc1 L_{name}_aend
    s_mov_b32 s{sPass}, 1
    s_add_u32 s{sA}, s{sA}, 40960
    s_add_u32 s{sB}, s{sB}, 40960
    """)
    for r in range(12): a(f"v_mov_b32 v{O[0]+r}, v{O[1]+r}")
    for r in range(4): a(f"v_mov_b32 v{Q1[0]+r}, v{Q1[1]+r}")
    for r in range(2): a(f"v_mov_b32 v{Q2[0]+r}, v{Q2[1]+r}")
    a(f"s_branch L_{name}_norm")
    a(f"L_{name}_aend:")
    if DIAG: a(stamp(4))
    a(f"""
    s_lshl_b32 s{sT0}, s{sT}, 8
    s_add_u32 s{sT0}, s{sT0}, {FLG_OFF}
    s_add_u32 s{sT1}, s{sT0}, 256
    v_mov_b32 v8, 0
    v_mov_b32 v9, 1
    s_waitcnt vmcnt({2 if E("SIG0", "0") == "1" else 0})
    s_mov_b64 exec, 1
    buffer_atomic_add v9, v8, s[8:11], s{sT0} offen sc1
    {"s_waitcnt vmcnt(1)" if E("SIG0", "0") == "1" else ""}
    buffer_atomic_add v9, v8, s[8:11], s{sT1} offen sc1
    s_mov_b64 exec, -1
    """)
    if DIAG:
        a(stamp(5)); a(stamp_flush(1, 6, 8))
    a("s_endpgm")
    vM, vAl, vTm = 128, 129, 130
    a(f"""
    L_{name}_slow:
    v_and_b32 v10, 31, v{vLane}
    v_lshrrev_b32 v11, 5, v{vLane}
    v_lshlrev_b32 v{vK2}, 4, v10
    v_lshl_add_u32 v{vK1}, v11, 9, v{vK2}
    v_add_u32 v{vK2}, s{sOdd}, v{vK2}
    v_mul_u32_u24 v{vV}, 320, v11
    v_lshl_add_u32 v{vV}, v10, 4, v{vV}
    v_mov_b32 v{vM}, 0xff800000
    v_mov_b32 v3, 0x3f803f80
    """)
    for r in range(4): a(f"v_mov_b32 v{V1[0]+r}, v3\nv_mov_b32 v{V2[0]+r}, v3")
    for r in range(16): a(f"v_mov_b32 v{O0+r}, 0")
    S0 = SS[0]
    a(f"""
    s_mov_b32 s{sC}, 0
    s_add_u32 s{sKG}, s{sF}, {KF_OFF}
    s_add_u32 s{sK2G}, s{sCQ}, {KF_OFF}
    s_mul_i32 s{sVG}, s{sHead}, {128*640}
    s_add_u32 s{sVG}, s{sVG}, {VF_OFF}
    L_{name}_sl:
    buffer_load_dwordx4 {vr(K1[0],4)}, v{vK1}, s[8:11], s{sKG} offen{SC}
    buffer_load_dwordx2 {vr(K2[0],2)}, v{vK2}, s[8:11], s{sK2G} offen{SC}
    s_mov_b64 exec, s[{sMaskV}:{sMaskV+1}]
    buffer_load_dwordx4 {vr(V1[0],4)}, v{vV}, s[8:11], s{sVG} offen{SC}
    buffer_load_dwordx4 {vr(V2[0],4)}, v{vV}, s[8:11], s{sVG} offen offset:640{SC}
    s_mov_b64 exec, -1
    s_waitcnt vmcnt(2)
    """)
    a(mfma(S0, K1[0], Q1[0], "0")); a(mfma8(S0, K2[0], Q2[0]))
    a("s_nop 11")
    a(f"v_max3_f32 v{vTm}, v{S0}, v{S0+1}, v{S0+2}")
    for r in range(3, 15, 2): a(f"v_max3_f32 v{vTm}, v{vTm}, v{S0+r}, v{S0+r+1}")
    a(f"""
    v_max3_f32 v{vTm}, v{vTm}, v{S0+15}, v{vM}
    v_mov_b32 v3, v{vTm}
    s_nop 1
    v_permlane32_swap_b32 v{vTm}, v3
    v_max_f32 v{vTm}, v{vTm}, v3
    v_sub_f32 v{vAl}, v{vM}, v{vTm}
    v_exp_f32 v{vAl}, v{vAl}
    v_mov_b32 v{vM}, v{vTm}
    """)
    for r in range(16): a(f"v_sub_f32 v{S0+r}, v{S0+r}, v{vM}")
    for r in range(16): a(f"v_exp_f32 v{S0+r}, v{S0+r}")
    for r in range(16): a(f"v_mul_f32 v{O0+r}, v{O0+r}, v{vAl}")
    for i in range(4): a(f"v_cvt_pk_bf16_f32 v{P1+i}, v{S0+2*i}, v{S0+2*i+1}")
    for i in range(4): a(f"v_cvt_pk_bf16_f32 v{P2+i}, v{S0+8+2*i}, v{S0+8+2*i+1}")
    a("s_waitcnt vmcnt(0)\ns_nop 0")
    a(mfma(O0, V1[0], P1)); a(mfma(O0, V2[0], P2))
    a(f"""
    s_add_u32 s{sKG}, s{sKG}, 40960
    s_add_u32 s{sK2G}, s{sK2G}, 40960
    s_add_u32 s{sVG}, s{sVG}, 1280
    s_add_u32 s{sC}, s{sC}, 1
    s_cmp_lt_u32 s{sC}, 64
    s_nop 6
    s_cbranch_scc1 L_{name}_sl
    s_nop 3
    v_mov_b32 v3, v{O0+8}
    v_mov_b32 v11, v{O0+8}
    s_nop 1
    v_permlane32_swap_b32 v3, v11
    v_rcp_f32 v10, v11
    s_nop 0
    s_branch L_{name}_fin
    """)
    vK2D, vL16b = 3, 19
    ACC = [96 + 16*f for f in range(5)]
    FR = lambda b: 24 + 24*b
    a(f"""
    L_{name}_bg:
    s_setprio {E("BPRIO", "0")}
    s_sub_u32 s{sBW}, s{sW}, 4
    v_mul_u32_u24 v{vK2D}, 40960, v11
    v_and_b32 v4, 31, v{vLane}
    v_lshl_add_u32 v{vK2D}, v4, 4, v{vK2D}
    v_add_u32 v{vL16b}, 4096, v{vL16}
    s_mul_i32 s3, s{sBW}, {2*40960}
    s_add_u32 s3, s3, {KF_OFF}
    s_add_u32 s{sKG}, s3, s{sF}
    s_add_u32 s{sK2G}, s3, s{sCQ}
    s_mul_i32 s{sVG}, s{sHead}, {128*640}
    s_mul_i32 s3, s{sBW}, 2560
    s_add_u32 s{sVG}, s{sVG}, s3
    s_add_u32 s{sVG}, s{sVG}, {VF_OFF}
    s_and_b32 s{sFQ}, s2, 1
    s_lshl_b32 s{sFQ}, s{sFQ}, 1
    s_and_b32 s3, s{sT1}, 1
    s_add_u32 s{sFQ}, s{sFQ}, s3
    s_bfe_u32 s{sTF}, s2, 0x20001
    s_lshl_b32 s{sTF}, s{sTF}, 4
    s_lshr_b32 s3, s{sT1}, 1
    s_add_u32 s{sTF}, s{sTF}, s3
    s_waitcnt lgkmcnt(0)
    """)
    a(srd(8, "s4", "s5", WS_SIZE))
    def gate(label, setup, sleep):
        return setup + f"""
        s_mov_b32 s{sT1}, 0
        s_mov_b32 s{sT0}, {FLG_OFF}
        {label}:
        buffer_load_dword v9, v8, s[8:11], s{sT0} offen sc1
        s_add_u32 s{sT1}, s{sT1}, 1
        s_waitcnt vmcnt(0)
        v_cmp_ge_u32 vcc, v9, v10
        s_cmp_eq_u64 vcc, -1
        s_cbranch_scc1 {label}_ok
        s_cmp_ge_u32 s{sT1}, 0x40000
        s_cbranch_scc1 {label}_ok
        s_sleep {sleep}
        s_branch {label}
        {label}_ok:
        """
    if fused:
        a(f"s_cmp_lg_u32 s{sBW}, 0\ns_cbranch_scc1 L_{name}_gA")
        a(gate(f"L_{name}_pA", f"""
        s_lshr_b32 s{sT0}, s{sF}, 9
        s_lshr_b32 s{sT1}, s{sCQ}, 9
        s_min_u32 s3, s{sT0}, s{sT1}
        s_lshr_b32 s3, s3, 4
        s_add_u32 s{sT0}, s{sT0}, 1
        s_max_u32 s{sT0}, s{sT0}, s{sT1}
        s_lshr_b32 s{sT0}, s{sT0}, 4
        s_add_u32 s3, s3, 64
        s_add_u32 s{sT0}, s{sT0}, 64
        v_mov_b32 v8, s3
        v_writelane_b32 v8, s{sT0}, 1
        s_add_u32 s3, s3, 5
        s_add_u32 s{sT0}, s{sT0}, 5
        v_writelane_b32 v8, s3, 2
        v_writelane_b32 v8, s{sT0}, 3
        s_mul_i32 s3, s{sHead}, 20
        s_add_u32 s{sT0}, s3, 19
        s_lshr_b32 s3, s3, 7
        s_lshr_b32 s{sT0}, s{sT0}, 7
        s_add_u32 s3, s3, 74
        s_add_u32 s{sT0}, s{sT0}, 74
        v_writelane_b32 v8, s3, 4
        v_writelane_b32 v8, s{sT0}, 5
        v_mov_b32 v10, 8
        v_lshlrev_b32 v8, 8, v8
        """, 2))
        a(f"L_{name}_gA:\ns_barrier")
    vq = VmQ()
    def dma(c):
        sl = (c % 3) * SLOT
        t = f"""
        s_lshl_b32 s{sT0}, s{sBW}, 11
        s_add_u32 m0, s{sT0}, {sl}
        s_add_u32 s{sT1}, s{sKG}, 40960
        buffer_load_dwordx4 v{vL16}, s[8:11], s{sKG} offen{SC} lds
        s_add_u32 m0, s{sT0}, {sl+1024}
        s_lshl_b32 s{sT0}, s{sBW}, 10
        buffer_load_dwordx4 v{vL16}, s[8:11], s{sT1} offen{SC} lds
        s_add_u32 m0, s{sT0}, {sl+8192}
        s_mul_i32 s{sT0}, s{sBW}, 2560
        buffer_load_dwordx4 v{vK2D}, s[8:11], s{sK2G} offen{SC} lds
        s_add_u32 m0, s{sT0}, {sl+12288}
        s_add_u32 s{sT1}, s{sVG}, 1024
        buffer_load_dwordx4 v{vL16}, s[8:11], s{sVG} offen{SC} lds
        s_add_u32 m0, s{sT0}, {sl+12288+1024}
        s_add_u32 s{sKG}, s{sKG}, {8*40960}
        buffer_load_dwordx4 v{vL16}, s[8:11], s{sT1} offen{SC} lds
        s_add_u32 m0, s{sT0}, {sl+12288+2048}
        s_add_u32 s{sT1}, s{sVG}, 2048
        s_mov_b64 exec, 0xffffffff
        buffer_load_dwordx4 v{vL16}, s[8:11], s{sT1} offen{SC} lds
        s_mov_b64 exec, -1
        s_add_u32 s{sK2G}, s{sK2G}, {8*40960}
        s_add_u32 s{sVG}, s{sVG}, 10240
        """
        vq.issue(f"D{c}", 6)
        return t
    WP, AO, A4, GF, X = 24, 184, 200, 216, 236
    vOq = 4
    OL, X4L, W4L = 40960, 81920, 0
    sXO, sX4 = 55, 56
    a(dma(0))
    a(f"""
    s_mul_i32 s{sA}, s{sTF}, 96
    s_mul_i32 s3, s{sBW}, 24
    s_add_u32 s{sA}, s{sA}, s3
    s_lshl_b32 s{sA}, s{sA}, 10
    s_add_u32 s{sA}, s{sA}, {HF_OFF}
    s_mul_i32 s{sB}, s3, 20
    s_mul_i32 s3, s{sFQ}, 5
    s_add_u32 s{sB}, s{sB}, s3
    s_lshl_b32 s{sB}, s{sB}, 10
    s_add_u32 s{sB}, s{sB}, {W2F_OFF}
    v_lshrrev_b32 v4, 2, v{vLane}
    v_mul_u32_u24 v4, 640, v4
    v_and_b32 v5, 3, v{vLane}
    v_lshl_add_u32 v4, v5, 2, v4
    v_add_u32 v4, {ONES}, v4
    v_mov_b32 v5, 0x3f803f80
    v_mov_b32 v6, 0
    ds_write_b32 v4, v5
    ds_write_b32 v4, v6 offset:16
    """)
    a(dma(1)); a(dma(2))
    def ld(s):
        vq.issue(f"L{s}", 6)
        return gemm_loads(FR(s % 3), vL16, vL16b, 8, sA, sB, SC)
    a(vq.wait("D0")); a("s_waitcnt lgkmcnt(0)\ns_barrier")
    if fused:
        a(gate(f"L_{name}_pB", f"""
        s_lshr_b32 s3, s{sTF}, 3
        s_add_u32 s3, s3, 80
        s_and_b32 s{sT0}, s2, 7
        s_add_u32 s{sT0}, s{sT0}, 88
        v_mov_b32 v8, s3
        v_writelane_b32 v8, s{sT0}, 1
        v_mov_b32 v10, 12
        v_writelane_b32 v10, 32, 1
        v_lshlrev_b32 v8, 8, v8
        """, 4))
        vq.q = []
        if E("CPF2", "0") == "1":
            a(f"""
            s_cmp_ge_u32 s2, 16
            s_cbranch_scc1 L_{name}_nocpf
            s_cmp_ge_u32 s{sBW}, 2
            s_cbranch_scc1 L_{name}_nocpf
            v_lshl_add_u32 v11, s{sBW}, 6, v{vLane}
            """)
            a(code_prefetch("b", None, f"L_{name}_bg", sBW, 11, 2, 13))
            a(f"s_waitcnt vmcnt(0)\nL_{name}_nocpf:")
    if not E("NOFFN"):
        for s in range(3): a(ld(s))
    s = 0
    for c in range(8):
        FS = [int(x) for x in E("FSCHED", "3,4,4,4,4,5").split(",")]
        PWC = len(FS)
        assert sum(FS) == 24 and len(FS) <= 6
        if c < len(FS) and not E("NOFFN"):
            for k in range(FS[c]):
                a(vq.wait(f"L{s}"))
                a(gemm_comp(FR(s % 3), ACC, s == 0))
                if s + 3 < 24: a(ld(s + 3))
                s += 1
        if c == int(E("PWC", "5")):
            a(partial_write(ACC, vLane, sBW, sT0, PART))
            a("s_waitcnt lgkmcnt(0)")
        if c == 6:
            a(f"""
            v_and_b32 v4, 31, v{vLane}
            v_lshrrev_b32 v5, 5, v{vLane}
            """)
            a(srd(16, "s6", "s7", S*D*2))
            a(srd(20, "s12", "s13", S*D*2))
            a(f"""
            v_mul_u32_u24 v12, 1280, v4
            v_lshl_add_u32 v13, v5, 4, v12
            v_lshl_add_u32 v12, v5, 3, v12
            v_mul_u32_u24 v15, {PSTR}, v4
            v_lshl_add_u32 v15, v5, 4, v15
            s_mul_i32 s{sXO}, s{sTF}, {32*1280}
            s_mul_i32 s3, s{sFQ}, 320
            s_add_u32 s{sXO}, s{sXO}, s3
            s_lshl_b32 s3, s{sBW}, 4
            s_add_u32 s{sX4}, s{sXO}, s3
            s_add_u32 s{sX4}, s{sX4}, 256
            s_lshl_b32 s3, s{sBW}, 6
            s_add_u32 s{sXO}, s{sXO}, s3
            """)
            for i in range(4): a(f"buffer_load_dwordx2 {vr(X+2*i,2)}, v12, s[16:19], s{sXO} offen offset:{16*i}")
            a(f"buffer_load_dwordx2 {vr(X+8,2)}, v12, s[16:19], s{sX4} offen")
            vq.issue("X", 5)
        if c in (6, 7):
            for qd in ((0, 1) if c == 6 else (2, 3)):
                a(f"""
                s_add_u32 s3, s{sBW}, {qd}
                s_and_b32 s3, s3, 3
                s_mul_i32 s{sB}, s3, {10*20*1024}
                s_mul_i32 s{sT0}, s{sFQ}, 5
                s_add_u32 s{sT0}, s{sT0}, s{sBW}
                s_lshl_b32 s{sT0}, s{sT0}, 10
                s_add_u32 s{sB}, s{sB}, s{sT0}
                s_add_u32 s{sB}, s{sB}, {WOF_OFF}
                s_mul_i32 s3, s3, 10240
                s_add_u32 s3, s3, {OL}
                v_add_u32 v{vOq+qd}, s3, v{vL16}
                """)
                for j in range(10):
                    a(f"buffer_load_dwordx4 {vr(WP+4*(10*qd+j),4)}, v{vL16}, s[8:11], s{sB} offen{SC}")
                    if j < 9: a(f"s_add_u32 s{sB}, s{sB}, {20*1024}")
                vq.issue("W", 10)
        if c <= 6: a(vq.wait(f"D{c+1}"))
        a("s_barrier")
        if c + 3 <= 7: a(dma(c + 3))
    a(f"""
    s_mul_i32 s{sB}, s{sBW}, {10*20*1024}
    s_mul_i32 s{sT0}, s{sFQ}, 5
    s_add_u32 s{sT0}, s{sT0}, 4
    s_lshl_b32 s{sT0}, s{sT0}, 10
    s_add_u32 s{sB}, s{sB}, s{sT0}
    s_add_u32 s{sB}, s{sB}, {WOF_OFF}
    s_mul_i32 s{sT0}, s{sBW}, 10240
    s_add_u32 s{sT0}, s{sT0}, {W4L}
    v_add_u32 v14, s{sT0}, v{vL16}
    """)
    for j in range(10):
        a(f"s_add_u32 m0, s{sT0}, {j*1024}\ns_nop 0\nbuffer_load_dwordx4 v{vL16}, s[8:11], s{sB} offen{SC} lds")
        if j < 9: a(f"s_add_u32 s{sB}, s{sB}, {20*1024}")
    a(f"""
    s_lshl_b32 s{sT0}, s{sBW}, 7
    s_add_u32 s{sT0}, s{sT0}, {PART}
    v_add_u32 v16, s{sT0}, v15
    s_lshl_b32 s{sT0}, s{sBW}, 5
    s_add_u32 s{sT0}, s{sT0}, {PART+512}
    v_add_u32 v15, s{sT0}, v15
    """)
    TB = [184, 200]
    def grd(i):
        b = TB[i & 1]
        return "".join((f"ds_read_b128 {vr(b+4*w,4)}, v16 offset:{w*PBUF+32*i}\n" if i < 4 else f"ds_read_b128 {vr(b+4*w,4)}, v15 offset:{w*PBUF}\n") for w in range(4))
    a(grd(0))
    for i in range(5):
        b = TB[i & 1]; d = GF + 4*i
        if i < 4: a(grd(i + 1))
        a(f"s_waitcnt lgkmcnt({4 if i < 4 else 0})")
        for e in range(4): a(f"v_add_f32 v{b+e}, v{b+e}, v{b+4+e}\nv_add_f32 v{b+8+e}, v{b+8+e}, v{b+12+e}")
        for e in range(4): a(f"v_add_f32 v{d+e}, v{b+e}, v{b+8+e}")
    a(f"s_mov_b32 s{sT0}, {hexf(-1.4426950408889634)}")
    GT = 8
    for r in range(0, 20, 4):
        for e in range(4): a(f"v_mul_f32 v{GT+e}, s{sT0}, v{GF+r+e}")
        for e in range(4): a(f"v_exp_f32 v{GT+e}, v{GT+e}")
        for e in range(4): a(f"v_add_f32 v{GT+e}, 1.0, v{GT+e}")
        for e in range(4): a(f"v_rcp_f32 v{GT+e}, v{GT+e}")
        for e in range(4): a(f"v_mul_f32 v{GF+r+e}, v{GF+r+e}, v{GT+e}")
    a(f"""
    s_cmp_lg_u32 s{sBW}, 0
    s_cbranch_scc1 L_{name}_ready
    s_lshl_b32 s{sT0}, s{sTF}, 8
    s_add_u32 s{sT0}, s{sT0}, {FLG_OFF}
    v_mov_b32 v8, 0
    s_mov_b32 s{sT1}, 0
    L_{name}_poll:
    buffer_load_dword v9, v8, s[8:11], s{sT0} offen sc1
    s_add_u32 s{sT1}, s{sT1}, 1
    s_waitcnt vmcnt(0)
    v_readfirstlane_b32 s3, v9
    s_cmp_ge_u32 s3, 32
    s_cbranch_scc1 L_{name}_ready
    s_cmp_ge_u32 s{sT1}, 0x40000
    s_cbranch_scc1 L_{name}_ready
    s_sleep {E('SLP', '2')}
    s_branch L_{name}_poll
    L_{name}_ready:
    s_waitcnt vmcnt(0) lgkmcnt(0)
    s_barrier
    """)
    if DIAG: a(stamp(1))
    a(f"""
    s_mul_i32 s{sA}, s{sTF}, 40
    s_mul_i32 s3, s{sBW}, 10
    s_add_u32 s{sA}, s{sA}, s3
    s_lshl_b32 s{sA}, s{sA}, 10
    s_add_u32 s{sA}, s{sA}, {OF_OFF}
    s_mul_i32 s{sT0}, s{sBW}, 10240
    s_add_u32 s{sT0}, s{sT0}, {OL}
    """)
    for j in range(10):
        a(f"s_add_u32 m0, s{sT0}, {j*1024}\ns_nop 0\nbuffer_load_dwordx4 v{vL16}, s[8:11], s{sA} offen sc1 lds")
        if j < 9: a(f"s_add_u32 s{sA}, s{sA}, 1024")
    OB = [246, 250]; W4 = [8, 16]
    def rdo(u): return f"ds_read_b128 {vr(OB[u & 1],4)}, v{vOq + u//10} offset:{(u % 10)*1024}\n"
    def rdw(u): return f"ds_read_b128 {vr(W4[u & 1],4)}, v14 offset:{u*1024}\n"
    a("s_waitcnt vmcnt(8)")
    a(rdo(0) + rdw(0))
    for u in range(40):
        nxt = ""
        if u + 1 < 10 and (u + 1) % 2 == 0: a(f"s_waitcnt vmcnt({max(0, 10 - (u + 1) - 2)})")
        if u + 1 == 10: a("s_waitcnt vmcnt(0)\ns_barrier")
        if u + 1 < 40: nxt = rdo(u + 1) + (rdw(u + 1) if u + 1 < 10 else "")
        a(nxt)
        cnt = (1 if u + 1 < 40 else 0) + (1 if u + 1 < 10 else 0)
        a(f"s_waitcnt lgkmcnt({cnt})")
        a(mfma(AO, WP + 4*u, OB[u & 1], "0" if u == 0 else None))
        if u < 10: a(mfma(A4, W4[u & 1], OB[u & 1], "0" if u == 0 else None))
    if DIAG: a(stamp(2))
    a(f"""
    s_lshl_b32 s{sT0}, s{sBW}, 12
    s_add_u32 s{sT0}, s{sT0}, {X4L}
    v_add_u32 v14, s{sT0}, v{vL16}
    s_lshl_b32 s{sT0}, s{sBW}, 10
    s_add_u32 s{sT0}, s{sT0}, {X4L}
    v_add_u32 v15, s{sT0}, v{vL16}
    """)
    for i in range(4): a(f"ds_write_b128 v14, {vr(A4+4*i,4)} offset:{i*1024}")
    a("s_waitcnt lgkmcnt(0)\ns_barrier")
    for w in range(4): a(f"ds_read_b128 {vr(24+4*w,4)}, v15 offset:{w*4096}")
    def fin(sreg, g, x, d):
        t = f"""
        v_lshlrev_b32 v40, 16, v{x}
        v_and_b32 v41, 0xffff0000, v{x}
        v_lshlrev_b32 v42, 16, v{x+1}
        v_and_b32 v43, 0xffff0000, v{x+1}
        """
        for e in range(4): t += f"v_fma_f32 v{40+e}, v{sreg+e}, v{g+e}, v{40+e}\n"
        t += f"v_cvt_pk_bf16_f32 v{d}, v40, v41\nv_cvt_pk_bf16_f32 v{d+1}, v42, v43\n"
        return t
    for i in range(4): a(fin(AO+4*i, GF+4*i, X+2*i, 48+2*i))
    a(f"""
    v_permlane32_swap_b32 v48, v50
    v_permlane32_swap_b32 v49, v51
    v_permlane32_swap_b32 v52, v54
    v_permlane32_swap_b32 v53, v55
    buffer_store_dwordx4 v[48:51], v13, s[20:23], s{sXO} offen
    buffer_store_dwordx4 v[52:55], v13, s[20:23], s{sXO} offen offset:32
    s_waitcnt lgkmcnt(0)
    """)
    for e in range(4): a(f"v_add_f32 v{24+e}, v{24+e}, v{28+e}\nv_add_f32 v{32+e}, v{32+e}, v{36+e}")
    for e in range(4): a(f"v_add_f32 v{24+e}, v{24+e}, v{32+e}")
    a(fin(24, GF+16, X+8, 56))
    a(f"buffer_store_dwordx2 v[56:57], v12, s[20:23], s{sX4} offen")
    if DIAG: a(stamp(3))
    a(f"L_{name}_end:")
    a(d2_end())
    if DIAG:
        a(stamp(4)); a("s_waitcnt vmcnt(0)"); a(stamp(5)); a(stamp_flush(1, 6, 8))
    a(f"L_{name}_exit:\ns_endpgm")
    if not fused: a(kernel_desc(name, 254))
    return a.text()
```

```python
from common import *
from ffn_parts import *
SLOT = 22528
ONES = 3*SLOT
PART = ONES + 10240
FL = PART + 4*PBUF
K2_LDS = FL + (128 if E("LFLAG", "0") == "1" else 0)
LF = E("LFLAG", "0") == "1"
ST = " sc0 sc1" if E("WT", "0") == "1" else ""
def k2(name, fused=None):
    a = Asm()
    SC = " sc1" if fused else ""
    OS = {"0": "", "1": " sc0 sc1", "2": " nt"}[E("OUTST", "0")]
    if fused: a(f"{fused}:\ns_waitcnt vmcnt(0)")
    else: a(kernel_head(name))
    sW, sHead, sT, sF, sC, sT0, sT1, sSlot, sCQ, sOdd = 32, 33, 34, 35, 36, 37, 38, 39, 44, 45
    sMaskV = 40
    sOk = 42
    sKG, sK2G, sVG, sA, sB, sBW, sTF, sFQ, sPass = 46, 47, 48, 49, 50, 51, 52, 53, 54
    vLane, vL16 = 1, 2
    if not fused:
        a(f"""
        s_cmp_ge_u32 s2, 256
        s_cbranch_scc1 L_{name}_exit
        """)
    a(stamp(0))
    a(f"""
    s_load_dwordx2 s[4:5], s[0:1], 64
    s_load_dwordx2 s[6:7], s[0:1], 0
    s_load_dwordx4 s[12:15], s[0:1], 48
    v_lshrrev_b32 v2, 6, v0
    v_and_b32 v{vLane}, 63, v0
    v_readfirstlane_b32 s{sW}, v2
    s_and_b32 s{sT0}, s2, 7
    s_lshr_b32 s{sT1}, s2, 3
    s_lshl_b32 s{sHead}, s{sT0}, 2
    s_and_b32 s3, s{sT1}, 3
    s_add_u32 s{sHead}, s{sHead}, s3
    s_mul_i32 s{sF}, s{sHead}, 5
    s_add_u32 s{sF}, s{sF}, 1
    s_lshr_b32 s{sF}, s{sF}, 1
    s_and_b32 s{sOdd}, s{sHead}, 1
    s_cmp_eq_u32 s{sOdd}, 0
    s_cselect_b32 s3, 2, -1
    s_add_u32 s{sCQ}, s{sF}, s3
    s_lshl_b32 s{sF}, s{sF}, 9
    s_lshl_b32 s{sCQ}, s{sCQ}, 9
    s_lshl_b32 s{sOdd}, s{sOdd}, 3
    v_lshlrev_b32 v{vL16}, 4, v{vLane}
    v_and_b32 v3, 31, v{vLane}
    v_lshrrev_b32 v11, 5, v{vLane}
    s_cmp_ge_u32 s{sW}, 4
    s_cbranch_scc1 L_{name}_bg
    """)
    vK1, vK2, vV, vM01 = 4, 5, 6, 7
    Q1 = [12, 16]; Q2 = [20, 22]
    K1 = [24, 28]; K2 = [32, 34]; V1 = [36, 40]; V2 = [44, 48]; P1, P2 = 52, 56
    SS = [64, 80]; O = [96, 112]; CM = [128, 144]
    a(f"""
    s_lshr_b32 s{sT}, s{sT1}, 2
    s_lshl_b32 s{sT}, s{sT}, 3
    s_lshl_b32 s3, s{sW}, 1
    s_add_u32 s{sT}, s{sT}, s3
    v_lshlrev_b32 v{vK2}, 4, v3
    v_lshl_add_u32 v{vK1}, v11, 9, v{vK2}
    v_add_u32 v{vK2}, s{sOdd}, v{vK2}
    s_mul_i32 s3, s{sT}, 40960
    s_add_u32 s{sT0}, s3, s{sF}
    s_add_u32 s{sT1}, s3, s{sCQ}
    v_mov_b32 v{Q2[0]}, 0
    v_mov_b32 v{Q2[0]+1}, 0
    v_mov_b32 v{Q2[1]}, 0
    v_mov_b32 v{Q2[1]+1}, 0
    s_waitcnt lgkmcnt(0)
    """)
    a(srd(8, "s4", "s5", WS_SIZE))
    a(f"""
    s_add_u32 s{sA}, s{sT0}, 40960
    s_add_u32 s{sB}, s{sT1}, 40960
    {"s_barrier" if fused else ""}
    buffer_load_dwordx4 {vr(Q1[0],4)}, v{vK1}, s[8:11], s{sT0} offen{SC}
    buffer_load_dwordx4 {vr(Q1[1],4)}, v{vK1}, s[8:11], s{sA} offen{SC}
    s_mov_b64 exec, 0xffffffff
    buffer_load_dwordx2 {vr(Q2[0],2)}, v{vK2}, s[8:11], s{sT1} offen{SC}
    buffer_load_dwordx2 {vr(Q2[1],2)}, v{vK2}, s[8:11], s{sB} offen{SC}
    s_mov_b64 exec, -1
    s_setprio {E('APRIO', '2')}
    s_mov_b32 s{sMaskV}, 0x000fffff
    s_mov_b32 s{sMaskV+1}, 0x000fffff
    v_mul_u32_u24 v{vV}, 320, v11
    v_lshl_add_u32 v{vV}, v3, 4, v{vV}
    v_cmp_eq_u32 vcc, 20, v3
    v_mov_b32 v11, {ONES-12288+(0 if E('ONESALL') else 16)}
    v_mov_b32 v8, {ONES-12288}
    v_cndmask_b32 v11, v11, v8, vcc
    v_cmp_gt_u32 vcc, 20, v3
    v_mov_b32 v{vM01}, 0
    s_nop 0
    v_cndmask_b32 v{vV}, v11, v{vV}, vcc
    v_cndmask_b32 v{vM01}, v{vM01}, 1, vcc
    """)
    for r in range(4): a(f"v_mov_b32 v{V2[1]+r}, 0\nv_mov_b32 v{P2+r}, 0")
    for q in range(2):
        for r in range(16): a(f"v_mov_b32 v{O[q]+r}, 0")
    a(f"""
    s_mov_b32 s{sC}, 0
    s_mov_b32 s{sSlot}, 0
    s_waitcnt vmcnt(0)
    s_barrier
    """)
    a(stamp(1))
    def rd_k1(p, j): return f"ds_read_b128 {vr(K1[p],4)}, v{vK1} offset:{j*1024}\n"
    def rd_k2(p, j): return f"ds_read_b64 {vr(K2[p],2)}, v{vK2} offset:{8192+j*512}\n"
    def rd_v1(p, j): return f"ds_read_b128 {vr(V1[p],4)}, v{vV} offset:{12288+j*1280}\n"
    def rd_v2(p, j): return f"ds_read_b128 {vr(V2[p],4)}, v{vV} offset:{12288+j*1280+640}\n"
    a(rd_k1(0,0) + rd_k2(0,0) + rd_v1(0,0) + rd_v2(0,0))
    a("s_waitcnt lgkmcnt(2)")
    for q in range(2): a(mfma(SS[q], K1[0], Q1[q], "0"))
    for q in range(2): a(mfma8(SS[q], K2[0], Q2[q]))
    a("s_nop 10")
    for q in range(2):
        S0 = SS[q]; t = 3 if q == 0 else 11
        a(f"v_max3_f32 v{t}, v{S0}, v{S0+1}, v{S0+2}")
        for r in range(3, 15, 2): a(f"v_max3_f32 v{t}, v{t}, v{S0+r}, v{S0+r+1}")
        a(f"v_max_f32 v{t}, v{t}, v{S0+15}")
    a(f"""
    v_mov_b32 v{P1}, v3
    v_mov_b32 v{P1+1}, v11
    s_nop 1
    v_permlane32_swap_b32 v3, v{P1}
    v_permlane32_swap_b32 v11, v{P1+1}
    v_max_f32 v3, v3, v{P1}
    v_max_f32 v11, v11, v{P1+1}
    """)
    for r in range(16): a(f"v_sub_f32 v{CM[0]+r}, 0, v3")
    for r in range(16): a(f"v_sub_f32 v{CM[1]+r}, 0, v11")
    a("s_waitcnt lgkmcnt(0)\ns_nop 0")
    a(mfma(SS[0], K1[0], Q1[0], CM[0])); a(mfma8(SS[0], K2[0], Q2[0]))
    a("s_nop 11")
    if LF: a(f"v_mov_b32 v8, {FL}\nv_mov_b32 v9, 1")
    a(stamp(2))
    if E("CHUNKST"): a(f"v_mov_b32 v250, 0\nv_lshlrev_b32 v249, 2, v{vLane}\ns_mov_b32 s57, 0")
    L = f"L_{name}_loop"
    if E("INSTREAM"): a(f"s_mov_b32 s{sT1}, {HF_OFF}")
    al = E("ALIGN", "0")
    if al != "0": a(".p2align 6")
    if al == "3": a("s_nop 0")
    a(f"{L}:")
    if E("CHUNKST"): a(f"s_memtime s[84:85]\ns_waitcnt lgkmcnt(0)\ns_mov_b32 m0, s{sC}\ns_nop 0\nv_writelane_b32 v250, s84, m0")
    for n in range(16):
        j, q = n >> 1, n & 1
        p, pn = j & 1, (j + 1) & 1
        Sc, qn = SS[q], 1 - q
        Sn = SS[qn]
        def e(r): return f"v_exp_f32 v{Sc+r}, v{Sc+r}\n"
        def c(P, i, r): return f"v_cvt_pk_bf16_f32 v{P+i}, v{Sc+r}, v{Sc+r+1}\n"
        nx = (j + 1) & 7
        WD = E("WAITD", "1") == "1"
        if q == 1 and not WD: a("s_waitcnt lgkmcnt(0)" + ("\ns_nop 0" if E("ALIGN") == "2" else ""))
        if LF and n == 13:
            a("ds_add_u32 v8, v9 offset:64\nds_read_b32 v10, v8 offset:4")
        kq = p if q == 0 else pn
        INS = E("INSTREAM")
        def rds():
            if q != 0: return ""
            t = ""
            if j == 7:
                if LF:
                    t += f"""
                    s_waitcnt lgkmcnt(0)
                    v_readfirstlane_b32 s3, v10
                    s_cmp_ge_u32 s3, 256
                    s_cbranch_scc1 {L}_full
                    s_mov_b32 s{sT1}, 0
                    {L}_spin:
                    ds_read_b32 v10, v8 offset:4
                    s_add_u32 s{sT1}, s{sT1}, 1
                    s_waitcnt lgkmcnt(0)
                    v_readfirstlane_b32 s3, v10
                    s_cmp_ge_u32 s{sT1}, 0x400000
                    s_cbranch_scc1 {L}_full
                    s_cmp_lt_u32 s3, 256
                    s_cbranch_scc1 {L}_spin
                    {("s_add_u32 s57, s57, s" + str(sT1)) if E("CHUNKST") else ""}
                    {L}_full:
                    v_add_u32 v8, 4, v8
                    """
                else:
                    t += ("s_nop 0" if E("NOABAR") else "s_barrier") + "\n"
                t += f"""
                s_cmp_eq_u32 s{sSlot}, 2
                s_cselect_b32 s{sT0}, {(-2*SLOT) & 0xffffffff}, {SLOT}
                s_cselect_b32 s{sSlot}, -1, s{sSlot}
                s_add_u32 s{sSlot}, s{sSlot}, 1
                v_add_u32 v{vK1}, s{sT0}, v{vK1}
                v_add_u32 v{vK2}, s{sT0}, v{vK2}
                v_mad_i32_i24 v{vV}, v{vM01}, s{sT0}, v{vV}
                """
            return t + rd_k1(pn, nx) + rd_k2(pn, nx) + rd_v1(pn, nx) + rd_v2(pn, nx)
        if INS and n < 15:
            FA, FF_ = 160, 240
            f = n % 5
            a(mfma(Sn, K1[kq], Q1[qn], CM[qn]))
            a(e(0)+e(1)+e(2)+e(3))
            a(mfma(O[qn], V2[pn if q == 0 else p], P2))
            a(rds())
            a(e(4)+e(5)+e(6)+c(P1,0,0)+c(P1,1,2))
            a(mfma8(Sn, K2[kq], Q2[qn]))
            a(e(7)+e(8)+e(9)+c(P1,2,4)+c(P1,3,6))
            if f == 0 and INS != "2": a("s_waitcnt vmcnt(0)")
            a(mfma(FA + 16*f, FF_, FF_ + 4))
            if f == 0 and INS != "2":
                for k in range(6): a(f"buffer_load_dwordx4 {vr(248, 4)}, v{vL16}, s[8:11], s{sT1} offen offset:{(k%4)*1024}")
            a(e(10)+e(11)+e(12)+c(P2,0,8)+c(P2,1,10))
            a(mfma(O[q], V1[p], P1))
            a(e(13)+e(14)+e(15)+c(P2,2,12)+c(P2,3,14))
        else:
            a(mfma(Sn, K1[kq], Q1[qn], "0" if E("NOCM") else CM[qn]))
            a(e(0)+e(1)+e(2)+e(3)+c(P1,0,0)+c(P1,1,2))
            a(mfma(O[qn], V2[pn if q == 0 else p], P2))
            a(rds())
            a(e(4)+e(5)+e(6)+e(7)+c(P1,2,4)+c(P1,3,6))
            a(mfma8(Sn, K2[kq], Q2[qn]))
            a(e(8)+e(9)+e(10)+e(11)+c(P2,0,8)+c(P2,1,10))
            a(mfma(O[q], V1[p], P1))
            if q == 0 and WD: a("s_waitcnt lgkmcnt(0)")
            a(e(12)+e(13)+e(14)+e(15)+c(P2,2,12)+c(P2,3,14))
    a(f"""
    s_add_u32 s{sC}, s{sC}, 1
    s_cmp_lt_u32 s{sC}, 8
    s_cbranch_scc1 {L}
    s_nop 0
    """)
    a(mfma(O[1], V2[1], P2))
    if E("CHUNKST"):
        a(f"""
        s_memtime s[84:85]
        s_waitcnt lgkmcnt(0)
        v_writelane_b32 v250, s84, 8
        v_writelane_b32 v250, s57, 9
        s_lshl_b32 s3, s2, 2
        s_add_u32 s3, s3, s{sW}
        s_lshl_b32 s3, s3, 8
        s_add_u32 s3, s3, {DIAG_OFF + 0xC0000}
        s_mov_b32 s10, 0x3000000
        s_mov_b64 exec, 0xffff
        buffer_store_dword v250, v2, s[8:11], s3 offen
        s_mov_b64 exec, -1
        """)
    a(stamp(3))
    a(f"""
    s_mov_b32 s{sPass}, 0
    s_lshr_b32 s{sA}, s{sHead}, 1
    s_mul_i32 s{sA}, s{sA}, 5
    s_mul_i32 s3, s{sT}, 80
    s_add_u32 s{sA}, s{sA}, s3
    s_lshl_b32 s{sA}, s{sA}, 9
    s_add_u32 s{sA}, s{sA}, {OF_OFF}
    s_add_u32 s{sB}, s{sA}, s{sOdd}
    s_lshl_b32 s3, s{sOdd}, 7
    s_add_u32 s{sA}, s{sA}, s3
    v_and_b32 v9, 31, v{vLane}
    v_lshrrev_b32 v8, 5, v{vLane}
    v_lshlrev_b32 v9, 4, v9
    v_lshl_add_u32 v8, v8, 9, v9
    s_waitcnt lgkmcnt(0)
    """)
    O0 = O[0]
    a(f"""
    L_{name}_norm:
    v_mov_b32 v3, v{O0+8}
    v_mov_b32 v11, v{O0+8}
    s_mov_b32 s{sT0}, {hexf(2.0**-40)}
    s_mov_b32 s{sT1}, {hexf(2.0**60)}
    v_permlane32_swap_b32 v3, v11
    v_pk_add_f32 v[60:61], {vr(O0,2)}, {vr(O0+2,2)}
    v_rcp_f32 v10, v11
    v_pk_add_f32 v[62:63], {vr(O0+4,2)}, {vr(O0+6,2)}
    v_med3_f32 v3, v11, s{sT0}, v11
    v_pk_add_f32 v[60:61], v[60:61], {vr(O0+8,2)}
    v_pk_add_f32 v[62:63], v[62:63], {vr(O0+10,2)}
    v_min_f32 v3, s{sT1}, v11
    v_max_f32 v3, s{sT0}, v3
    v_pk_add_f32 v[60:61], v[60:61], v[62:63]
    v_cmp_eq_f32 s[{sOk}:{sOk+1}], v3, v11
    v_add_f32 v60, v60, v61
    s_movk_i32 s3, 0x1f8
    v_cmp_class_f32 vcc, v60, s3
    s_and_b64 s[{sOk}:{sOk+1}], s[{sOk}:{sOk+1}], vcc
    s_cmp_eq_u64 s[{sOk}:{sOk+1}], -1
    {"s_nop 0" if E("NOSLOW") else "s_cbranch_scc0 L_"+name+"_slow"}
    L_{name}_fin:
    """)
    for p in range(6): a(f"v_pk_mul_f32 {vr(O0+2*p,2)}, {vr(O0+2*p,2)}, v[10:11] op_sel_hi:[1,0]")
    for p in range(6): a(f"v_cvt_pk_bf16_f32 v{O0+p}, v{O0+2*p}, v{O0+2*p+1}")
    a(f"""
    s_nop 0
    v_permlane32_swap_b32 v{O0}, v{O0+2}
    v_permlane32_swap_b32 v{O0+1}, v{O0+3}
    buffer_store_dwordx4 {vr(O0,4)}, v8, s[8:11], s{sA} offen sc0 sc1
    s_mov_b64 exec, 0xffffffff
    buffer_store_dwordx2 {vr(O0+4,2)}, v9, s[8:11], s{sB} offen offset:2048 sc0 sc1
    s_mov_b64 exec, -1
    s_cmp_lg_u32 s{sPass}, 0
    s_cbranch_scc1 L_{name}_aend
    s_mov_b32 s{sPass}, 1
    s_add_u32 s{sA}, s{sA}, 40960
    s_add_u32 s{sB}, s{sB}, 40960
    """)
    for r in range(12): a(f"v_mov_b32 v{O[0]+r}, v{O[1]+r}")
    for r in range(4): a(f"v_mov_b32 v{Q1[0]+r}, v{Q1[1]+r}")
    for r in range(2): a(f"v_mov_b32 v{Q2[0]+r}, v{Q2[1]+r}")
    a(f"s_branch L_{name}_norm")
    a(f"L_{name}_aend:")
    if DIAG: a(stamp(4))
    a(f"""
    s_lshl_b32 s{sT0}, s{sT}, 8
    s_add_u32 s{sT0}, s{sT0}, {FLG_OFF}
    s_add_u32 s{sT1}, s{sT0}, 256
    v_mov_b32 v8, 0
    v_mov_b32 v9, 1
    s_waitcnt vmcnt({2 if E("SIG0", "1") == "1" else 0})
    s_mov_b64 exec, 1
    buffer_atomic_add v9, v8, s[8:11], s{sT0} offen sc1
    {"s_waitcnt vmcnt(1)" if E("SIG0", "1") == "1" else ""}
    buffer_atomic_add v9, v8, s[8:11], s{sT1} offen sc1
    s_mov_b64 exec, -1
    """)
    if DIAG:
        a(stamp(5)); a(stamp_flush(1, 6, 8))
    a("s_endpgm")
    vM, vAl, vTm = 128, 129, 130
    a(f"""
    L_{name}_slow:
    v_and_b32 v10, 31, v{vLane}
    v_lshrrev_b32 v11, 5, v{vLane}
    v_lshlrev_b32 v{vK2}, 4, v10
    v_lshl_add_u32 v{vK1}, v11, 9, v{vK2}
    v_add_u32 v{vK2}, s{sOdd}, v{vK2}
    v_mul_u32_u24 v{vV}, 320, v11
    v_lshl_add_u32 v{vV}, v10, 4, v{vV}
    v_mov_b32 v{vM}, 0xff800000
    v_mov_b32 v3, 0x3f803f80
    """)
    for r in range(4): a(f"v_mov_b32 v{V1[0]+r}, v3\nv_mov_b32 v{V2[0]+r}, v3")
    for r in range(16): a(f"v_mov_b32 v{O0+r}, 0")
    S0 = SS[0]
    a(f"""
    s_mov_b32 s{sC}, 0
    s_add_u32 s{sKG}, s{sF}, {KF_OFF}
    s_add_u32 s{sK2G}, s{sCQ}, {KF_OFF}
    s_mul_i32 s{sVG}, s{sHead}, {128*640}
    s_add_u32 s{sVG}, s{sVG}, {VF_OFF}
    L_{name}_sl:
    buffer_load_dwordx4 {vr(K1[0],4)}, v{vK1}, s[8:11], s{sKG} offen{SC}
    buffer_load_dwordx2 {vr(K2[0],2)}, v{vK2}, s[8:11], s{sK2G} offen{SC}
    s_mov_b64 exec, s[{sMaskV}:{sMaskV+1}]
    buffer_load_dwordx4 {vr(V1[0],4)}, v{vV}, s[8:11], s{sVG} offen{SC}
    buffer_load_dwordx4 {vr(V2[0],4)}, v{vV}, s[8:11], s{sVG} offen offset:640{SC}
    s_mov_b64 exec, -1
    s_waitcnt vmcnt(2)
    """)
    a(mfma(S0, K1[0], Q1[0], "0")); a(mfma8(S0, K2[0], Q2[0]))
    a("s_nop 11")
    a(f"v_max3_f32 v{vTm}, v{S0}, v{S0+1}, v{S0+2}")
    for r in range(3, 15, 2): a(f"v_max3_f32 v{vTm}, v{vTm}, v{S0+r}, v{S0+r+1}")
    a(f"""
    v_max3_f32 v{vTm}, v{vTm}, v{S0+15}, v{vM}
    v_mov_b32 v3, v{vTm}
    s_nop 1
    v_permlane32_swap_b32 v{vTm}, v3
    v_max_f32 v{vTm}, v{vTm}, v3
    v_sub_f32 v{vAl}, v{vM}, v{vTm}
    v_exp_f32 v{vAl}, v{vAl}
    v_mov_b32 v{vM}, v{vTm}
    """)
    for r in range(16): a(f"v_sub_f32 v{S0+r}, v{S0+r}, v{vM}")
    for r in range(16): a(f"v_exp_f32 v{S0+r}, v{S0+r}")
    for r in range(16): a(f"v_mul_f32 v{O0+r}, v{O0+r}, v{vAl}")
    for i in range(4): a(f"v_cvt_pk_bf16_f32 v{P1+i}, v{S0+2*i}, v{S0+2*i+1}")
    for i in range(4): a(f"v_cvt_pk_bf16_f32 v{P2+i}, v{S0+8+2*i}, v{S0+8+2*i+1}")
    a("s_waitcnt vmcnt(0)\ns_nop 0")
    a(mfma(O0, V1[0], P1)); a(mfma(O0, V2[0], P2))
    a(f"""
    s_add_u32 s{sKG}, s{sKG}, 40960
    s_add_u32 s{sK2G}, s{sK2G}, 40960
    s_add_u32 s{sVG}, s{sVG}, 1280
    s_add_u32 s{sC}, s{sC}, 1
    s_cmp_lt_u32 s{sC}, 64
    s_nop 6
    s_cbranch_scc1 L_{name}_sl
    s_nop 3
    v_mov_b32 v3, v{O0+8}
    v_mov_b32 v11, v{O0+8}
    s_nop 1
    v_permlane32_swap_b32 v3, v11
    v_rcp_f32 v10, v11
    s_nop 0
    s_branch L_{name}_fin
    """)
    vK2D, vL16b = 3, 19
    ACC = [96 + 16*f for f in range(5)]
    FR = lambda b: 24 + 24*b
    a(f"""
    L_{name}_bg:
    s_setprio {E("BPRIO", "0")}
    s_sub_u32 s{sBW}, s{sW}, 4
    v_mul_u32_u24 v{vK2D}, 40960, v11
    v_and_b32 v4, 31, v{vLane}
    v_lshl_add_u32 v{vK2D}, v4, 4, v{vK2D}
    v_add_u32 v{vL16b}, 4096, v{vL16}
    s_mul_i32 s3, s{sBW}, {2*40960}
    s_add_u32 s3, s3, {KF_OFF}
    s_add_u32 s{sKG}, s3, s{sF}
    s_add_u32 s{sK2G}, s3, s{sCQ}
    s_mul_i32 s{sVG}, s{sHead}, {128*640}
    s_mul_i32 s3, s{sBW}, 2560
    s_add_u32 s{sVG}, s{sVG}, s3
    s_add_u32 s{sVG}, s{sVG}, {VF_OFF}
    s_and_b32 s{sFQ}, s2, 1
    s_lshl_b32 s{sFQ}, s{sFQ}, 1
    s_and_b32 s3, s{sT1}, 1
    s_add_u32 s{sFQ}, s{sFQ}, s3
    s_bfe_u32 s{sTF}, s2, 0x20001
    s_lshl_b32 s{sTF}, s{sTF}, 4
    s_lshr_b32 s3, s{sT1}, 1
    s_add_u32 s{sTF}, s{sTF}, s3
    s_waitcnt lgkmcnt(0)
    """)
    a(srd(8, "s4", "s5", WS_SIZE))
    def gate(label, setup, sleep):
        return setup + f"""
        s_mov_b32 s{sT1}, 0
        s_mov_b32 s{sT0}, {FLG_OFF}
        {label}:
        buffer_load_dword v9, v8, s[8:11], s{sT0} offen sc1
        s_add_u32 s{sT1}, s{sT1}, 1
        s_waitcnt vmcnt(0)
        v_cmp_ge_u32 vcc, v9, v10
        s_cmp_eq_u64 vcc, -1
        s_cbranch_scc1 {label}_ok
        s_cmp_ge_u32 s{sT1}, 0x40000
        s_cbranch_scc1 {label}_ok
        s_sleep {sleep}
        s_branch {label}
        {label}_ok:
        """
    if fused:
        a(f"s_cmp_lg_u32 s{sBW}, 0\ns_cbranch_scc1 L_{name}_gA")
        a(gate(f"L_{name}_pA", f"""
        s_lshr_b32 s{sT0}, s{sF}, 9
        s_lshr_b32 s{sT1}, s{sCQ}, 9
        s_min_u32 s3, s{sT0}, s{sT1}
        s_lshr_b32 s3, s3, 4
        s_add_u32 s{sT0}, s{sT0}, 1
        s_max_u32 s{sT0}, s{sT0}, s{sT1}
        s_lshr_b32 s{sT0}, s{sT0}, 4
        s_add_u32 s3, s3, 64
        s_add_u32 s{sT0}, s{sT0}, 64
        v_mov_b32 v8, s3
        v_writelane_b32 v8, s{sT0}, 1
        s_add_u32 s3, s3, 5
        s_add_u32 s{sT0}, s{sT0}, 5
        v_writelane_b32 v8, s3, 2
        v_writelane_b32 v8, s{sT0}, 3
        s_mul_i32 s3, s{sHead}, 20
        s_add_u32 s{sT0}, s3, 19
        s_lshr_b32 s3, s3, 7
        s_lshr_b32 s{sT0}, s{sT0}, 7
        s_add_u32 s3, s3, 74
        s_add_u32 s{sT0}, s{sT0}, 74
        v_writelane_b32 v8, s3, 4
        v_writelane_b32 v8, s{sT0}, 5
        v_mov_b32 v10, 8
        v_lshlrev_b32 v8, 8, v8
        """, 2))
        a(f"L_{name}_gA:\ns_barrier")
    vq = VmQ()
    def dma(c):
        sl = (c % 3) * SLOT
        t = f"""
        s_lshl_b32 s{sT0}, s{sBW}, 11
        s_add_u32 m0, s{sT0}, {sl}
        s_add_u32 s{sT1}, s{sKG}, 40960
        buffer_load_dwordx4 v{vL16}, s[8:11], s{sKG} offen{SC} lds
        s_add_u32 m0, s{sT0}, {sl+1024}
        s_lshl_b32 s{sT0}, s{sBW}, 10
        buffer_load_dwordx4 v{vL16}, s[8:11], s{sT1} offen{SC} lds
        s_add_u32 m0, s{sT0}, {sl+8192}
        s_mul_i32 s{sT0}, s{sBW}, 2560
        buffer_load_dwordx4 v{vK2D}, s[8:11], s{sK2G} offen{SC} lds
        s_add_u32 m0, s{sT0}, {sl+12288}
        s_add_u32 s{sT1}, s{sVG}, 1024
        buffer_load_dwordx4 v{vL16}, s[8:11], s{sVG} offen{SC} lds
        s_add_u32 m0, s{sT0}, {sl+12288+1024}
        s_add_u32 s{sKG}, s{sKG}, {8*40960}
        buffer_load_dwordx4 v{vL16}, s[8:11], s{sT1} offen{SC} lds
        s_add_u32 m0, s{sT0}, {sl+12288+2048}
        s_add_u32 s{sT1}, s{sVG}, 2048
        s_mov_b64 exec, 0xffffffff
        buffer_load_dwordx4 v{vL16}, s[8:11], s{sT1} offen{SC} lds
        s_mov_b64 exec, -1
        s_add_u32 s{sK2G}, s{sK2G}, {8*40960}
        s_add_u32 s{sVG}, s{sVG}, 10240
        """
        vq.issue(f"D{c}", 6)
        return t
    WP, AO, A4, GF, X = 24, 184, 200, 216, 236
    vOq = 4
    OL, X4L, W4L = 40960, 81920, 0
    sXO, sX4 = 55, 56
    a(dma(0))
    a(f"""
    s_mul_i32 s{sA}, s{sTF}, 96
    s_mul_i32 s3, s{sBW}, 24
    s_add_u32 s{sA}, s{sA}, s3
    s_lshl_b32 s{sA}, s{sA}, 10
    s_add_u32 s{sA}, s{sA}, {HF_OFF}
    s_mul_i32 s{sB}, s3, 20
    s_mul_i32 s3, s{sFQ}, 5
    s_add_u32 s{sB}, s{sB}, s3
    s_lshl_b32 s{sB}, s{sB}, 10
    s_add_u32 s{sB}, s{sB}, {W2F_OFF}
    v_lshrrev_b32 v4, 2, v{vLane}
    v_mul_u32_u24 v4, 640, v4
    v_and_b32 v5, 3, v{vLane}
    v_lshl_add_u32 v4, v5, 2, v4
    v_add_u32 v4, {ONES}, v4
    v_mov_b32 v5, 0x3f803f80
    v_mov_b32 v6, 0
    ds_write_b32 v4, v5
    ds_write_b32 v4, v6 offset:16
    """)
    if LF:
        a(f"""
        v_and_b32 v4, 31, v{vLane}
        v_cmp_eq_u32 vcc, 8, v4
        v_lshlrev_b32 v4, 2, v4
        v_add_u32 v4, {FL}, v4
        v_mov_b32 v5, 0x100
        v_cndmask_b32 v5, 0, v5, vcc
        ds_write_b32 v4, v5
        v_mov_b32 v20, {FL}
        v_mov_b32 v21, 1
        """)
    def lspin(tag, off):
        return f"""
        s_mov_b32 s{sT1}, 0
        L_{name}_{tag}:
        ds_read_b32 v22, v20 offset:{off}
        s_add_u32 s{sT1}, s{sT1}, 1
        s_waitcnt lgkmcnt(0)
        v_readfirstlane_b32 s3, v22
        s_cmp_ge_u32 s3, 256
        s_cbranch_scc1 L_{name}_{tag}_ok
        s_cmp_ge_u32 s{sT1}, 0x400000
        s_cbranch_scc1 L_{name}_{tag}_ok
        s_sleep {E("LSLP", "8")}
        s_branch L_{name}_{tag}
        L_{name}_{tag}_ok:
        """
    a(dma(1)); a(dma(2))
    def ld(s):
        vq.issue(f"L{s}", 6)
        return gemm_loads(FR(s % 3), vL16, vL16b, 8, sA, sB, SC)
    a(vq.wait("D0")); a("s_waitcnt lgkmcnt(0)\ns_barrier")
    if LF: a(vq.wait("D1")); a("ds_add_u32 v20, v21 offset:4")
    if fused:
        a(gate(f"L_{name}_pB", f"""
        s_lshr_b32 s3, s{sTF}, 3
        s_add_u32 s3, s3, 80
        s_and_b32 s{sT0}, s2, 7
        s_add_u32 s{sT0}, s{sT0}, 88
        v_mov_b32 v8, s3
        v_writelane_b32 v8, s{sT0}, 1
        v_mov_b32 v10, 12
        v_writelane_b32 v10, 32, 1
        v_lshlrev_b32 v8, 8, v8
        """, 4))
        vq.q = []
        if E("CPF2", "0") == "1":
            a(f"""
            s_cmp_ge_u32 s2, 16
            s_cbranch_scc1 L_{name}_nocpf
            s_cmp_ge_u32 s{sBW}, 2
            s_cbranch_scc1 L_{name}_nocpf
            v_lshl_add_u32 v11, s{sBW}, 6, v{vLane}
            """)
            a(code_prefetch("b", None, f"L_{name}_bg", sBW, 11, 2, 13))
            a(f"s_waitcnt vmcnt(0)\nL_{name}_nocpf:")
    if not E("NOFFN"):
        for s in range(3): a(ld(s))
    s = 0
    for c in range(8):
        if LF and 1 <= c <= 6:
            a(vq.wait(f"D{c+1}")); a(f"ds_add_u32 v20, v21 offset:{4*(c+1)}")
        FS = [int(x) for x in E("FSCHED", "3,4,4,4,4,5").split(",")]
        PWC = len(FS)
        assert sum(FS) == 24 and len(FS) <= 6
        if c < len(FS) and not E("NOFFN"):
            for k in range(FS[c]):
                a(vq.wait(f"L{s}"))
                a(gemm_comp(FR(s % 3), ACC, s == 0))
                if s + 3 < 24: a(ld(s + 3))
                s += 1
        if c == int(E("PWC", "5")):
            a(partial_write(ACC, vLane, sBW, sT0, PART))
            a("s_waitcnt lgkmcnt(0)")
            if LF: a("ds_add_u32 v20, v21 offset:112")
        if c == 6:
            a(f"""
            v_and_b32 v4, 31, v{vLane}
            v_lshrrev_b32 v5, 5, v{vLane}
            """)
            a(srd(16, "s6", "s7", S*D*2))
            a(srd(20, "s12", "s13", S*D*2))
            a(f"""
            v_mul_u32_u24 v12, 1280, v4
            v_lshl_add_u32 v13, v5, 4, v12
            v_lshl_add_u32 v12, v5, 3, v12
            v_mul_u32_u24 v15, {PSTR}, v4
            v_lshl_add_u32 v15, v5, 4, v15
            s_mul_i32 s{sXO}, s{sTF}, {32*1280}
            s_mul_i32 s3, s{sFQ}, 320
            s_add_u32 s{sXO}, s{sXO}, s3
            s_lshl_b32 s3, s{sBW}, 4
            s_add_u32 s{sX4}, s{sXO}, s3
            s_add_u32 s{sX4}, s{sX4}, 256
            s_lshl_b32 s3, s{sBW}, 6
            s_add_u32 s{sXO}, s{sXO}, s3
            """)
            for i in range(4): a(f"buffer_load_dwordx2 {vr(X+2*i,2)}, v12, s[16:19], s{sXO} offen offset:{16*i}")
            a(f"buffer_load_dwordx2 {vr(X+8,2)}, v12, s[16:19], s{sX4} offen")
            vq.issue("X", 5)
        if c in (6, 7):
            for qd in ((0, 1) if c == 6 else (2, 3)):
                a(f"""
                s_add_u32 s3, s{sBW}, {qd}
                s_and_b32 s3, s3, 3
                s_mul_i32 s{sB}, s3, {10*20*1024}
                s_mul_i32 s{sT0}, s{sFQ}, 5
                s_add_u32 s{sT0}, s{sT0}, s{sBW}
                s_lshl_b32 s{sT0}, s{sT0}, 10
                s_add_u32 s{sB}, s{sB}, s{sT0}
                s_add_u32 s{sB}, s{sB}, {WOF_OFF}
                s_mul_i32 s3, s3, 10240
                s_add_u32 s3, s3, {OL}
                v_add_u32 v{vOq+qd}, s3, v{vL16}
                """)
                for j in range(10):
                    a(f"buffer_load_dwordx4 {vr(WP+4*(10*qd+j),4)}, v{vL16}, s[8:11], s{sB} offen{SC}")
                    if j < 9: a(f"s_add_u32 s{sB}, s{sB}, {20*1024}")
                vq.issue("W", 10)
        if LF:
            if c + 3 <= 7 or c == 7 or E("PACE", "1") == "1": a(lspin(f"fr{c}", 64 + 4*c))
        else:
            if c <= 6: a(vq.wait(f"D{c+1}"))
            if not E("NOABAR"): a("s_barrier")
        if c + 3 <= 7: a(dma(c + 3))
    a(f"""
    s_mul_i32 s{sB}, s{sBW}, {10*20*1024}
    s_mul_i32 s{sT0}, s{sFQ}, 5
    s_add_u32 s{sT0}, s{sT0}, 4
    s_lshl_b32 s{sT0}, s{sT0}, 10
    s_add_u32 s{sB}, s{sB}, s{sT0}
    s_add_u32 s{sB}, s{sB}, {WOF_OFF}
    s_mul_i32 s{sT0}, s{sBW}, 10240
    s_add_u32 s{sT0}, s{sT0}, {W4L}
    v_add_u32 v14, s{sT0}, v{vL16}
    """)
    for j in range(10):
        a(f"s_add_u32 m0, s{sT0}, {j*1024}\ns_nop 0\nbuffer_load_dwordx4 v{vL16}, s[8:11], s{sB} offen{SC} lds")
        if j < 9: a(f"s_add_u32 s{sB}, s{sB}, {20*1024}")
    if LF: a(lspin("pw", 112))
    a(f"""
    s_lshl_b32 s{sT0}, s{sBW}, 7
    s_add_u32 s{sT0}, s{sT0}, {PART}
    v_add_u32 v16, s{sT0}, v15
    s_lshl_b32 s{sT0}, s{sBW}, 5
    s_add_u32 s{sT0}, s{sT0}, {PART+512}
    v_add_u32 v15, s{sT0}, v15
    """)
    TB = [184, 200]
    def grd(i):
        b = TB[i & 1]
        return "".join((f"ds_read_b128 {vr(b+4*w,4)}, v16 offset:{w*PBUF+32*i}\n" if i < 4 else f"ds_read_b128 {vr(b+4*w,4)}, v15 offset:{w*PBUF}\n") for w in range(4))
    a(grd(0))
    for i in range(5):
        b = TB[i & 1]; d = GF + 4*i
        if i < 4: a(grd(i + 1))
        a(f"s_waitcnt lgkmcnt({4 if i < 4 else 0})")
        for e in range(4): a(f"v_add_f32 v{b+e}, v{b+e}, v{b+4+e}\nv_add_f32 v{b+8+e}, v{b+8+e}, v{b+12+e}")
        for e in range(4): a(f"v_add_f32 v{d+e}, v{b+e}, v{b+8+e}")
    a(f"s_mov_b32 s{sT0}, {hexf(-1.4426950408889634)}")
    GT = 8
    for r in range(0, 20, 4):
        for e in range(4): a(f"v_mul_f32 v{GT+e}, s{sT0}, v{GF+r+e}")
        for e in range(4): a(f"v_exp_f32 v{GT+e}, v{GT+e}")
        for e in range(4): a(f"v_add_f32 v{GT+e}, 1.0, v{GT+e}")
        for e in range(4): a(f"v_rcp_f32 v{GT+e}, v{GT+e}")
        for e in range(4): a(f"v_mul_f32 v{GF+r+e}, v{GF+r+e}, v{GT+e}")
    a(f"""
    s_cmp_lg_u32 s{sBW}, 0
    s_cbranch_scc1 L_{name}_ready
    s_lshl_b32 s{sT0}, s{sTF}, 8
    s_add_u32 s{sT0}, s{sT0}, {FLG_OFF}
    v_mov_b32 v8, 0
    s_mov_b32 s{sT1}, 0
    L_{name}_poll:
    buffer_load_dword v9, v8, s[8:11], s{sT0} offen sc1
    s_add_u32 s{sT1}, s{sT1}, 1
    s_waitcnt vmcnt(0)
    v_readfirstlane_b32 s3, v9
    s_cmp_ge_u32 s3, 32
    s_cbranch_scc1 L_{name}_ready
    s_cmp_ge_u32 s{sT1}, 0x40000
    s_cbranch_scc1 L_{name}_ready
    s_sleep {E('SLP', '2')}
    s_branch L_{name}_poll
    L_{name}_ready:
    s_waitcnt vmcnt(0) lgkmcnt(0)
    s_barrier
    """)
    if DIAG: a(stamp(1))
    a(f"""
    s_mul_i32 s{sA}, s{sTF}, 40
    s_mul_i32 s3, s{sBW}, 10
    s_add_u32 s{sA}, s{sA}, s3
    s_lshl_b32 s{sA}, s{sA}, 10
    s_add_u32 s{sA}, s{sA}, {OF_OFF}
    s_mul_i32 s{sT0}, s{sBW}, 10240
    s_add_u32 s{sT0}, s{sT0}, {OL}
    """)
    for j in range(10):
        a(f"s_add_u32 m0, s{sT0}, {j*1024}\ns_nop 0\nbuffer_load_dwordx4 v{vL16}, s[8:11], s{sA} offen sc1 lds")
        if j < 9: a(f"s_add_u32 s{sA}, s{sA}, 1024")
    OB = [246, 250]; W4 = [8, 16]
    def rdo(u): return f"ds_read_b128 {vr(OB[u & 1],4)}, v{vOq + u//10} offset:{(u % 10)*1024}\n"
    def rdw(u): return f"ds_read_b128 {vr(W4[u & 1],4)}, v14 offset:{u*1024}\n"
    a("s_waitcnt vmcnt(8)")
    a(rdo(0) + rdw(0))
    for u in range(40):
        nxt = ""
        if u + 1 < 10 and (u + 1) % 2 == 0: a(f"s_waitcnt vmcnt({max(0, 10 - (u + 1) - 2)})")
        if u + 1 == 10: a("s_waitcnt vmcnt(0)\ns_barrier")
        if u + 1 < 40: nxt = rdo(u + 1) + (rdw(u + 1) if u + 1 < 10 else "")
        a(nxt)
        cnt = (1 if u + 1 < 40 else 0) + (1 if u + 1 < 10 else 0)
        a(f"s_waitcnt lgkmcnt({cnt})")
        a(mfma(AO, WP + 4*u, OB[u & 1], "0" if u == 0 else None))
        if u < 10: a(mfma(A4, W4[u & 1], OB[u & 1], "0" if u == 0 else None))
    if DIAG: a(stamp(2))
    a(f"""
    s_lshl_b32 s{sT0}, s{sBW}, 12
    s_add_u32 s{sT0}, s{sT0}, {X4L}
    v_add_u32 v14, s{sT0}, v{vL16}
    s_lshl_b32 s{sT0}, s{sBW}, 10
    s_add_u32 s{sT0}, s{sT0}, {X4L}
    v_add_u32 v15, s{sT0}, v{vL16}
    """)
    for i in range(4): a(f"ds_write_b128 v14, {vr(A4+4*i,4)} offset:{i*1024}")
    a("s_waitcnt lgkmcnt(0)\ns_barrier")
    for w in range(4): a(f"ds_read_b128 {vr(24+4*w,4)}, v15 offset:{w*4096}")
    def fin(sreg, g, x, d):
        t = f"""
        v_lshlrev_b32 v40, 16, v{x}
        v_and_b32 v41, 0xffff0000, v{x}
        v_lshlrev_b32 v42, 16, v{x+1}
        v_and_b32 v43, 0xffff0000, v{x+1}
        """
        for e in range(4): t += f"v_fma_f32 v{40+e}, v{sreg+e}, v{g+e}, v{40+e}\n"
        t += f"v_cvt_pk_bf16_f32 v{d}, v40, v41\nv_cvt_pk_bf16_f32 v{d+1}, v42, v43\n"
        return t
    for i in range(4): a(fin(AO+4*i, GF+4*i, X+2*i, 48+2*i))
    a(f"""
    v_permlane32_swap_b32 v48, v50
    v_permlane32_swap_b32 v49, v51
    v_permlane32_swap_b32 v52, v54
    v_permlane32_swap_b32 v53, v55
    buffer_store_dwordx4 v[48:51], v13, s[20:23], s{sXO} offen{OS}
    buffer_store_dwordx4 v[52:55], v13, s[20:23], s{sXO} offen offset:32{OS}
    s_waitcnt lgkmcnt(0)
    """)
    for e in range(4): a(f"v_add_f32 v{24+e}, v{24+e}, v{28+e}\nv_add_f32 v{32+e}, v{32+e}, v{36+e}")
    for e in range(4): a(f"v_add_f32 v{24+e}, v{24+e}, v{32+e}")
    a(fin(24, GF+16, X+8, 56))
    a(f"buffer_store_dwordx2 v[56:57], v12, s[20:23], s{sX4} offen{OS}")
    if DIAG: a(stamp(3))
    a(f"L_{name}_end:")
    a(d2_end())
    if DIAG:
        a(stamp(4)); a("s_waitcnt vmcnt(0)"); a(stamp(5)); a(stamp_flush(1, 6, 8))
    a(f"L_{name}_exit:\ns_endpgm")
    if not fused: a(kernel_desc(name, 254))
    return a.text()
```

```python
from common import *
CSL = 147456
K1_LDS = CSL + 512 + 2048
XS, WS0 = 32768, 98304
ST = {"0": "", "1": " sc0 sc1", "2": " nt", "3": " sc1", "4": " sc0 sc1 nt"}[E("WT", "1")]
def k1(name, fused=None, sym=None):
    a = Asm()
    a(kernel_head(sym or name))
    NSTAT = 5 if fused else 4
    DONE = f"L_{name}_rdone" if fused else f"L_{name}_exit"
    sW, sTB, sCT, sLD, sXB, sWB, sM0X, sKS, sST, sT0, sT1, sCur = 32,33,34,35,36,37,38,39,40,41,42,43
    sScale, sWM, sWN, sFA, sDX, sDW, sXG, sWG, sP, sLD6, sMX, sMW = 45,46,47,48,49,50,51,52,53,54,60,61
    DBG = 56
    vLane = 1
    vXD, vWD = 194, 198
    vXA, vWA = 4, 8
    vCs, vTmp = 12, 14
    vEA = 16
    vAB = 24
    vPoll, vPollA = 28, 29
    FR = [32, 48]
    ACC = lambda ft, tt: 64 + (ft*2+tt)*16
    VST = 128
    a(f"""
    s_cmp_ge_u32 s2, 256
    s_cbranch_scc1 L_{name}_exit
    """)
    if E("PERM"):
        a(f"s_mul_i32 s2, s2, {int(E('PERM'))}\ns_add_u32 s2, s2, 77\ns_and_b32 s2, s2, 255")
    a(stamp(0))
    a(d2_start())
    a(f"""
    s_load_dwordx4 s[4:7], s[0:1], 0
    s_load_dwordx2 s[8:9], s[0:1], 16
    s_load_dwordx4 s[12:15], s[0:1], 32
    s_load_dwordx2 s[16:17], s[0:1], 64
    s_load_dwordx2 s[18:19], s[0:1], 56
    v_lshrrev_b32 v2, 6, v0
    v_and_b32 v{vLane}, 63, v0
    v_readfirstlane_b32 s{sW}, v2
    """)
    if fused and E("CPF0", "0") == "1":
        a(f"""
        s_cmp_ge_u32 s2, 8
        s_cbranch_scc1 L_{name}_nocpf0
        s_cmp_lg_u32 s{sW}, 7
        s_cbranch_scc1 L_{name}_nocpf0
        """)
        a(code_prefetch("c", sym, sym, sW, vLane, 1, 29))
        a(f"L_{name}_nocpf0:")
    a(f"""
    s_and_b32 s{sT0}, s2, 7
    s_lshr_b32 s{sT1}, s2, 3
    s_and_b32 s{sKS}, s{sT1}, 3
    s_and_b32 s3, s{sT0}, 1
    s_lshl_b32 s3, s3, 2
    s_add_u32 s{sTB}, s{sKS}, s3
    """)
    if E("REMAP", "0") == "1":
        a(f"""
        s_lshr_b32 s{sLD}, s{sT0}, 1
        s_lshl_b32 s3, s{sLD}, 3
        s_lshr_b32 s{sCT}, 0x0e140700, s3
        s_and_b32 s{sCT}, s{sCT}, 0xff
        s_lshr_b32 s3, s{sT1}, 2
        s_add_u32 s{sCT}, s{sCT}, s3
        s_cmp_eq_u32 s{sLD}, 3
        s_cselect_b32 s{sLD}, 6, 7
        s_cmp_ge_u32 s3, s{sLD}
        s_cbranch_scc1 L_{name}_spare
        """)
    else:
        a(f"""
        s_lshr_b32 s{sCT}, s{sT0}, 1
        s_mul_i32 s{sCT}, s{sCT}, 7
        s_lshr_b32 s3, s{sT1}, 2
        s_add_u32 s{sCT}, s{sCT}, s3
        s_cmp_ge_u32 s3, 7
        s_cbranch_scc1 L_{name}_spare
        s_cmp_ge_u32 s{sCT}, 27
        s_cbranch_scc1 L_{name}_spare
        """)
    rot = E("ROT", "0")
    if rot == "1":
        a(f"""
        s_mul_i32 s3, s3, 3
        s_mul_i32 s{sKS}, s{sKS}, 5
        s_lshr_b32 s{sKS}, s{sKS}, 1
        s_add_u32 s{sKS}, s{sKS}, s3
        s_cmp_ge_u32 s{sKS}, 20
        s_cselect_b32 s3, 20, 0
        s_sub_u32 s{sKS}, s{sKS}, s3
        s_cmp_ge_u32 s{sKS}, 10
        s_cselect_b32 s3, 10, 0
        s_sub_u32 s{sKS}, s{sKS}, s3
        """)
    elif rot == "2":
        a(f"""
        s_add_u32 s3, s3, s{sKS}
        s_and_b32 s3, s3, 1
        s_mul_i32 s{sKS}, s3, 5
        """)
    else:
        a(f"s_mov_b32 s{sKS}, 0")
    a(f"""
    s_cmp_ge_u32 s{sCT}, 15
    s_cselect_b32 s{sLD}, 3072, 3840
    s_cselect_b32 s3, 15, 0
    s_sub_u32 s3, s{sCT}, s3
    s_lshl_b32 s{sWB}, s3, 8
    s_mul_i32 s{sXB}, s{sTB}, {256*1280}
    s_lshl_b32 s{sM0X}, s{sW}, 10
    s_lshl_b32 s{sLD6}, s{sLD}, 6
    s_and_b32 s{sWM}, s{sW}, 3
    s_lshr_b32 s{sWN}, s{sW}, 2
    s_and_b32 s{sFA}, s{sW}, 1
    s_lshr_b32 s{sP}, s{sWM}, 1
    v_lshrrev_b32 v12, 4, v{vLane}
    s_lshl_b32 s3, s{sW}, 2
    v_add_u32 v13, s3, v12
    v_xor_b32 v5, v13, v{vLane}
    v_and_b32 v5, 7, v5
    v_lshrrev_b32 v4, 3, v{vLane}
    v_lshl_add_u32 v4, s{sW}, 3, v4
    v_mul_u32_u24 v4, 1280, v4
    v_lshl_add_u32 v{vXD}, v5, 4, v4
    v_add_u32 v{vXD+1}, {64*1280}, v{vXD}
    v_add_u32 v{vXD+2}, {128*1280}, v{vXD}
    v_add_u32 v{vXD+3}, {192*1280}, v{vXD}
    v_lshlrev_b32 v5, 2, v12
    v_xor_b32 v5, v5, v{vLane}
    v_and_b32 v5, 15, v5
    v_mul_u32_u24 v4, s{sLD}, v13
    v_lshl_add_u32 v{vWD}, v5, 4, v4
    s_lshl_b32 s3, s{sLD}, 5
    v_add_u32 v{vWD+1}, s3, v{vWD}
    v_and_b32 v192, 31, v{vLane}
    v_lshrrev_b32 v193, 5, v{vLane}
    v_bfe_u32 v14, v{vLane}, 1, 3
    s_lshl_b32 s3, s{sP}, 1
    v_add_u32 v15, s3, v193
    v_xor_b32 v14, v14, v15
    v_lshl_add_u32 v15, s{sWM}, 6, v192
    v_lshlrev_b32 v15, 7, v15
    v_lshl_add_u32 v{vXA}, v14, 4, v15
    v_xor_b32 v{vXA+1}, 32, v{vXA}
    v_xor_b32 v{vXA+2}, 64, v{vXA}
    v_xor_b32 v{vXA+3}, 0x60, v{vXA}
    v_bfe_u32 v14, v{vLane}, 2, 2
    v_lshl_add_u32 v15, v193, 3, v14
    s_lshl_b32 s{sT0}, s{sP}, 4
    v_add_u32 v15, s{sT0}, v15
    s_lshl_b32 s3, s{sWN}, 1
    s_add_u32 s3, s3, s{sFA}
    v_xor_b32 v14, s3, v14
    v_lshlrev_b32 v14, 6, v14
    v_lshl_add_u32 v15, v15, 8, v14
    v_and_b32 v14, 1, v12
    v_lshl_add_u32 v15, v14, 5, v15
    v_and_b32 v14, 3, v{vLane}
    v_lshl_add_u32 v15, v14, 3, v15
    v_add_u32 v{vWA}, {WS0}, v15
    v_xor_b32 v{vWA+1}, 0x1000, v{vWA}
    v_xor_b32 v{vWA+2}, 64, v{vWA}
    v_xor_b32 v{vWA+3}, 0x1040, v{vWA}
    v_and_b32 v14, 127, v0
    v_lshlrev_b32 v14, 2, v14
    v_add_u32 v14, {CSL}, v14
    v_mov_b32 v{vCs}, 0
    v_mov_b32 v{vCs+1}, 0
    ds_write_b32 v14, v{vCs}
    s_mov_b32 s{sST}, 0
    s_mov_b32 s{sCur}, 0
    s_mov_b32 s{sScale}, 0xffff0000
    s_waitcnt lgkmcnt(0)
    """)
    a(stamp(6))
    a(srd(20, "s4", "s5", S*D*2))
    a(f"""
    s_cmp_ge_u32 s{sCT}, 15
    s_cselect_b32 s24, s12, s6
    s_cselect_b32 s25, s13, s7
    s_cselect_b32 s26, {640*3072}, {640*3840}
    s_mov_b32 s27, 0x00020000
    v_mov_b32 v{vPollA}, 0
    v_mov_b32 v{vEA}, 0
    v_mov_b32 v{vEA+1}, 0
    """)
    a(srd(28, "s16", "s17", WS_SIZE))
    a(srd(DBG, "s18", "s19", 256))
    def issue_pre():
        t = f"s_lshl_b32 s{sXG}, s{sKS}, 7\ns_add_u32 s{sXG}, s{sXG}, s{sXB}\n"
        t += f"s_mul_i32 s{sWG}, s{sLD6}, s{sKS}\ns_add_u32 s{sWG}, s{sWG}, s{sWB}\n"
        t += f"s_add_u32 s{sKS}, s{sKS}, 1\ns_cmp_ge_u32 s{sKS}, 10\ns_cselect_b32 s{sKS}, 0, s{sKS}\n"
        return t
    def dma_m0(i): return f"s_add_u32 m0, s{sMX}, {i*8192}\n" if i < 4 else f"s_add_u32 m0, s{sMW}, {(i-4)*8192}\n"
    def dma_ld(i):
        if i < 4: return f"buffer_load_dwordx4 v{vXD+i}, s[20:23], s{sXG} offen{' nt' if E('XNT') else ''} lds\n"
        return f"buffer_load_dwordx4 v{vWD+i-4}, s[24:27], s{sWG} offen{' nt' if E('WNT') else ''} lds\n"
    def issue():
        t = issue_pre()
        for i in range(6): t += dma_m0(i) + "s_nop 0\n" + dma_ld(i)
        return t
    def slot_m0(slot_sgpr=None, slot=None):
        if slot is not None:
            return f"s_add_u32 s{sMX}, s{sM0X}, {slot*XS}\ns_add_u32 s{sMW}, s{sM0X}, {WS0+slot*16384}\n"
        return (f"s_lshl_b32 s{sMX}, s{slot_sgpr}, 15\ns_add_u32 s{sMX}, s{sMX}, s{sM0X}\n"
                f"s_lshl_b32 s{sMW}, s{slot_sgpr}, 14\ns_add_u32 s{sMW}, s{sMW}, s{sM0X}\ns_add_u32 s{sMW}, s{sMW}, {WS0}\n")
    if E("PF", "0") != "0":
        PF0 = int(E("PF0", "3"))
        a(f"""
        s_add_u32 s{sT0}, s{sW}, {PF0}
        s_cmp_ge_u32 s{sT0}, 10
        s_cbranch_scc1 L_{name}_nopf
        s_lshr_b32 s{sT1}, s2, 3
        s_mul_i32 s3, s{sT1}, 37
        v_add_u32 v14, s3, v{vLane}
        v_min_u32 v14, 0x3ff, v14
        s_and_b32 s3, s2, 1
        s_lshl_b32 s3, s3, 10
        v_add_u32 v14, s3, v14
        v_mul_u32_u24 v14, 1280, v14
        s_lshl_b32 s3, s{sT0}, 7
        s_mov_b32 exec_hi, 0x1f
        buffer_load_dword v30, v14, s[20:23], s3 offen
        s_mov_b64 exec, 0xffffffff
        s_lshl_b32 s3, s{sT1}, 5
        v_add_u32 v14, s3, v{vLane}
        v_mul_u32_u24 v15, 4682, v14
        v_lshrrev_b32 v15, 16, v15
        v_mul_u32_u24 v18, 14, v15
        v_sub_u32 v14, v14, v18
        s_lshl_b32 s3, s{sT0}, 6
        v_add_u32 v15, s3, v15
        s_bfe_u32 s3, s2, 0x20001
        s_mul_i32 s3, s3, 14
        v_add_u32 v14, s3, v14
        v_min_u32 v14, 53, v14
        v_lshlrev_b32 v14, 7, v14
        v_cmp_gt_u32 vcc, 3840, v14
        v_mul_u32_u24 v18, 3840, v15
        v_mul_u32_u24 v19, 3072, v15
        v_add_u32 v18, v18, v14
        v_add_u32 v19, v19, v14
        v_subrev_u32 v19, 3840, v19
        v_cndmask_b32 v18, v19, v18, vcc
        v_mov_b32 v20, s12
        v_mov_b32 v21, s13
        v_mov_b32 v22, s6
        v_mov_b32 v23, s7
        v_cndmask_b32 v20, v20, v22, vcc
        v_cndmask_b32 v21, v21, v23, vcc
        v_add_co_u32 v20, vcc, v20, v18
        s_nop 1
        v_addc_co_u32 v21, vcc, 0, v21, vcc
        global_load_dword v31, v[20:21], off
        s_mov_b64 exec, -1
        L_{name}_nopf:
        """)
    NPRE = int(E("NPRE", "2"))
    a(f"L_{name}_pre:")
    a(slot_m0(slot_sgpr=sCur)); a(issue())
    a(f"""
    s_add_u32 s{sCur}, s{sCur}, 1
    s_cmp_lt_u32 s{sCur}, {NPRE}
    {"s_barrier" if E("PBAR", "1") == "1" else "s_nop 0"}
    s_cbranch_scc1 L_{name}_pre
    """)
    if NPRE <= 2: a(slot_m0(slot_sgpr=sCur) + issue_pre())
    a(f"s_mov_b32 s{sCur}, 0")
    a(stamp(7))
    def late_setup(orient):
        t = f"""
        s_lshl_b32 s{sT0}, s{sTB}, 2
        v_mov_b32 v{vPollA}, s{sT0}
        """
        if orient == 1:
            t += f"""
            s_mov_b32 s{sT1}, 52429
            s_sub_u32 s3, s{sCT}, 10
            s_lshl_b32 s3, s3, 7
            s_lshl_b32 s{sT0}, s{sWN}, 6
            s_add_u32 s3, s3, s{sT0}
            v_mul_u32_u24 v24, 320, v193
            """
            for ft in range(2):
                t += f"""
                s_xor_b32 s{sT0}, s{sFA}, {ft}
                s_lshl_b32 s{sT0}, s{sT0}, 5
                s_add_u32 s{sT0}, s{sT0}, s3
                v_add_u32 v30, s{sT0}, v192
                v_mul_u32_u24 v31, s{sT1}, v30
                v_lshrrev_b32 v31, 20, v31
                v_mul_u32_u24 v25, 20, v31
                v_sub_u32 v25, v30, v25
                v_mul_u32_u24 v31, {128*640}, v31
                v_lshl_add_u32 v31, v25, 4, v31
                v_add_u32 v{vEA+ft}, v31, v24
                """
        return t
    def reads(s, fs):
        if E("NOREAD"): return [""] * 6
        b = FR[fs]
        t = [f"ds_read_b128 {vr(b,4)}, v{vXA+s}\n", f"ds_read_b128 {vr(b+4,4)}, v{vXA+s} offset:4096\n"]
        for ft in range(2):
            o = (s >> 1) * 8192
            t.append(f"ds_read_b64_tr_b16 {vr(b+8+ft*4,2)}, v{vWA+ft*2+(s&1)} offset:{o}\n")
            t.append(f"ds_read_b64_tr_b16 {vr(b+10+ft*4,2)}, v{vWA+ft*2+(s&1)} offset:{o+1024}\n")
        return t
    def compute(s, fs, orient, zero=False, rd=None, extra=None):
        b = FR[fs]; X = [b, b+4]; W = [b+8, b+12]
        t = ""; k = 0
        for ft in range(2):
            for tt in range(2):
                c = "0" if zero else None
                if orient == 0: t += mfma(ACC(ft,tt), W[ft], X[tt], c) + "\n"
                else: t += mfma(ACC(ft,tt), X[tt], W[ft], c) + "\n"
                if extra: t += extra[k]
                elif rd and k < 3: t += rd[2*k] + rd[2*k+1]
                if (s & 1) == 0 and not E("NOCS"):
                    t += f"v_lshlrev_b32 v{vTmp}, 16, v{W[0]+k}\nv_and_b32 v{vTmp+1}, s{sScale}, v{W[0]+k}\n"
                    t += f"v_add_f32 v{vCs}, v{vCs}, v{vTmp}\nv_add_f32 v{vCs+1}, v{vCs+1}, v{vTmp+1}\n"
                k += 1
        return t
    def dma_extra(rd):
        return [dma_m0(0) + rd[0] + dma_ld(0) + dma_m0(1) + rd[1] + dma_ld(1),
                dma_m0(2) + rd[2] + dma_ld(2) + dma_m0(3) + rd[3] + dma_ld(3),
                dma_m0(4) + rd[4] + dma_ld(4) + dma_m0(5) + rd[5] + dma_ld(5), ""]
    a(f"""
    s_waitcnt vmcnt({6*(NPRE-1)})
    s_barrier
    """)
    a(stamp(1))
    a("".join(reads(0, 0)))
    a(f"""
    s_cmp_ge_u32 s{sCT}, 10
    s_cbranch_scc0 L_{name}_ent0
    s_cmp_lt_u32 s{sCT}, 15
    s_cbranch_scc1 L_{name}_ent1
    """)
    def rotate_s():
        return f"""s_cmp_eq_u32 s{sCur}, 2
        s_cselect_b32 s{sDX}, {-2*XS & 0xffffffff}, {XS}
        s_cselect_b32 s{sDW}, {-2*16384 & 0xffffffff}, 16384
        s_cselect_b32 s{sCur}, -1, s{sCur}
        s_add_u32 s{sCur}, s{sCur}, 1
        """
    def rotate_v(lo, hi):
        t = ""
        for r in range(lo, hi):
            t += f"v_add_u32 v{vXA+r}, s{sDX}, v{vXA+r}\nv_add_u32 v{vWA+r}, s{sDW}, v{vWA+r}\n"
        return t
    for orient in range(2):
        L = f"L_{name}_loop{orient}"
        a(f"L_{name}_ent{orient}:")
        a("s_waitcnt lgkmcnt(0)")
        if NPRE == 2: a(compute(0, 0, orient, zero=True, extra=dma_extra(reads(1, 1))))
        elif NPRE == 1:
            ex = dma_extra(reads(1, 1)); ex[3] += slot_m0(slot=2) + issue_pre()
            a(compute(0, 0, orient, zero=True, extra=ex))
            a("s_waitcnt lgkmcnt(0)")
            ex = dma_extra(reads(2, 0)); ex[3] += slot_m0(slot_sgpr=sCur) + issue_pre() + rotate_s()
            a(compute(1, 1, orient, extra=ex))
            a(f"s_branch {L}_k2")
        else: a(compute(0, 0, orient, zero=True, rd=reads(1, 1)))
        if NPRE != 1: a(f"s_branch {L}_k1")
        a(f"{L}:")
        a("s_waitcnt lgkmcnt(0)")
        a(compute(0, 0, orient, rd=reads(1, 1)))
        a(f"{L}_k1:")
        a("s_waitcnt lgkmcnt(0)")
        r2 = reads(2, 0)
        a(compute(1, 1, orient, extra=[r2[0] + r2[1] + slot_m0(slot_sgpr=sCur), r2[2] + r2[3] + issue_pre(), r2[4] + r2[5] + rotate_s(), ""]))
        a(f"{L}_k2:")
        a("s_waitcnt lgkmcnt(0)")
        r3 = reads(3, 1)
        a(compute(2, 0, orient, extra=[r3[0] + r3[1], r3[2] + r3[3], r3[4] + r3[5], rotate_v(0, 4)]))
        a(f"""
        s_cmp_ge_u32 s{sST}, 7
        s_cbranch_scc1 {L}_tail
        s_waitcnt vmcnt(6) lgkmcnt(0)
        s_barrier
        """)
        a(compute(3, 1, orient, extra=dma_extra(reads(0, 0))))
        a(f"""
        s_add_u32 s{sST}, s{sST}, 1
        s_branch {L}
        {L}_tail:
        s_cmp_ge_u32 s{sST}, 9
        s_cbranch_scc1 {L}_last
        s_cmp_ge_u32 s{sST}, 8
        s_cbranch_scc1 {L}_w0
        s_waitcnt vmcnt(6) lgkmcnt(0)
        s_barrier
        """)
        a(late_setup(orient))
        a(f"""
        buffer_load_dword v{vPoll}, v{vPollA}, s[{DBG}:{DBG+3}], 0 offen sc1
        s_branch {L}_go
        {L}_w0:
        s_waitcnt vmcnt(0) lgkmcnt(0)
        s_barrier
        s_mov_b32 s{sT1}, 0
        {L}_spin:
        v_readfirstlane_b32 s{sT0}, v{vPoll}
        s_add_u32 s{sT1}, s{sT1}, 1
        s_cmp_ge_u32 s{sT0}, {0 if E("NOSPARE") else NSTAT}
        s_cbranch_scc1 {L}_got
        s_cmp_ge_u32 s{sT1}, 0x40000
        s_cbranch_scc1 {L}_got
        s_sleep 2
        buffer_load_dword v{vPoll}, v{vPollA}, s[{DBG}:{DBG+3}], 0 offen sc1
        s_waitcnt vmcnt(0)
        s_branch {L}_spin
        {L}_got:
        s_lshl_b32 s{sT0}, s{sTB}, 10
        s_lshl_b32 s{sT1}, s{sWM}, 8
        s_add_u32 s{sT0}, s{sT0}, s{sT1}
        s_add_u32 s{sT0}, s{sT0}, {STA_OFF}
        s_add_u32 s{sT1}, s{sT0}, 8192
        """)
        if orient == 0:
            a(f"""
            v_lshlrev_b32 v30, 2, v192
            buffer_load_dword v{vAB}, v30, s[28:31], s{sT0} offen sc1
            buffer_load_dword v{vAB+1}, v30, s[28:31], s{sT1} offen sc1
            buffer_load_dword v{vAB+2}, v30, s[28:31], s{sT0} offen offset:128 sc1
            buffer_load_dword v{vAB+3}, v30, s[28:31], s{sT1} offen offset:128 sc1
            """)
        else:
            if E("VLDS", "1") == "1":
                a(f"""
                s_lshl_b32 s{sT0}, s{sTB}, 10
                s_lshl_b32 s{sT1}, s{sWN}, 13
                s_add_u32 s{sT0}, s{sT0}, s{sT1}
                s_add_u32 s{sT0}, s{sT0}, {STA_OFF}
                v_and_b32 v30, 255, v0
                v_lshlrev_b32 v30, 2, v30
                buffer_load_dword v24, v30, s[28:31], s{sT0} offen sc1
                """)
            else:
                a("v_lshlrev_b32 v30, 4, v193")
                for tt in range(2):
                    for i in range(4):
                        a(f"buffer_load_dwordx4 {vr(VST+32*tt+4*i,4)}, v30, s[28:31], s{sT0} offen offset:{tt*128+i*32} sc1")
                        a(f"buffer_load_dwordx4 {vr(VST+32*tt+16+4*i,4)}, v30, s[28:31], s{sT1} offen offset:{tt*128+i*32} sc1")
        a(f"{L}_go:")
        a(compute(3, 1, orient, rd=reads(0, 0)))
        a(f"""
        s_add_u32 s{sST}, s{sST}, 1
        s_branch {L}
        {L}_last:
        s_waitcnt lgkmcnt(0)
        """)
        a(compute(3, 1, orient))
        if orient == 0: a(f"s_branch L_{name}_stats")
    a(f"L_{name}_stats:")
    a(stamp(2))
    a(f"""
    v_add_f32 v{vCs}, v{vCs}, v{vCs+1}
    v_mov_b32 v{vTmp}, v{vCs}
    s_lshl_b32 s{sT0}, s{sWN}, 6
    s_lshl_b32 s{sT1}, s{sFA}, 5
    s_add_u32 s{sT0}, s{sT0}, s{sT1}
    v_mov_b32 v13, v{vCs}
    s_nop 1
    v_permlane32_swap_b32 v13, v{vTmp}
    v_add_u32 v30, s{sT0}, v192
    v_lshlrev_b32 v30, 2, v30
    v_add_u32 v30, {CSL}, v30
    v_add_f32 v13, v13, v{vTmp}
    s_mov_b64 exec, 0xffffffff
    ds_add_f32 v30, v13
    s_mov_b64 exec, -1
    s_lshl_b32 s{sT0}, s{sTB}, 3
    s_lshl_b32 s{sT1}, s{sWM}, 1
    s_add_u32 s{sST}, s{sT0}, s{sT1}
    """)
    if E("VLDS", "1") == "1":
        a(f"""
        s_cmp_lt_u32 s{sCT}, 10
        s_cbranch_scc1 L_{name}_nov
        s_cmp_ge_u32 s{sCT}, 15
        s_cbranch_scc1 L_{name}_nov
        v_lshlrev_b32 v30, 2, v0
        v_add_u32 v30, {CSL+512}, v30
        s_waitcnt vmcnt(0)
        ds_write_b32 v30, v24
        L_{name}_nov:
        """)
    a(f"""
    s_waitcnt lgkmcnt(0)
    s_barrier
    """)
    a(stamp(3))
    a(f"""
    s_cmp_ge_u32 s{sCT}, 10
    s_cbranch_scc0 L_{name}_epiT
    s_cmp_lt_u32 s{sCT}, 15
    s_cbranch_scc1 L_{name}_epiV
    L_{name}_epiT:
    s_lshl_b32 s{sT0}, s{sWN}, 8
    v_lshlrev_b32 v30, 4, v193
    v_add_u32 v30, s{sT0}, v30
    v_add_u32 v30, {CSL}, v30
    s_lshl_b32 s{sT0}, s{sFA}, 7
    v_add_u32 v31, s{sT0}, v30
    s_xor_b32 s{sT0}, s{sT0}, 128
    v_add_u32 v30, s{sT0}, v30
    """)
    for i in range(4): a(f"ds_read_b128 {vr(32+4*i,4)}, v31 offset:{i*32}")
    for i in range(4): a(f"ds_read_b128 {vr(48+4*i,4)}, v30 offset:{i*32}")
    def norm_pair_tok(accreg, csreg, ab, tmp):
        return (f"v_pk_mul_f32 {vr(tmp,2)}, {vr(csreg,2)}, {vr(ab,2)} op_sel:[0,1] op_sel_hi:[1,1]\n"
                f"v_pk_fma_f32 {vr(accreg,2)}, {vr(accreg,2)}, {vr(ab,2)}, {vr(tmp,2)} op_sel:[0,0,0] op_sel_hi:[1,0,1]\n")
    a(f"""
    s_cmp_lt_u32 s{sCT}, 5
    s_cselect_b32 s{sScale}, {hexf(QSCALE)}, 1.0
    s_cselect_b32 s{sXG}, {QF_OFF}, {KF_OFF}
    s_cselect_b32 s3, 0, 5
    s_sub_u32 s3, s{sCT}, s3
    s_lshl_b32 s3, s3, 4
    s_lshl_b32 s{sT0}, s{sWN}, 3
    s_add_u32 s3, s3, s{sT0}
    s_mul_i32 s{sT0}, s{sST}, 80
    s_add_u32 s3, s3, s{sT0}
    s_lshl_b32 s3, s3, 9
    s_add_u32 s{sXG}, s{sXG}, s3
    v_lshlrev_b32 v{vEA}, 4, v192
    v_lshl_add_u32 v{vEA}, v193, 9, v{vEA}
    s_waitcnt vmcnt(0)
    """)
    for r in range(4): a(f"v_mul_f32 v{vAB+r}, s{sScale}, v{vAB+r}")
    a(f"""
    s_cmp_ge_u32 s{sCT}, 15
    s_cbranch_scc1 L_{name}_epiH
    s_waitcnt lgkmcnt(0)
    """)
    for ft in range(2):
        for tt in range(2):
            ab = vAB + 2*tt
            a(f"""
            s_xor_b32 s{sT0}, s{sFA}, {ft}
            s_lshl_b32 s{sT0}, s{sT0}, 11
            s_add_u32 s{sT0}, s{sT0}, s{sXG}
            """)
            if tt: a(f"s_add_u32 s{sT0}, s{sT0}, {80*512}")
            for half in range(2):
                A0 = ACC(ft,tt) + 8*half
                for i in range(2):
                    A = A0 + 4*i; C = 32 + ft*16 + 8*half + 4*i
                    a(norm_pair_tok(A, C, ab, 28)); a(norm_pair_tok(A+2, C+2, ab, 30))
                for p in range(4): a(f"v_cvt_pk_bf16_f32 v{A0+p}, v{A0+2*p}, v{A0+2*p+1}")
                a(f"s_nop 0\nv_permlane32_swap_b32 v{A0}, v{A0+2}\nv_permlane32_swap_b32 v{A0+1}, v{A0+3}")
                a(f"buffer_store_dwordx4 {vr(A0,4)}, v{vEA}, s[28:31], s{sT0} offen offset:{half*1024}{ST}")
    a(f"s_branch L_{name}_end")
    a(f"L_{name}_epiH:")
    a(f"""
    s_mul_i32 s{sT0}, s{sST}, 96
    s_sub_u32 s3, s{sCT}, 15
    s_lshl_b32 s3, s3, 3
    s_add_u32 s{sT0}, s{sT0}, s3
    s_lshl_b32 s3, s{sWN}, 2
    s_add_u32 s{sT0}, s{sT0}, s3
    s_lshl_b32 s{sT0}, s{sT0}, 10
    s_add_u32 s{sXG}, s{sT0}, {HF_OFF}
    v_lshlrev_b32 v4, 4, v{vLane}
    s_waitcnt lgkmcnt(0)
    """)
    for ft in range(2):
        for tt in range(2):
            ab = vAB + 2*tt
            a(f"""
            s_xor_b32 s{sT0}, s{sFA}, {ft}
            s_lshl_b32 s{sT0}, s{sT0}, 11
            s_add_u32 s{sT0}, s{sT0}, s{sXG}
            s_add_u32 s{sT0}, s{sT0}, {tt*96*1024}
            """)
            for half in range(2):
                A0 = ACC(ft,tt) + 8*half
                for i in range(2):
                    A = A0 + 4*i; C = 32 + ft*16 + 8*half + 4*i
                    a(norm_pair_tok(A, C, ab, 28)); a(norm_pair_tok(A+2, C+2, ab, 30))
                for p in range(4):
                    a(f"v_cvt_pk_bf16_f32 v{A0+p}, v{A0+2*p}, v{A0+2*p+1}")
                for p in range(4):
                    a(f"v_pk_max_i16 v{A0+p}, v{A0+p}, 0")
                a(f"buffer_store_dwordx4 {vr(A0,4)}, v4, s[28:31], s{sT0} offen offset:{half*1024}{ST}")
    a(f"s_branch L_{name}_end")
    a(f"L_{name}_epiV:")
    a(f"""
    s_lshl_b32 s{sT0}, s{sWN}, 6
    v_add_u32 v30, s{sT0}, v192
    v_lshlrev_b32 v30, 2, v30
    v_add_u32 v30, {CSL}, v30
    s_lshl_b32 s{sT1}, s{sFA}, 7
    v_add_u32 v31, s{sT1}, v30
    s_xor_b32 s{sT1}, s{sT1}, 128
    v_add_u32 v30, s{sT1}, v30
    ds_read_b32 v24, v31
    ds_read_b32 v26, v30
    s_mul_i32 s{sT0}, s{sST}, 1280
    s_add_u32 s{sXG}, s{sT0}, {VF_OFF}
    """)
    if E("VLDS", "1") == "1":
        a(f"""
        s_lshl_b32 s{sT0}, s{sWM}, 8
        v_lshlrev_b32 v31, 4, v193
        v_add_u32 v31, s{sT0}, v31
        v_add_u32 v31, {CSL+512}, v31
        """)
        for tt in range(2):
            for i in range(4):
                a(f"ds_read_b128 {vr(VST+32*tt+4*i,4)}, v31 offset:{tt*128+i*32}")
                a(f"ds_read_b128 {vr(VST+32*tt+16+4*i,4)}, v31 offset:{1024+tt*128+i*32}")
    a("s_waitcnt vmcnt(0) lgkmcnt(0)")
    for tt in range(2):
        if tt == 1: a(f"s_add_u32 s{sXG}, s{sXG}, 1280")
        for ft in range(2):
            cs = 24 + 2*ft
            A0 = ACC(ft,tt)
            for p in range(8):
                A = A0 + 2*p
                tmp = 28 + 2*(p & 1)
                a(f"v_pk_mul_f32 {vr(tmp,2)}, {vr(VST+32*tt+16+2*p,2)}, {vr(cs,2)} op_sel:[0,0] op_sel_hi:[1,0]")
                a(f"v_pk_fma_f32 {vr(A,2)}, {vr(A,2)}, {vr(VST+32*tt+2*p,2)}, {vr(tmp,2)}")
            for p in range(8): a(f"v_cvt_pk_bf16_f32 v{A0+p}, v{A0+2*p}, v{A0+2*p+1}")
            a(f"buffer_store_dwordx4 {vr(A0,4)}, v{vEA+ft}, s[28:31], s{sXG} offen{ST}")
            a(f"buffer_store_dwordx4 {vr(A0+4,4)}, v{vEA+ft}, s[28:31], s{sXG} offen offset:640{ST}")
    a(f"s_branch L_{name}_end")
    a(f"L_{name}_spare:")
    if E("NOSPARE"): a(f"s_branch L_{name}_exit")
    a(f"""
    s_and_b32 s{sT0}, s2, 7
    s_lshr_b32 s{sT1}, s2, 3
    s_cmp_ge_u32 s{sT1}, 28
    s_cbranch_scc1 L_{name}_sp1
    s_sub_u32 s{sT0}, s{sT0}, 6
    s_lshl_b32 s{sT0}, s{sT0}, 2
    s_add_u32 s{sT0}, s{sT0}, s{sT1}
    s_add_u32 s{sST}, s{sT0}, 8
    s_branch L_{name}_sp2
    L_{name}_sp1:
    s_lshl_b32 s{sT0}, s{sT0}, 2
    s_add_u32 s{sT0}, s{sT0}, s{sT1}
    s_sub_u32 s{sST}, s{sT0}, 28
    L_{name}_sp2:
    v_mov_b32 v20, 0
    v_mov_b32 v21, 0
    v_mov_b32 v22, 0
    v_lshrrev_b32 v4, 4, v{vLane}
    v_and_b32 v5, 15, v{vLane}
    v_mul_u32_u24 v6, 1280, v4
    v_lshl_add_u32 v6, v5, 4, v6
    """)
    if fused and E("CPF", "1") == "1" and E("CPFE", "0") == "1":
        a(f"""
        s_and_b32 s3, s{sST}, 3
        s_cmp_lg_u32 s3, 0
        s_cbranch_scc1 L_{name}_nocpf
        s_cmp_ge_u32 s{sST}, 32
        s_cbranch_scc1 L_{name}_nocpf
        s_cmp_ge_u32 s{sW}, 4
        s_cbranch_scc1 L_{name}_nocpf
        """)
        a(code_prefetch("a", sym, sym, sW, 0, 4, 25))
        a(f"L_{name}_nocpf:")
    a("s_waitcnt lgkmcnt(0)")
    a(srd(28, "s16", "s17", WS_SIZE))
    a(srd(DBG, "s18", "s19", 256))
    if fused and E("CPF", "1") == "1" and E("CPFE", "0") != "1":
        a(f"""
        s_and_b32 s3, s{sST}, 3
        s_cmp_lg_u32 s3, 0
        s_cbranch_scc1 L_{name}_nocpf
        s_cmp_ge_u32 s{sST}, 32
        s_cbranch_scc1 L_{name}_nocpf
        s_cmp_ge_u32 s{sW}, 4
        s_cbranch_scc1 L_{name}_nocpf
        """)
        a(code_prefetch("a", sym, sym, sW, 0, 4, 25))
        a(f"L_{name}_nocpf:")
    if E("TLBW", "0") == "1":
        a(f"""
        s_load_dwordx2 s[62:63], s[0:1], 48
        v_and_b32 v7, 15, v{vLane}
        v_lshlrev_b32 v7, 21, v7
        v_min_u32 v7, {WS_SIZE-4}, v7
        buffer_load_dword v25, v7, s[28:31], 0 offen
        s_waitcnt lgkmcnt(0)
        """)
        a(srd(20, "s62", "s63", S*D*2))
        a(f"""
        v_and_b32 v7, 1, v{vLane}
        v_lshlrev_b32 v7, 21, v7
        buffer_load_dword v26, v7, s[20:23], 0 offen
        """)
    if fused:
        a(f"""
        s_cmp_lg_u32 s{sST}, 39
        s_cbranch_scc1 L_{name}_noinit
        s_cmp_ge_u32 s{sW}, 2
        s_cbranch_scc1 L_{name}_init1
        v_lshlrev_b32 v7, 8, v0
        v_mov_b32 v8, 0
        s_mov_b32 s3, {FLG_OFF}
        buffer_store_dword v8, v7, s[28:31], s3 offen sc0 sc1
        s_waitcnt vmcnt(0)
        L_{name}_init1:
        s_barrier
        s_cmp_lg_u32 s{sW}, 0
        s_cbranch_scc1 L_{name}_noinit
        v_lshlrev_b32 v7, 2, v{vLane}
        v_mov_b32 v8, 1
        s_mov_b64 exec, 0xff
        buffer_atomic_add v8, v7, s[{DBG}:{DBG+3}], 0 offen sc1
        s_mov_b64 exec, -1
        L_{name}_noinit:
        """)
    a(f"""
    s_cmp_ge_u32 s{sST}, 32
    s_cbranch_scc1 L_{name}_relay
    """)
    a(srd(20, "s4", "s5", S*D*2))
    a(f"""
    s_lshl_b32 s{sT0}, s{sST}, 6
    s_lshl_b32 s{sT1}, s{sW}, 3
    s_add_u32 s{sT0}, s{sT0}, s{sT1}
    s_mul_i32 s{sXG}, s{sT0}, 1280
    s_add_u32 s{sWG}, s{sXG}, {4*1280}
    """)
    SPF = E("SPF", "1") == "1"
    def pf():
        if not SPF: return ""
        return "global_load_dword v24, v[20:21], off\nv_add_co_u32 v20, vcc, v22, v20\ns_nop 1\nv_addc_co_u32 v21, vcc, 0, v21, vcc\n"
    if SPF:
        a(f"""
        s_and_b32 s3, s{sST}, 3
        s_lshl_b32 s3, s3, 3
        s_add_u32 s3, s3, s{sW}
        s_cmp_ge_u32 s3, 16
        s_cbranch_scc1 L_{name}_pfw
        v_lshl_add_u32 v20, s3, 6, v{vLane}
        s_and_b32 s3, s2, 1
        s_lshl_b32 s3, s3, 10
        v_add_u32 v20, s3, v20
        v_mul_u32_u24 v20, 1280, v20
        v_add_u32 v20, {3*128}, v20
        v_mov_b32 v22, 128
        v_mov_b32 v18, s4
        v_mov_b32 v21, s5
        s_branch L_{name}_pfa
        L_{name}_pfw:
        s_sub_u32 s3, s3, 16
        s_min_u32 s3, s3, 13
        v_lshl_add_u32 v16, s3, 6, v{vLane}
        v_mul_u32_u24 v17, 4682, v16
        v_lshrrev_b32 v17, 16, v17
        v_mul_u32_u24 v18, 14, v17
        v_sub_u32 v16, v16, v18
        s_bfe_u32 s3, s2, 0x20001
        {"s_lshl_b32 s3, s3, 3" if E("REMAP", "0") == "1" else "s_mul_i32 s3, s3, 14"}
        {"s_lshr_b32 s3, 0x1c280e00, s3" if E("REMAP", "0") == "1" else ""}
        {"s_and_b32 s3, s3, 0xff" if E("REMAP", "0") == "1" else ""}
        v_add_u32 v16, s3, v16
        v_min_u32 v16, 53, v16
        v_lshlrev_b32 v16, 7, v16
        v_add_u32 v17, {3*64}, v17
        v_cmp_gt_u32 vcc, 3840, v16
        v_mul_u32_u24 v18, 3840, v17
        v_mul_u32_u24 v19, 3072, v17
        v_add_u32 v18, v18, v16
        v_add_u32 v19, v19, v16
        v_subrev_u32 v19, 3840, v19
        v_cndmask_b32 v20, v19, v18, vcc
        v_mov_b32 v18, s12
        v_mov_b32 v21, s13
        v_mov_b32 v16, s6
        v_mov_b32 v17, s7
        v_cndmask_b32 v18, v18, v16, vcc
        v_cndmask_b32 v21, v21, v17, vcc
        v_mov_b32 v22, {64*3072}
        v_mov_b32 v16, {64*3840}
        v_cndmask_b32 v22, v22, v16, vcc
        L_{name}_pfa:
        v_add_co_u32 v20, vcc, v18, v20
        s_nop 1
        v_addc_co_u32 v21, vcc, 0, v21, vcc
        """)
        a(pf() * int(E("NPF1", "1")))
    for g in range(2):
        for i in range(5):
            a(f"buffer_load_dwordx4 {vr(32+20*g+4*i,4)}, v6, s[20:23], s{sXG if g==0 else sWG} offen offset:{i*256}")
    EARLY = E("EARLY", "1") == "1"
    if EARLY:
        a(f"""
        s_cmp_lt_u32 s{sST}, 8
        s_cbranch_scc1 L_{name}_noearly
        v_lshlrev_b32 v2, 4, v{vLane}
        s_lshl_b32 s{sM0X}, s{sW}, 10
        s_sub_u32 s3, s{sST}, 8
        s_mul_i32 s{sWB}, s3, 81920
        """)
        a(srd(24, "s14", "s15", 1536*1280))
        for j in range(10):
            a(f"""
            s_add_u32 s3, s{sM0X}, {j*8192}
            s_mov_b32 m0, s3
            s_add_u32 s3, s3, s{sWB}
            buffer_load_dwordx4 v2, s[24:27], s3 offen lds
            """)
        a(f"""
        s_waitcnt vmcnt(10)
        s_branch L_{name}_early1
        L_{name}_noearly:
        s_waitcnt vmcnt(0)
        L_{name}_early1:
        """)
    for g in range(2):
        if not EARLY: a(f"s_waitcnt vmcnt({5 if g == 0 else 0})")
        su, sq = 8 + 4*g, 10 + 4*g
        a(f"v_mov_b32 v{su}, 0\nv_mov_b32 v{su+1}, 0\nv_mov_b32 v{sq}, 0\nv_mov_b32 v{sq+1}, 0")
        for r in range(20):
            x = 32 + 20*g + r; t = 16 + 2*(r & 1)
            a(f"v_lshlrev_b32 v{t}, 16, v{x}\nv_and_b32 v{t+1}, 0xffff0000, v{x}")
            a(f"v_pk_add_f32 {vr(su,2)}, {vr(su,2)}, {vr(t,2)}\nv_pk_fma_f32 {vr(sq,2)}, {vr(t,2)}, {vr(t,2)}, {vr(sq,2)}")
        a(f"v_add_f32 v{su}, v{su}, v{su+1}\nv_add_f32 v{sq}, v{sq}, v{sq+1}")
    for sh in (8, 4, 2, 1):
        a("s_nop 1")
        for r in (8, 10, 12, 14):
            a(f"v_add_f32_dpp v{r}, v{r}, v{r} row_ror:{sh} row_mask:0xf bank_mask:0xf")
    a(f"s_mov_b32 s{sT1}, {hexf(1.0/640)}")
    for g in range(2):
        su, sq = 8 + 4*g, 10 + 4*g
        a(f"""
        v_mul_f32 v{su}, s{sT1}, v{su}
        v_mul_f32 v{sq}, s{sT1}, v{sq}
        v_fma_f32 v{sq}, -v{su}, v{su}, v{sq}
        v_max_f32 v{sq}, 0, v{sq}
        v_add_f32 v{sq}, {hexf(1e-5)}, v{sq}
        v_rsq_f32 v{sq}, v{sq}
        s_nop 0
        v_mul_f32 v{su}, v{su}, v{sq}
        v_sub_f32 v{su}, 0, v{su}
        """)
    a(f"""
    v_lshlrev_b32 v7, 2, v4
    s_lshl_b32 s{sT0}, s{sT0}, 2
    s_add_u32 s{sT0}, s{sT0}, {STA_OFF}
    s_add_u32 s{sT1}, s{sT0}, 8192
    s_mov_b32 s60, 0x00010001
    s_mov_b32 s61, 0x00010001
    s_mov_b64 exec, s[60:61]
    buffer_store_dword v10, v7, s[28:31], s{sT0} offen sc0 sc1
    buffer_store_dword v8, v7, s[28:31], s{sT1} offen sc0 sc1
    buffer_store_dword v14, v7, s[28:31], s{sT0} offen offset:16 sc0 sc1
    buffer_store_dword v12, v7, s[28:31], s{sT1} offen offset:16 sc0 sc1
    s_mov_b64 exec, -1
    s_waitcnt vmcnt(0)
    s_barrier
    """)
    a(f"""
    s_cmp_lg_u32 s{sW}, 0
    s_cbranch_scc1 L_{name}_relay
    s_lshr_b32 s{sT0}, s{sST}, 2
    s_lshl_b32 s{sT0}, s{sT0}, 2
    v_mov_b32 v7, s{sT0}
    v_mov_b32 v8, 1
    s_mov_b64 exec, 1
    buffer_atomic_add v8, v7, s[{DBG}:{DBG+3}], 0 offen sc1
    s_mov_b64 exec, -1
    L_{name}_relay:
    """)
    if not fused:
        a(f"""
        s_cmp_lg_u32 s{sST}, 39
        s_cbranch_scc1 L_{name}_nz
        v_and_b32 v7, 63, v0
        v_lshlrev_b32 v7, 8, v7
        v_mov_b32 v8, 0
        s_mov_b32 s{sT0}, {FLG_OFF}
        buffer_store_dword v8, v7, s[28:31], s{sT0} offen
        L_{name}_nz:
        """)
    NP2 = (7 - int(E("NPF1", "1"))) if SPF else 0
    a(f"""
    s_cmp_ge_u32 s{sST}, 8
    s_cbranch_scc1 L_{name}_rjob
    """)
    a(pf() * NP2)
    a(f"""
    s_branch {("L_" + name + "_sdone") if fused else ("L_" + name + "_exit")}
    L_{name}_rjob:
    s_sub_u32 s{sST}, s{sST}, 8
    v_lshlrev_b32 v2, 4, v{vLane}
    v_lshrrev_b32 v10, 5, v{vLane}
    v_and_b32 v5, 15, v{vLane}
    v_lshrrev_b32 v6, 2, v5
    v_and_b32 v5, 3, v5
    v_lshlrev_b32 v5, 3, v5
    v_bfe_u32 v11, v{vLane}, 4, 1
    v_lshl_add_u32 v11, v11, 5, v5
    s_lshl_b32 s{sT1}, s{sW}, 10
    s_cmp_ge_u32 s{sST}, 24
    s_cbranch_scc1 L_{name}_rwo
    """)
    if not EARLY:
        a(srd(20, "s14", "s15", 1536*1280))
        a(f"s_mul_i32 s{sWG}, s{sST}, 81920")
        for j in range(10):
            a(f"""
            s_add_u32 s{sT0}, s{sT1}, {j*8192}
            s_mov_b32 m0, s{sT0}
            s_add_u32 s{sT0}, s{sT0}, s{sWG}
            buffer_load_dwordx4 v2, s[20:23], s{sT0} offen lds
            """)
    a(pf() * NP2)
    a(f"""
    v_lshl_add_u32 v4, v10, 2, v6
    v_mul_u32_u24 v4, 1280, v4
    v_add_u32 v4, v4, v11
    s_lshr_b32 s{sT0}, s{sW}, 1
    s_mul_i32 s{sT1}, s{sT0}, 20480
    s_and_b32 s{sFA}, s{sW}, 1
    s_mul_i32 s{sFA}, s{sFA}, 10
    s_lshl_b32 s{sLD}, s{sFA}, 6
    s_add_u32 s{sT1}, s{sT1}, s{sLD}
    v_add_u32 v4, s{sT1}, v4
    v_add_u32 v5, {8*1280}, v4
    s_lshl_b32 s3, s{sST}, 2
    s_add_u32 s3, s3, s{sT0}
    s_mul_i32 s3, s3, 20
    s_add_u32 s3, s3, s{sFA}
    s_lshl_b32 s3, s3, 10
    s_add_u32 s{sXG}, s3, {W2F_OFF}
    {"s_nop 0" if EARLY else "s_waitcnt vmcnt(" + str(NP2) + ")"}
    {"s_nop 0" if EARLY else "s_barrier"}
    """)
    for j in range(10):
        a(f"ds_read_b64_tr_b16 {vr(32+4*j,2)}, v4 offset:{j*64}\nds_read_b64_tr_b16 {vr(34+4*j,2)}, v5 offset:{j*64}")
    a("s_waitcnt lgkmcnt(0)")
    for j in range(10):
        a(f"buffer_store_dwordx4 {vr(32+4*j,4)}, v2, s[28:31], s{sXG} offen{ST}")
        if j < 9: a(f"s_add_u32 s{sXG}, s{sXG}, 1024")
    a(f"s_branch {DONE}")
    a(f"L_{name}_rwo:")
    a(srd(20, "s8", "s9", 640*1280))
    a(f"s_sub_u32 s{sST}, s{sST}, 24\ns_mul_i32 s{sWG}, s{sST}, 102400")
    for j in range(13):
        if j == 12:
            a(f"s_cmp_ge_u32 s{sW}, 4\ns_cbranch_scc1 L_{name}_rwo1")
        a(f"""
        s_add_u32 s{sT0}, s{sT1}, {j*8192}
        s_mov_b32 m0, s{sT0}
        s_add_u32 s{sT0}, s{sT0}, s{sWG}
        buffer_load_dwordx4 v2, s[20:23], s{sT0} offen lds
        """)
    a(f"L_{name}_rwo1:")
    base0 = [0, 8, 20, 28, 16]; base1 = [4, 12, 24, 32, 36]
    a("s_waitcnt vmcnt(0)\ns_barrier")
    a(f"s_mov_b32 s{sDX}, 0")
    a(f"""
    L_{name}_rwl:
    s_lshl_b32 s{sT0}, s{sDX}, 3
    s_add_u32 s{sT0}, s{sT0}, s{sW}
    s_cmp_ge_u32 s{sT0}, 100
    s_cbranch_scc1 {DONE}
    s_mul_i32 s{sT1}, s{sT0}, 3277
    s_lshr_b32 s{sT1}, s{sT1}, 16
    s_mul_i32 s3, s{sT1}, 20
    s_sub_u32 s3, s{sT0}, s3
    s_mul_i32 s{sXG}, s{sST}, 100
    s_add_u32 s{sXG}, s{sXG}, s{sT0}
    s_lshl_b32 s{sXG}, s{sXG}, 10
    s_add_u32 s{sXG}, s{sXG}, {WOF_OFF}
    s_lshl_b32 s3, s3, 6
    s_lshl_b32 s{sT1}, s{sT1}, 1
    v_add_u32 v7, s{sT1}, v10
    v_mul_u32_u24 v8, 52429, v7
    v_lshrrev_b32 v8, 18, v8
    v_mul_u32_u24 v9, 5, v8
    v_sub_u32 v9, v7, v9
    v_mul_u32_u24 v8, 40, v8
    v_lshlrev_b32 v12, 3, v9
    v_cmp_lt_u32 vcc, 1, v9
    v_add_u32 v13, 4, v12
    s_nop 0
    v_cndmask_b32 v12, v12, v13, vcc
    v_cmp_eq_u32 vcc, 4, v9
    v_add_u32 v13, 4, v12
    v_mov_b32 v14, 36
    v_cndmask_b32 v12, v12, 16, vcc
    v_cndmask_b32 v13, v13, v14, vcc
    v_add3_u32 v12, v12, v8, v6
    v_add3_u32 v13, v13, v8, v6
    v_mul_u32_u24 v12, 1280, v12
    v_mul_u32_u24 v13, 1280, v13
    v_add3_u32 v12, v12, v11, s3
    v_add3_u32 v13, v13, v11, s3
    ds_read_b64_tr_b16 v[32:33], v12
    ds_read_b64_tr_b16 v[34:35], v13
    s_add_u32 s{sDX}, s{sDX}, 1
    s_waitcnt lgkmcnt(0)
    buffer_store_dwordx4 v[32:35], v2, s[28:31], s{sXG} offen{ST}
    s_nop 1
    s_branch L_{name}_rwl
    """)
    if fused:
        a(f"""
        L_{name}_sdone:
        s_mov_b32 s{sKS}, 0
        s_branch L_{name}_spoll
        {DONE}:
        s_mov_b32 s{sKS}, 1
        L_{name}_spoll:
        s_waitcnt vmcnt(0)
        s_barrier
        s_cmp_lg_u32 s{sW}, 0
        s_cbranch_scc1 L_{name}_sbar
        v_mov_b32 v7, 0
        s_mov_b32 s{sT1}, 0
        L_{name}_ipoll:
        buffer_load_dword v8, v7, s[{DBG}:{DBG+3}], 0 offen sc1
        s_add_u32 s{sT1}, s{sT1}, 1
        s_waitcnt vmcnt(0)
        v_readfirstlane_b32 s{sT0}, v8
        s_cmp_ge_u32 s{sT0}, {NSTAT}
        s_cbranch_scc1 L_{name}_igot
        s_cmp_ge_u32 s{sT1}, 0x40000
        s_cbranch_scc1 L_{name}_igot
        s_sleep 8
        s_branch L_{name}_ipoll
        L_{name}_igot:
        s_cmp_eq_u32 s{sKS}, 0
        s_cbranch_scc1 L_{name}_sbar
        v_lshlrev_b32 v7, 8, v{vLane}
        v_mov_b32 v8, 1
        s_mov_b32 s3, {FLG_OFF + 88*256}
        s_mov_b64 exec, 0xff
        buffer_atomic_add v8, v7, s[28:31], s3 offen sc1
        s_mov_b64 exec, -1
        L_{name}_sbar:
        s_barrier
        s_branch {fused}
        """)
    a(f"L_{name}_end:")
    if DIAG:
        a(stamp(4)); a("s_waitcnt vmcnt(0)"); a(stamp(5)); a(stamp_flush(0, 8, 28))
    if fused:
        a(f"""
        s_waitcnt vmcnt(0)
        s_barrier
        s_cmp_lg_u32 s{sW}, 0
        s_cbranch_scc1 {fused}
        s_add_u32 s{sT0}, s{sCT}, 64
        s_add_u32 s{sT1}, s{sTB}, 80
        s_cmp_ge_u32 s{sCT}, 15
        s_cselect_b32 s{sT0}, s{sT1}, s{sT0}
        s_lshl_b32 s{sT0}, s{sT0}, 8
        s_add_u32 s{sT0}, s{sT0}, {FLG_OFF}
        v_mov_b32 v7, 0
        v_mov_b32 v8, 1
        s_mov_b64 exec, 1
        buffer_atomic_add v8, v7, s[28:31], s{sT0} offen sc1
        s_mov_b64 exec, -1
        s_branch {fused}
        """)
    a(f"L_{name}_exit:\ns_endpgm")
    if not fused: a(kernel_desc(name, 200))
    return a.text()
```
